```python
import torch

def _softmax(x, axis=-1):
    return torch.softmax(x, dim=axis)
def _gelu(x):
    return torch.nn.functional.gelu(x, approximate="tanh")
def _silu(x):
    return torch.nn.functional.silu(x)
def _sigmoid(x):
    return torch.sigmoid(x)
def _layernorm(x, axis=-1, eps=1e-5):
    m = x.mean(dim=axis, keepdim=True)
    v = x.var(dim=axis, keepdim=True, unbiased=False)
    return (x - m) / torch.sqrt(v + eps)
def _scatter_add(tgt, idx, src, axis=0):
    return tgt.clone().index_add_(axis, idx, src)
def _segment_sum(src, seg, n):
    out = torch.zeros((n,) + src.shape[1:], dtype=src.dtype)
    return out.index_add_(0, seg, src)
def _pad(x, pw):
    flat = tuple(v for pair in reversed(pw) for v in pair)
    return torch.nn.functional.pad(x, flat)

kernel_name = 'recurrent_scan__spectral_gfnet__dense_activation_relu__prompt'

def setup_inputs():

    _w = (lambda a: (lambda t: t.to(torch.bfloat16) if t.is_floating_point() else t)(torch.as_tensor(a)))
    def _A_setup():
        B, S, D = 1, 2048, 512
        Df = D // 2 + 1
        return {
            "x": _w((lambda *s: torch.randn(*s, dtype=torch.bfloat16) * 0.05)(B, S, D)),
            "w_r": _w((lambda *s: torch.randn(*s, dtype=torch.bfloat16) * 0.2)(S, Df) * 0.02),
            "w_i": _w((lambda *s: torch.randn(*s, dtype=torch.bfloat16) * 0.2)(S, Df) * 0.02),
        }
    _A_in = _A_setup()

    def _B_setup():
        B, S, D, Dff = 1, 2048, 512, 1376
        return {
            "x": _w((lambda *s: torch.randn(*s, dtype=torch.bfloat16) * 0.05)(B, S, D)),
            "w1": _w((lambda *s: torch.randn(*s, dtype=torch.bfloat16) * 0.1)(D, Dff)),
            "w2": _w((lambda *s: torch.randn(*s, dtype=torch.bfloat16) * 0.1)(Dff, D)),
        }
    _B_in = _B_setup()

    return {
        "A_x": _A_in["x"],
        "A_w_r": _A_in["w_r"],
        "A_w_i": _A_in["w_i"],
        "B_x": _B_in["x"],
        "B_w1": _B_in["w1"],
        "B_w2": _B_in["w2"],
    }

def reference(A_x, A_w_r, A_w_i, B_x, B_w1, B_w2):
    def _A_ref(x, w_r, w_i):
        B, S, D = x.shape
        X = (lambda x, axes=(-2,-1): torch.fft.rfft2(x.float(), dim=axes))(x, axes=(-2, -1))
        W = w_r + 1j * w_i
        X = X * W
        y = (lambda x, s, axes=(-2,-1): torch.fft.irfft2(x, s=s, dim=axes).to(torch.bfloat16))(X, (S, D), axes=(-2, -1))
        return y

    def _B_ref(x, w1, w2):
        h = torch.einsum("bsd,df->bsf", x, w1)
        zero = torch.zeros_like(h)
        h = torch.maximum(h, zero)
        return torch.einsum("bsf,fd->bsd", h, w2)

    x = A_x
    xn = _layernorm(x, axis=-1)
    s = _A_ref(xn, A_w_r, A_w_i)
    g = _silu(_B_ref(xn, B_w1, B_w2))
    return x + s * g
```

```python
import re
REG = re.compile(r'(?<![\w.])(-?\|?)([vas])(?:\[(\d+):(\d+)\]|(\d+))(?![\w])')
TRANS = ('v_exp_f32', 'v_log_f32', 'v_rcp_f32', 'v_rsq_f32', 'v_sqrt_f32', 'v_sin_f32', 'v_cos_f32')
def regs_of(tok):
    out = set()
    for m in REG.finditer(tok):
        k = m.group(2)
        if m.group(3) is not None: lo, hi = int(m.group(3)), int(m.group(4))
        else: lo = hi = int(m.group(5))
        out |= {(k, i) for i in range(lo, hi + 1)}
    t = tok.strip()
    if t in ('vcc', 'vcc_lo', 'vcc_hi'): out.add(('x', 'vcc'))
    if t in ('exec', 'exec_lo', 'exec_hi'): out.add(('x', 'exec'))
    if t == 'm0': out.add(('x', 'm0'))
    return out
class Ins:
    def __init__(self, text):
        self.text = text
        t = text.split(';')[0].strip()
        self.label = t.endswith(':'); self.directive = t.startswith('.') and not self.label
        self.empty = (t == '')
        self.op = t.split()[0] if t else ''
        self.r = set(); self.w = set(); self.kind = 'other'; self.passes = 0
        self.A = self.B = self.C = set(); self.sdata = set()
        if self.label or self.directive or self.empty: return
        rest = t[len(self.op):].strip()
        ops = [x.strip() for x in rest.split(',')] if rest else []
        mods = ''
        if ops:
            j = ','.join(ops); m = re.search(r'\s+(?=[a-z_0-9]+(:|\b))', j)
            parts = re.split(r'\s+', j, maxsplit=1)
            ops = parts[0].split(','); mods = parts[1] if len(parts) > 1 else ''
        self.mods = mods
        R = [regs_of(x) for x in ops]; op = self.op
        allr = lambda lst: set().union(*lst) if lst else set()
        if op.startswith('v_mfma'):
            self.kind = 'mfma'; self.passes = 8 if '32x32' in op else 4
            self.w = R[0]; self.A, self.B, self.C = R[1], R[2], R[3]; self.r = R[1] | R[2] | R[3]
        elif op.startswith('v_'):
            self.kind = 'valu'
            if op.startswith(('v_swap', 'v_permlane16_swap', 'v_permlane32_swap')): self.w = R[0] | R[1]; self.r = R[0] | R[1]
            elif op.startswith(('v_add_co', 'v_sub_co', 'v_addc_co')): self.w = R[0] | R[1]; self.r = allr(R[2:])
            elif op == 'v_nop': pass
            else:
                self.w = R[0]; self.r = allr(R[1:])
                if op.startswith(('v_fmac', 'v_dot2c', 'v_writelane')) or 'dpp' in op: self.r |= R[0]
                if op.startswith('v_cndmask') and len(ops) == 3: self.r.add(('x', 'vcc'))
            self.trans = op.startswith(TRANS)
            self.dpp = ('dpp' in op) or ('row_' in mods) or ('quad_perm' in mods)
        elif op.startswith('ds_'):
            self.kind = 'ds'
            if op.startswith(('ds_read', 'ds_bpermute', 'ds_permute', 'ds_swizzle')) or '_rtn' in op: self.w = R[0]; self.r = allr(R[1:])
            else: self.r = allr(R)
        elif op.startswith(('buffer_', 'global_')):
            self.kind = 'vmem'
            lds = ('lds' in op) or re.search(r'\blds\b', mods) is not None
            if lds: self.r = allr(R) | {('x', 'm0')}; self.dma = True
            elif 'load' in op: self.w = R[0]; self.r = allr(R[1:])
            elif 'atomic' in op and 'sc0' in mods:
                self.w = R[0]; self.r = allr(R[1:]) if op.startswith('global') else allr(R)
            else:
                self.r = allr(R)
                if op.endswith(('x3', 'x4')): self.sdata = R[0] if op.startswith('buffer') else R[1]
        elif op.startswith('s_'):
            self.kind = 'salu'
            if op.startswith(('s_cmp', 's_waitcnt', 's_nop', 's_barrier', 's_cbranch', 's_branch', 's_endpgm', 's_sleep', 's_setprio', 's_bitcmp')): self.r = allr(R)
            else:
                self.w = R[0] if R else set(); self.r = allr(R[1:])
                if 'saveexec' in op: self.w = self.w | {('x', 'exec')}
    def states(self):
        if self.label or self.directive or self.empty: return 0
        if self.op == 's_nop': return int(self.text.split(';')[0].split()[1]) + 1
        return 1
def vonly(s): return {x for x in s if x[0] in 'va'}
def sonly(s): return {x for x in s if x[0] == 's' or x == ('x', 'vcc')}
def need(p, c):
    n = 0
    if p.kind == 'valu':
        vw = vonly(p.w); sw = sonly(p.w)
        if c.kind == 'mfma' and vw & c.r: n = max(n, 2)
        if c.kind == 'valu':
            if c.dpp and vw & c.r: n = max(n, 2)
            if c.op.startswith('v_permlane') and vw & c.r: n = max(n, 2)
            if c.op.startswith(('v_readlane', 'v_readfirstlane')) and vw & c.r: n = max(n, 1)
            if p.trans and not c.trans and vw & c.r: n = max(n, 1)
            if sw & c.r: n = max(n, 4 if c.op.startswith(('v_readlane', 'v_writelane')) else 2)
        if c.kind == 'vmem' and sw & c.r: n = max(n, 5)
        if p.op.startswith('v_dot') and vw & (c.r | c.w): n = max(n, 3)
        if ('x', 'exec') in p.w: n = max(n, 5)
    if p.kind == 'mfma':
        big = {4: 8, 8: 12}[p.passes]
        if c.kind == 'mfma':
            if p.w & (c.A | c.B): n = max(n, big)
            if p.w & c.C and not (p.w == c.C and p.passes == c.passes): n = max(n, big - 2)
            if p.w & c.w and not (p.w == c.w and p.passes == c.passes): n = max(n, big)
        elif c.kind in ('valu', 'vmem', 'ds'):
            if p.w & (c.r | c.w): n = max(n, big)
            if c.kind == 'valu' and p.C & c.w: n = max(n, p.passes - 1)
    if p.kind == 'salu' and ('x', 'm0') in p.w and c.kind == 'vmem' and ('x', 'm0') in c.r: n = max(n, 1)
    if p.kind == 'vmem' and p.sdata and p.sdata & c.w: n = max(n, 2)
    return n
class Asm:
    def __init__(self): self.lines = []
    def __call__(self, text):
        for l in text.split('\n'):
            l = l.strip()
            if l: self.lines.append(l)
    def finish(self):
        out = []; nops = 0
        for l in self.lines:
            c = Ins(l)
            if c.kind != 'other' and not c.label:
                dist = 0; req = 0
                for p in reversed(out):
                    if dist >= 12: break
                    req = max(req, need(p, c) - dist)
                    dist += p.states()
                if req > 0:
                    out.append(Ins(f's_nop {req-1}')); nops += req
            out.append(c)
        self.nops = nops
        return '\n'.join(('' if (i.label or i.directive) else '    ') + i.text for i in out) + '\n'
class Regs:
    def __init__(self, kind, lo, hi): self.kind = kind; self.free = list(range(lo, hi)); self.names = {}; self.hw = lo
    def alloc(self, name, n=1, align=None):
        align = align or (1 if n == 1 else (2 if self.kind in 'va' else (4 if n >= 4 else 2)))
        fs = set(self.free)
        for b in self.free:
            if b % align == 0 and all((b + i) in fs for i in range(n)):
                for i in range(n): self.free.remove(b + i)
                assert name not in self.names, name
                self.names[name] = (b, n); self.hw = max(self.hw, b + n)
                return R(self.kind, b, n)
        raise RuntimeError(f"out of {self.kind} regs for {name} x{n}; have {self.names}")
    def release(self, *names):
        for name in names:
            b, n = self.names.pop(name); self.free = sorted(self.free + list(range(b, b + n)))
class R:
    def __init__(self, k, b, n): self.k, self.b, self.n = k, b, n
    def __getitem__(self, i):
        if isinstance(i, slice):
            lo = i.start or 0; hi = self.n if i.stop is None else i.stop
            assert 0 <= lo < hi <= self.n
            return R(self.k, self.b + lo, hi - lo)
        assert 0 <= i < self.n, (i, self.n)
        return R(self.k, self.b + i, 1)
    def __str__(self): return f"{self.k}{self.b}" if self.n == 1 else f"{self.k}[{self.b}:{self.b+self.n-1}]"
    __repr__ = __str__
    def __format__(self, spec): return str(self)
```

```python
from asmlib import *
import struct
def f2u(x): return struct.unpack('<I', struct.pack('<f', x))[0]
def hx(x): return f"0x{x & 0xffffffff:08x}"
def fl(x): return hx(f2u(x))
M16 = "v_mfma_f32_16x16x32_bf16"; M32 = "v_mfma_f32_32x32x16_bf16"
WS_X1 = 0; WS_Y1 = 2 << 20; WS_H = 4 << 20; WS_O = 10 << 20; WS_R = 12 << 20; WS_FLAG = 13 << 20; WS_SIZE = 14 << 20
L_RING = 0; L_XR = 131072; L_E = L_XR + 8192; EH = 4288; L_U = L_E + 8704; L_MEAN = L_U + 8192; L_END = L_MEAN + 256
RED_S = 8704

class K:
    def __init__(s, name):
        s.name = name; s.A = Asm(); s.V = Regs('v', 1, 256); s.AC = Regs('a', 0, 256); s.S = Regs('s', 22, 100); s.c = {}; s.uid = 0
    def v(s, name, n=1, align=None): r = s.V.alloc(name, n, align); setattr(s, name, r); return r
    def a(s, name, n=1, align=None): r = s.AC.alloc(name, n, align); setattr(s, name, r); return r
    def sg(s, name, n=1, align=None): r = s.S.alloc(name, n, align); setattr(s, name, r); return r
    def vfree(s, *n): s.V.release(*n)
    def afree(s, *n): s.AC.release(*n)
    def sfree(s, *n): s.S.release(*n)
    def lab(s, x): return f"L_{s.name}_{x}"

    def prologue(s):
        A = s.A
        A(f"""s_load_dwordx16 s[4:19], s[0:1], 0
        s_load_dwordx2 s[20:21], s[0:1], 64
        s_cmp_ge_u32 s2, 256
        s_cbranch_scc1 {s.lab('end')}""")
        s.v('l'); s.v('n'); s.v('q'); s.sg('w'); s.sg('rb'); s.sg('fs'); s.sg('p'); s.sg('t0'); s.sg('t1'); s.sg('xcd'); s.sg('j')
        A(f"""v_lshrrev_b32 {s.q}, 6, v0
        v_and_b32 {s.l}, 63, v0
        v_readfirstlane_b32 {s.w}, {s.q}
        v_and_b32 {s.n}, 15, v0
        v_lshrrev_b32 {s.q}, 4, {s.l}
        s_and_b32 {s.xcd}, s2, 7
        s_lshr_b32 {s.j}, s2, 3
        s_and_b32 {s.t0}, {s.j}, 3
        s_lshl_b32 {s.rb}, {s.xcd}, 2
        s_add_u32 {s.rb}, {s.rb}, {s.t0}
        s_lshr_b32 {s.fs}, s2, 5
        s_lshl_b32 {s.p}, {s.rb}, 3
        s_add_u32 {s.p}, {s.p}, {s.fs}""")
    PTR = dict(x=4, wr=6, wi=8, w1=12, w2=14, out=16, dbg=18, ws=20)
    def srd(s, name, ptr, size, bias=0):
        r = s.sg(name, 4, 4); b = s.PTR[ptr]; A = s.A
        if bias < 0: A(f"s_sub_u32 {r[0]}, s{b}, {-bias}\n s_subb_u32 {r[1]}, s{b+1}, 0")
        elif bias > 0: A(f"s_add_u32 {r[0]}, s{b}, {bias}\n s_addc_u32 {r[1]}, s{b+1}, 0")
        else: A(f"s_mov_b32 {r[0]}, s{b}\n s_mov_b32 {r[1]}, s{b+1}")
        A(f"s_mov_b32 {r[2]}, {size}\n s_mov_b32 {r[3]}, 0x20000")
        return r
    def end(s):
        s.A(f"{s.lab('end')}:\n s_endpgm")

    def base_kn(s):
        A = s.A; kn = s.v('kn', 4)
        A(f"""v_mul_u32_u24 {kn[0]}, {s.q}, {s.n}
        v_lshlrev_b32 {kn[0]}, 2, {kn[0]}
        v_cvt_f32_u32 {kn[3]}, {s.n}
        v_cvt_f32_u32 {kn[0]}, {kn[0]}
        v_add_f32 {kn[1]}, {kn[0]}, {kn[3]}
        v_add_f32 {kn[2]}, {kn[1]}, {kn[3]}
        v_add_f32 {kn[3]}, {kn[2]}, {kn[3]}""")
    def trig(s, co, si, src, scale):
        A = s.A
        for c in range(4): A(f"v_mul_f32 {si[c]}, {fl(scale)}, {src[c]}")
        for c in range(4): A(f"v_cos_f32 {co[c]}, {si[c]}")
        for c in range(4): A(f"v_sin_f32 {si[c]}, {si[c]}")
    def const_T(s, name, N):
        co = s.v(name + 'c', 4); si = s.v(name + 's', 4); s.trig(co, si, s.kn, 1.0 / N)
    def const_F16(s, fwd, inv, cg):
        A = s.A; co = s.v('_co', 4); si = s.v('_si', 4); s.trig(co, si, s.kn, 1.0 / 16)
        if fwd:
            s.v('FWr', 4); s.v('FWi', 4)
            for c in range(4): A(f"v_cvt_pk_bf16_f32 {s.FWr[c]}, {co[c]}, {si[c]}\n v_cvt_pk_bf16_f32 {s.FWi[c]}, -{si[c]}, {co[c]}")
        if inv:
            s.v('IVr', 4); s.v('IVi', 4)
            for c in range(4): A(f"v_cvt_pk_bf16_f32 {s.IVr[c]}, {co[c]}, -{si[c]}\n v_cvt_pk_bf16_f32 {s.IVi[c]}, {si[c]}, {co[c]}")
        if cg:
            s.v('CGr', 4); s.v('CGi', 4); m = s.v('_m')
            A(f"v_lshlrev_b32 {m}, 30, {s.q}\n v_and_b32 {m}, 0x80000000, {m}")
            for c in range(4):
                if inv: A(f"v_xor_b32 {s.CGr[c]}, {s.IVr[c]}, {m}\n v_xor_b32 {s.CGi[c]}, {s.IVi[c]}, {m}")
                else:
                    A(f"v_cvt_pk_bf16_f32 {s.CGr[c]}, {co[c]}, -{si[c]}\n v_cvt_pk_bf16_f32 {s.CGi[c]}, {si[c]}, {co[c]}")
                    A(f"v_xor_b32 {s.CGr[c]}, {s.CGr[c]}, {m}\n v_xor_b32 {s.CGi[c]}, {s.CGi[c]}, {m}")
            s.vfree('_m')
        s.vfree('_co', '_si')
    def const_32(s, a1, c1):
        A = s.A; co = s.v('_co', 4); si = s.v('_si', 4); s.trig(co, si, s.kn, 1.0 / 32); m = s.v('_m'); t = s.v('_t')
        if a1:
            s.v('B1r', 4); s.v('B1i', 4)
            A(f"""v_and_b32 {m}, 1, {s.n}
            v_mul_u32_u24 {m}, 0x10001, {m}
            v_lshlrev_b32 {m}, 15, {m}
            v_cmp_eq_u32 vcc, 0, {s.n}
            v_mov_b32 {t}, 0xbf803f80""")
            for h in range(2):
                A(f"""v_cvt_pk_bf16_f32 {s.B1r[h]}, {co[2*h]}, {co[2*h+1]}
                v_cvt_pk_bf16_f32 {s.B1i[h]}, -{si[2*h]}, -{si[2*h+1]}
                v_cndmask_b32 {s.B1i[h]}, {s.B1i[h]}, {t}, vcc
                v_xor_b32 {s.B1r[2+h]}, {s.B1r[h]}, {m}
                v_xor_b32 {s.B1i[2+h]}, {s.B1i[h]}, {m}""")
        if c1:
            s.v('C1x', 4); s.v('C1y', 4)
            A(f"""v_lshlrev_b32 {t}, 31, {s.n}
            v_xor_b32 {t}, 0xbf800000, {t}
            v_cmp_gt_u32 vcc, 16, {s.l}
            v_cndmask_b32 {si[0]}, {si[0]}, {t}, vcc""")
            for c in range(4):
                A(f"v_mul_f32 {co[c]}, {fl(2.0**-19)}, {co[c]}\n v_mul_f32 {si[c]}, {fl(2.0**-19)}, {si[c]}")
                A(f"v_cvt_pk_bf16_f32 {s.C1x[c]}, {co[c]}, -{si[c]}")
                if c % 2 == 0: A(f"v_mov_b32 {s.C1y[c]}, {s.C1x[c]}")
                else: A(f"v_xor_b32 {s.C1y[c]}, 0x80008000, {s.C1x[c]}")
        s.vfree('_co', '_si', '_m', '_t')
    def const_SA(s):
        A = s.A; co = s.v('_co', 4); si = s.v('_si', 4); m = s.v('_m'); t = s.v('_t'); s.v('SAr', 4); s.v('SAi', 4)
        A(f"""v_lshrrev_b32 {t}, 3, {s.n}
        v_lshl_add_u32 {m}, {s.n}, 1, {t}
        v_cmp_eq_u32 vcc, 0, {s.n}
        v_lshlrev_b32 {t}, 4, {t}
        v_cndmask_b32 {m}, {m}, 16, vcc
        v_mul_u32_u24 {co[0]}, {s.q}, {m}
        v_lshlrev_b32 {co[0]}, 2, {co[0]}
        v_cvt_f32_u32 {m}, {m}
        v_cvt_f32_u32 {co[0]}, {co[0]}
        v_add_f32 {co[1]}, {co[0]}, {m}
        v_add_f32 {co[2]}, {co[1]}, {m}
        v_add_f32 {co[3]}, {co[2]}, {m}
        v_mov_b32 {m}, 0xffff
        v_lshlrev_b32 {m}, {t}, {m}""")
        s.trig(co, si, co, 1.0 / 32)
        for c in range(4):
            A(f"""v_cvt_pk_bf16_f32 {s.SAr[c]}, {co[c]}, {co[c]}
            v_cvt_pk_bf16_f32 {s.SAi[c]}, -{si[c]}, -{si[c]}
            v_and_b32 {s.SAr[c]}, {s.SAr[c]}, {m}
            v_and_b32 {s.SAi[c]}, {s.SAi[c]}, {m}""")
        s.vfree('_co', '_si', '_m', '_t')
    def const_SC(s):
        A = s.A; co = s.v('_co', 4); si = s.v('_si', 4); m = s.v('_m'); t = s.v('_t'); s.v('SCr', 4); s.v('SCi', 4)
        A(f"""v_lshrrev_b32 {t}, 1, {s.q}
        v_mul_u32_u24 {t}, {t}, {s.n}
        v_cvt_f32_u32 {t}, {t}
        v_lshlrev_b32 {m}, 4, {s.n}
        v_cvt_f32_u32 {m}, {m}
        v_cmp_gt_u32 vcc, 16, {s.l}""")
        for c in range(4): A(f"v_fma_f32 {co[c]}, 2.0, {s.kn[c]}, {t}")
        A(f"v_cndmask_b32 {co[0]}, {co[0]}, {m}, vcc")
        s.trig(co, si, co, 1.0 / 32)
        A(f"""v_mul_f32 {t}, 0.5, {co[0]}
        v_cndmask_b32 {co[0]}, {co[0]}, {t}, vcc
        v_cndmask_b32 {si[0]}, {si[0]}, 0, vcc
        v_cmp_gt_u32 vcc, 32, {s.l}""")
        for c in range(4):
            A(f"""v_cvt_pk_bf16_f32 {s.SCr[c]}, {co[c]}, -{si[c]}
            v_cvt_pk_bf16_f32 {s.SCi[c]}, {co[c]}, {si[c]}
            v_cndmask_b32 {s.SCr[c]}, 0, {s.SCr[c]}, vcc
            v_cndmask_b32 {s.SCi[c]}, {s.SCi[c]}, 0, vcc""")
        s.vfree('_co', '_si', '_m', '_t')
    def const_A3(s):
        A = s.A; co = s.v('_co', 4); si = s.v('_si', 4); m = s.v('_m'); t = s.v('_t'); s.v('A3r', 4); s.v('A3i', 4)
        A(f"""v_and_b32 {t}, 1, {s.q}
        v_lshlrev_b32 {t}, 10, {t}
        v_add_u32 {t}, {s.p}, {t}
        v_lshrrev_b32 {m}, 1, {s.n}
        v_mul_u32_u24 {co[0]}, {m}, {t}
        v_lshlrev_b32 {m}, 8, {m}
        v_cvt_f32_u32 {co[0]}, {co[0]}
        v_cvt_f32_u32 {m}, {m}
        v_lshrrev_b32 {t}, 1, {s.q}
        v_add_f32 {co[1]}, {co[0]}, {m}
        v_add_f32 {co[2]}, {co[1]}, {m}
        v_add_f32 {co[3]}, {co[2]}, {m}
        v_and_b32 {m}, 1, {s.n}
        v_cmp_eq_u32 vcc, {m}, {t}""")
        s.trig(co, si, co, 1.0 / 2048)
        for c in range(4):
            A(f"""v_cvt_pk_bf16_f32 {s.A3r[c]}, {co[c]}, {si[c]}
            v_cvt_pk_bf16_f32 {s.A3i[c]}, -{si[c]}, {co[c]}
            v_cndmask_b32 {s.A3r[c]}, 0, {s.A3r[c]}, vcc
            v_cndmask_b32 {s.A3i[c]}, 0, {s.A3i[c]}, vcc""")
        s.vfree('_co', '_si', '_m', '_t')
    def const_C3(s):
        A = s.A; co = s.v('_co', 4); si = s.v('_si', 4); m = s.v('_m'); t = s.v('_t'); s.v('C3r', 4); s.v('C3i', 4)
        A(f"""v_lshrrev_b32 {t}, 3, {s.n}
        v_and_b32 {m}, 3, {s.n}
        v_lshl_add_u32 {t}, {t}, 2, {m}
        v_lshlrev_b32 {t}, 8, {t}
        v_add_u32 {t}, {s.p}, {t}
        v_lshrrev_b32 {m}, 1, {s.q}
        v_mul_u32_u24 {co[0]}, {m}, {t}
        v_lshlrev_b32 {co[0]}, 2, {co[0]}
        v_cvt_f32_u32 {t}, {t}
        v_cvt_f32_u32 {co[0]}, {co[0]}
        v_bfe_u32 {m}, {s.n}, 2, 1
        v_add_f32 {co[1]}, {co[0]}, {t}
        v_add_f32 {co[2]}, {co[1]}, {t}
        v_add_f32 {co[3]}, {co[2]}, {t}
        v_and_b32 {t}, 1, {s.q}
        v_cmp_eq_u32 vcc, {m}, {t}""")
        s.trig(co, si, co, 1.0 / 2048)
        for c in range(4):
            A(f"""v_cvt_pk_bf16_f32 {s.C3r[c]}, {co[c]}, -{si[c]}
            v_cvt_pk_bf16_f32 {s.C3i[c]}, {si[c]}, {co[c]}
            v_cndmask_b32 {s.C3r[c]}, 0, {s.C3r[c]}, vcc
            v_cndmask_b32 {s.C3i[c]}, 0, {s.C3i[c]}, vcc""")
        s.vfree('_co', '_si', '_m', '_t')
    def e_addr(s, name, k1_is_n):
        A = s.A; d = s.v(name, 4); k = s.v('_k'); t = s.v('_t'); u = s.v('_u')
        A(f"""s_lshr_b32 {s.t0}, {s.w}, 1
        s_mul_i32 {s.t0}, {s.t0}, {EH}
        s_and_b32 {s.t1}, {s.w}, 1
        s_lshl_b32 {s.t1}, {s.t1}, 3
        s_add_u32 {s.t0}, {s.t0}, {s.t1}
        s_add_u32 {s.t0}, {s.t0}, {L_E}""")
        for c in range(4):
            A(f"v_lshl_add_u32 {k}, {s.q}, 2, {c}")
            k1, k2 = (s.n, k) if k1_is_n else (k, s.n)
            A(f"""v_lshl_add_u32 {t}, {k2}, 5, {k1}
            v_cmp_eq_u32 vcc, 0, {k1}
            v_sub_u32 {u}, 512, {t}
            v_subrev_u32 {d[c]}, 16, {u}
            v_cndmask_b32 {u}, {u}, {d[c]}, vcc
            v_cmp_gt_u32 vcc, 8, {k2}
            v_cndmask_b32 {t}, {u}, {t}, vcc
            v_add_u32 {t}, -1, {t}
            v_and_b32 {t}, 255, {t}
            v_lshrrev_b32 {u}, 5, {t}
            v_add_u32 {t}, {t}, {u}
            v_lshl_add_u32 {d[c]}, {t}, 4, {s.t0}""")
        s.vfree('_k', '_t', '_u')

    def cmul(s, outr, outi, dr, di, co, si, tmp, conj):
        A = s.A
        neg = " neg_lo:[0,0,1] neg_hi:[0,0,1]"
        for h in (0, 2):
            P = lambda r: r[h:h+2]
            A(f"v_pk_mul_f32 {tmp[0:2]}, {P(di)}, {P(si)}")
            A(f"v_pk_mul_f32 {tmp[2:4]}, {P(dr)}, {P(si)}")
            A(f"v_pk_fma_f32 {P(outr)}, {P(dr)}, {P(co)}, {tmp[0:2]}" + (neg if conj else ""))
            A(f"v_pk_fma_f32 {P(outi)}, {P(di)}, {P(co)}, {tmp[2:4]}" + ("" if conj else neg))

    def xr_issue(s):
        A = s.A
        A(f"""s_lshl_b32 {s.t0}, {s.w}, 11
        s_add_u32 m0, {s.t0}, {L_XR}
        s_lshl_b32 {s.t0}, {s.w}, 9
        s_add_u32 {s.t0}, {s.t0}, {s.p}
        s_lshl_b32 {s.t0}, {s.t0}, 10
        s_add_u32 {s.t0}, {s.t0}, 2048
        s_add_u32 {s.t1}, {s.t0}, {262144-1024}
        buffer_load_dwordx4 {s.l16}, {s.sx}, {s.t0} offen lds
        buffer_load_dwordx4 {s.l16}, {s.sx}, {s.t1} offen offset:1024 lds""")
    def a_setup(s):
        A = s.A
        s.v('a_trad'); s.v('a_rd'); s.v('a_st'); s.v('sel0'); s.v('sel1'); s.v('mn0'); s.v('sgn'); s.sg('mq0', 2); t = s.v('_t'); u = s.v('_u')
        A(f"""s_lshl_b32 {s.t0}, {s.w}, 11
        s_add_u32 {s.t0}, {s.t0}, {L_XR}
        v_lshl_add_u32 {s.a_trad}, {s.l}, 3, {s.t0}
        v_mov_b32 {s.sel0}, 0x3f80
        v_mov_b32 {s.sel1}, 1.0
        v_cmp_eq_u32 vcc, 0, {s.n}
        s_mov_b64 {s.mq0}, 0xffff
        v_cndmask_b32 {s.mn0}, 0, 1.0, vcc
        v_cmp_gt_u32 vcc, 8, {s.n}
        s_mul_i32 {s.t0}, {s.w}, {66*16}
        v_cndmask_b32 {s.sgn}, -1.0, 1.0, vcc
        s_add_u32 {s.t0}, {s.t0}, {L_E}
        v_lshrrev_b32 {t}, 2, {s.n}
        v_and_b32 {u}, 3, {s.n}
        v_lshl_add_u32 {t}, {t}, 3, {u}
        v_lshrrev_b32 {u}, 1, {s.q}
        v_lshl_add_u32 {t}, {u}, 2, {t}
        v_and_b32 {u}, 1, {s.q}
        v_mul_u32_u24 {u}, {EH}, {u}
        v_lshl_add_u32 {t}, {t}, 4, {u}
        v_add_u32 {s.a_rd}, {s.t0}, {t}
        v_lshrrev_b32 {t}, 1, {s.n}
        v_lshlrev_b32 {t}, 10, {t}
        v_lshl_add_u32 {t}, {s.q}, 5, {t}
        v_and_b32 {u}, 1, {s.n}
        v_lshl_add_u32 {s.a_st}, {u}, 4, {t}""")
        s.vfree('_t', '_u')
        s.e_addr('a_wr', False)
    def a_part1(s, waitx):
        A = s.A
        F = [s.v('aF0', 4), s.v('aF1', 4)]
        D = [[s.v(f'aD{i}{x}', 4) for x in 'ri'] for i in range(2)]
        Sp = [[s.v(f'aS{i}{x}', 4) for x in 'ri'] for i in range(2)]
        d = s.v('ad', 8); st = s.v('ast', 4); tmp = s.v('atmp', 4); P = s.v('aP', 8)
        s.sg('r01', 2); piv = s.sg('apiv', 2)
        A(waitx)
        for i in range(2):
            A(f"ds_read_b64_tr_b16 {F[i][0:2]}, {s.a_trad} offset:{1024*i}\n ds_read_b64_tr_b16 {F[i][2:4]}, {s.a_trad} offset:{1024*i+512}")
        for i in range(2):
            A(f"s_waitcnt lgkmcnt({2-2*i})")
            A(f"{M16} {D[i][0]}, {F[i]}, {s.B1r}, 0\n {M16} {D[i][1]}, {F[i]}, {s.B1i}, 0")
            A(f"v_readfirstlane_b32 {piv[i]}, {F[i][0]}")
        for i in range(2):
            A(f"s_lshl_b32 {piv[i]}, {piv[i]}, 16\n s_xor_b32 {piv[i]}, {piv[i]}, 0x80000000")
        for i in range(2):
            for c in range(4):
                A(f"v_dot2_f32_bf16 {d[2*c]}, {F[i][c]}, {s.sel0}, {piv[i]}\n v_dot2_f32_bf16 {d[2*c+1]}, {F[i][c]}, {s.sel1}, {piv[i]}")
            A("s_nop 2")
            A(f"""v_pk_mul_f32 {tmp[0:2]}, {d[0:2]}, {d[0:2]}
            v_pk_add_f32 {tmp[2:4]}, {d[0:2]}, {d[2:4]}
            v_pk_fma_f32 {tmp[0:2]}, {d[2:4]}, {d[2:4]}, {tmp[0:2]}
            v_pk_add_f32 {tmp[2:4]}, {tmp[2:4]}, {d[4:6]}
            v_pk_fma_f32 {tmp[0:2]}, {d[4:6]}, {d[4:6]}, {tmp[0:2]}
            v_pk_add_f32 {tmp[2:4]}, {tmp[2:4]}, {d[6:8]}
            v_pk_fma_f32 {tmp[0:2]}, {d[6:8]}, {d[6:8]}, {tmp[0:2]}
            v_add_f32 {st[i]}, {tmp[2]}, {tmp[3]}
            v_add_f32 {st[2+i]}, {tmp[0]}, {tmp[1]}""")
        for i in range(2):
            A(f"v_readfirstlane_b32 {piv[i]}, {D[i][0][0]}")
        A(f"""v_permlane32_swap_b32 {st[0]}, {st[1]}
        v_permlane32_swap_b32 {st[2]}, {st[3]}
        v_add_f32 {st[0]}, {st[0]}, {st[1]}
        v_add_f32 {st[2]}, {st[2]}, {st[3]}""")
        for i in range(2):
            A(f"v_mul_f32 {d[2*i]}, {piv[i]}, {s.mn0}")
        A(f"v_permlane16_swap_b32 {st[0]}, {st[2]}\n v_add_f32 {st[0]}, {st[0]}, {st[2]}")
        red = [f"v_add_f32_dpp {st[0]}, {st[0]}, {st[0]} row_ror:{k} row_mask:0xf bank_mask:0xf" for k in (8, 4, 2, 1)]
        for i in range(2):
            for h in (0, 2):
                A(f"v_pk_add_f32 {D[i][0][h:h+2]}, {D[i][0][h:h+2]}, {d[2*i:2*i+2]} op_sel_hi:[1,0] neg_lo:[0,1] neg_hi:[0,1]")
            A(red[2*i])
            s.cmul(D[i][0], D[i][1], D[i][0], D[i][1], s.T512c, s.T512s, tmp, False)
            A(red[2*i+1])
            for c in range(4): A(f"v_cvt_pk_bf16_f32 {F[i][c]}, {D[i][0][c]}, {D[i][1][c]}")
        A(f"v_mov_b32 {st[1]}, {st[0]}")
        fin = f"""v_permlane16_swap_b32 {st[0]}, {st[1]}
        v_mul_f32 {st[0]}, {fl(1/512)}, {st[0]}
        v_mul_f32 {st[1]}, {fl(1/512)}, {st[1]}
        v_fma_f32 {st[1]}, -{st[0]}, {st[0]}, {st[1]}
        v_max_f32 {st[1]}, 0, {st[1]}
        v_cvt_pk_bf16_f32 {st[1]}, {st[1]}, {st[1]}
        v_lshlrev_b32 {st[1]}, 16, {st[1]}
        v_add_f32 {st[1]}, {fl(1e-5)}, {st[1]}
        v_cvt_pk_bf16_f32 {st[1]}, {st[1]}, {st[1]}
        v_lshlrev_b32 {st[1]}, 16, {st[1]}
        v_sqrt_f32 {st[1]}, {st[1]}
        v_cvt_pk_bf16_f32 {st[1]}, {st[1]}, {st[1]}
        v_lshlrev_b32 {st[1]}, 16, {st[1]}
        v_rcp_f32 {st[1]}, {st[1]}
        v_readlane_b32 {s.r01[0]}, {st[1]}, 0
        v_readlane_b32 {s.r01[1]}, {st[1]}, 32""".split('\n')
        mf = []
        for i in range(2):
            mf += [f"{M16} {D[i][0]}, {F[i]}, {s.FWr}, 0", f"{M16} {D[i][1]}, {F[i]}, {s.FWi}, 0", f"{M16} {Sp[i][0]}, {F[i]}, {s.SAr}, 0", f"{M16} {Sp[i][1]}, {F[i]}, {s.SAi}, 0"]
        for k in range(8):
            A(mf[k]); A(fin[2*k]); A(fin[2*k+1])
        for i in range(2): A(f"v_mul_f32 {d[2*i]}, {s.r01[i]}, {s.sgn}")
        for i in range(2):
            for x in range(2): A(f"v_cndmask_b32 {D[i][x][0]}, {D[i][x][0]}, {Sp[i][x][0]}, {s.mq0}")
            for h in (0, 2):
                A(f"v_pk_mul_f32 {D[i][0][h:h+2]}, {D[i][0][h:h+2]}, {s.r01} op_sel:[0,{i}] op_sel_hi:[1,{i}]")
                A(f"v_pk_mul_f32 {D[i][1][h:h+2]}, {D[i][1][h:h+2]}, {d[2*i:2*i+2]} op_sel_hi:[1,0]")
            for c in range(4): A(f"v_cvt_pk_bf16_f32 {P[2*c+i]}, {D[i][0][c]}, {D[i][1][c]}")
        for c in range(4): A(f"ds_write_b64 {s.a_wr[c]}, {P[2*c:2*c+2]}")
        s.vfree('aS0r', 'aS0i', 'aS1r', 'aS1i', 'ad', 'ast', 'atmp', 'aP'); s.sfree('apiv')
    def a_part2(s, stflag):
        A = s.A; F = [s.aF0, s.aF1]; D = [[s.aD0r, s.aD0i], [s.aD1r, s.aD1i]]
        for t in range(2): A(f"ds_read_b128 {F[t]}, {s.a_rd} offset:{t*33*16}")
        A(f"s_lshl_b32 {s.t0}, {s.p}, 13\n s_lshl_b32 {s.t1}, {s.w}, 8\n s_add_u32 {s.t0}, {s.t0}, {s.t1}")
        for t in range(2):
            A(f"s_waitcnt lgkmcnt({1-t})")
            A(f"{M16} {D[t][0]}, {F[t]}, {s.A3r}, 0\n {M16} {D[t][1]}, {F[t]}, {s.A3i}, 0")
        for t in range(2):
            for c in range(4): A(f"v_cvt_pk_bf16_f32 {F[t][c]}, {D[t][0][c]}, {D[t][1][c]}")
            A(f"buffer_store_dwordx4 {F[t]}, {s.a_st}, {s.sws}, {s.t0} offen offset:{WS_X1 + 128*t} {stflag}")
        s.vfree('aF0', 'aF1', 'aD0r', 'aD0i', 'aD1r', 'aD1i', 'a_trad', 'a_rd', 'a_st', 'sel0', 'sel1', 'mn0', 'sgn', 'a_wr',
                'B1r', 'B1i', 'SAr', 'SAi', 'A3r', 'A3i')

    def g1_setup_dma(s):
        A = s.A; vo = s.v('g1vo', 8); t = s.v('_t'); u = s.v('_u'); k = s.v('_k')
        s.sg('sox', 8); s.sg('sow', 8); s.sg('m0b'); s.sg('shift'); s.sg('tile0')
        imm = [0, 1024, 2048, 3072, 0, 1024]
        for z in range(3):
            A(f"""v_add_u32 {t}, {64*z}, {s.l}
            v_mul_u32_u24 {u}, 2731, {t}
            v_lshrrev_b32 {u}, 16, {u}
            v_mul_u32_u24 {k}, 24, {u}
            v_sub_u32 {t}, {t}, {k}
            v_and_b32 {k}, 6, {u}
            v_xor_b32 {t}, {t}, {k}
            v_and_b32 {k}, 4, {u}
            v_add_u32 {u}, {u}, {k}
            v_mul_u32_u24 {u}, 2752, {u}
            v_lshl_add_u32 {t}, {t}, 4, {u}
            v_subrev_u32 {vo[z]}, {imm[z]}, {t}
            v_add_u32 {vo[3+z]}, {16*2752 - imm[3+z]}, {t}""")
        A(f"""v_lshrrev_b32 {u}, 3, {s.l}
        v_and_b32 {t}, 7, {s.l}
        v_xor_b32 {t}, {t}, {s.q}
        v_lshlrev_b32 {u}, 10, {u}
        v_lshl_add_u32 {vo[6]}, {t}, 4, {u}
        v_xor_b32 {vo[7]}, 64, {vo[6]}
        v_add_u32 {vo[7]}, {262144-1024}, {vo[7]}
        s_mul_i32 {s.tile0}, {s.fs}, 11
        s_cmp_eq_u32 {s.fs}, 7
        s_cselect_b32 {s.t0}, 1, 0
        s_sub_u32 {s.tile0}, {s.tile0}, {s.t0}
        s_and_b32 {s.shift}, {s.tile0}, 1
        s_lshl_b32 {s.m0b}, {s.w}, 13
        s_and_b32 {s.t0}, {s.j}, 3
        s_lshl_b32 {s.t0}, {s.t0}, 1
        s_add_u32 {s.t0}, {s.t0}, {s.fs}
        s_add_u32 {s.t0}, {s.t0}, {s.xcd}""")
        bx = s.sg('_bx'); bw = s.sg('_bw')
        A(f"""s_lshl_b32 {bx}, {s.w}, 6
        s_add_u32 {bx}, {bx}, {s.rb}
        s_lshl_b32 {bx}, {bx}, 13
        s_lshr_b32 {bw}, {s.w}, 1
        s_lshl_b32 {bw}, {bw}, 3
        s_and_b32 {s.t1}, {s.w}, 1
        s_add_u32 {bw}, {bw}, {s.t1}
        s_mul_i32 {bw}, {bw}, {4*2752}
        s_lshr_b32 {s.t1}, {s.tile0}, 1
        s_lshl_b32 {s.t1}, {s.t1}, 6
        s_add_u32 {bw}, {bw}, {s.t1}""")
        for st in range(8):
            A(f"""s_and_b32 {s.t0}, {s.t0}, 7
            s_lshl_b32 {s.t1}, {s.t0}, 7
            s_add_u32 {s.sox[st]}, {bx}, {s.t1}
            s_mul_i32 {s.t1}, {s.t0}, {64*2752}
            s_add_u32 {s.sow[st]}, {bw}, {s.t1}
            s_add_u32 {s.t0}, {s.t0}, 1""")
        s.vfree('_t', '_u', '_k'); s.sfree('_bx', '_bw')
    def g1_dma(s, st):
        vo = s.g1vo; base = (st % 4) * 32768
        o = [f"s_add_u32 m0, {s.m0b}, {base}"]
        for z in range(4): o.append(f"buffer_load_dwordx4 {vo[z]}, {s.sw1}, {s.sow[st]} offen offset:{1024*z} lds")
        o.append(f"s_add_u32 m0, {s.m0b}, {base+4096}")
        for z in range(2): o.append(f"buffer_load_dwordx4 {vo[4+z]}, {s.sw1}, {s.sow[st]} offen offset:{1024*z} lds")
        for z in range(2): o.append(f"buffer_load_dwordx4 {vo[6+z]}, {s.sx}, {s.sox[st]} offen offset:{2048+1024*z} lds")
        return o
    def g1_setup_rd(s):
        A = s.A; wa = s.v('g1wa', 6); xa = s.v('g1xa', 4); t = s.v('_t'); u = s.v('_u'); k = s.v('_k')
        A(f"""v_lshrrev_b32 {t}, 2, {s.l}
        v_mul_u32_u24 {u}, 384, {t}
        v_and_b32 {k}, 3, {s.l}
        v_lshl_add_u32 {u}, {k}, 3, {u}
        v_bfe_u32 {t}, {s.l}, 3, 2
        s_mul_i32 {s.t0}, {s.w}, 3
        s_add_u32 {s.t0}, {s.t0}, {s.shift}""")
        for i in range(3):
            A(f"""v_xor_b32 {k}, {s.t0}, {t}
            v_lshl_add_u32 {wa[i]}, {k}, 5, {u}
            v_add_u32 {wa[3+i]}, 65536, {wa[i]}
            s_add_u32 {s.t0}, {s.t0}, 1""")
        A(f"""v_lshrrev_b32 {t}, 1, {s.n}
        v_xor_b32 {t}, {t}, {s.q}
        v_lshlrev_b32 {t}, 4, {t}
        v_lshl_add_u32 {t}, {s.n}, 7, {t}
        v_add_u32 {xa[0]}, 6144, {t}
        v_xor_b32 {xa[1]}, 64, {xa[0]}
        v_add_u32 {xa[2]}, 65536, {xa[0]}
        v_add_u32 {xa[3]}, 65536, {xa[1]}""")
        s.vfree('_t', '_u', '_k')
        s.v('acc1', 48); s.v('accc', 12); s.a('ones', 4); s.a('xf', 32); s.a('wf', 24)
        t = s.v('_t'); A(f"v_mov_b32 {t}, 0x3f803f80")
        for c in range(4): A(f"v_accvgpr_write_b32 {s.ones[c]}, {t}")
        s.vfree('_t')
    def g1_reads(s, step, w3):
        st = step // 2; ks = step % 2; sl = st % 4; hi = sl // 2; base = (sl % 2) * 32768; b = step % 2
        o = []
        nt = 2 if w3 else 3
        xr = [f"ds_read_b128 {s.xf[16*b+4*mt:16*b+4*mt+4]}, {s.g1xa[2*hi+ks]} offset:{base + mt*8192}" for mt in range(4)]
        wr = [[f"ds_read_b64_tr_b16 {s.wf[12*b+4*i+2*h:12*b+4*i+2*h+2]}, {s.g1wa[3*hi+i]} offset:{base + (2*ks+h)*8192}" for h in range(2)] for i in range(nt)]
        o = wr[0] + xr
        for i in range(1, nt): o += wr[i]
        return o
    def g1_mfmas(s, step, w3):
        b = step % 2; o = []
        for i in range(3):
            wf = s.wf[12*b+4*i:12*b+4*i+4]
            if w3 and i == 2: wf = s.ones
            for mt in range(4):
                acc = s.acc1[16*i+4*mt:16*i+4*mt+4]
                o.append(f"{M16} {acc}, {wf}, {s.xf[16*b+4*mt:16*b+4*mt+4]}, {acc if step else 0}")
            if not (w3 and i == 2):
                acc = s.accc[4*i:4*i+4]
                o.append(f"{M16} {acc}, {wf}, {s.ones}, {acc if step else 0}")
        return o
    def g1_main(s, w3, vm, extra):
        A = s.A
        A(f"s_waitcnt vmcnt({vm[0]})\n s_barrier")
        for x in s.g1_reads(0, w3): A(x)
        for step in range(16):
            fill = []
            if step % 2 == 1:
                nx = step // 2 + 1
                A(f"s_waitcnt lgkmcnt(0)" + (f" vmcnt({vm[nx]})" if nx < 8 else "")); A("s_barrier")
            else: A("s_waitcnt lgkmcnt(0)")
            if step < 15: fill += s.g1_reads(step + 1, w3)
            fill += extra.get(step, [])
            mf = s.g1_mfmas(step, w3)
            per = -(-len(fill) // len(mf)); per = max(per, 2) if fill else 0
            for m in mf:
                A(m)
                for x in fill[:per]: A(x)
                fill = fill[per:]
        if w3:
            t = s.v('_t', 4); ad = s.v('_ad')
            A(f"v_lshlrev_b32 {ad}, 4, {s.n}\n v_add_u32 {ad}, {L_MEAN}, {ad}")
            for mt in range(4): A(f"v_mul_f32 {t[mt]}, {fl(-1/512)}, {s.acc1[32+4*mt]}")
            for mt in range(4): A(f"v_cvt_pk_bf16_f32 {t[mt]}, {t[mt]}, {t[mt]}")
            for mt in range(4): A(f"v_lshlrev_b32 {t[mt]}, 16, {t[mt]}")
            A(f"ds_write_b128 {ad}, {t}\n s_waitcnt lgkmcnt(0)")
            s.vfree('_t', '_ad')
    def g1_epilogue(s, stflag):
        A = s.A; mm = s.v('g1m', 4); ad = s.v('_ad'); P = s.v('g1P', 24); so = s.sg('_so', 3)
        A(f"v_lshlrev_b32 {ad}, 4, {s.n}\n v_add_u32 {ad}, {L_MEAN}, {ad}\n s_barrier\n ds_read_b128 {mm}, {ad}")
        A(f"""s_mul_i32 {s.t0}, {s.rb}, 86
        s_add_u32 {s.t0}, {s.t0}, {s.tile0}
        s_mul_i32 {s.t1}, {s.w}, 3
        s_add_u32 {s.t0}, {s.t0}, {s.t1}
        s_lshl_b32 {s.t0}, {s.t0}, 11
        s_add_u32 {so[0]}, {s.t0}, {WS_H}
        s_add_u32 {so[1]}, {so[0]}, 2048
        s_add_u32 {so[2]}, {so[0]}, 4096
        s_cmp_eq_u32 {s.w}, 3
        s_cselect_b32 {so[2]}, {WS_SIZE}, {so[2]}
        s_cselect_b32 {s.t0}, {s.fs}, 0
        s_cmp_ge_u32 {s.t0}, 6
        s_cselect_b32 {so[1]}, {WS_SIZE}, {so[1]}
        s_waitcnt lgkmcnt(0)""")
        for i in range(3):
            for mt in range(4):
                acc = s.acc1[16*i+4*mt:16*i+4*mt+4]; mp = mm[(mt//2)*2:(mt//2)*2+2]; e = mt % 2
                for h in (0, 2):
                    A(f"v_pk_fma_f32 {acc[h:h+2]}, {s.accc[4*i+h:4*i+h+2]}, {mp}, {acc[h:h+2]} op_sel:[0,{e},0] op_sel_hi:[1,{e},1]")
                for h in range(2): A(f"v_cvt_pk_bf16_f32 {P[8*i+2*mt+h]}, {acc[2*h]}, {acc[2*h+1]}")
                for h in range(2): A(f"v_pk_max_i16 {P[8*i+2*mt+h]}, {P[8*i+2*mt+h]}, 0")
            for M in range(2):
                Q = P[8*i+4*M:8*i+4*M+4]
                A(f"v_permlane16_swap_b32 {Q[0]}, {Q[2]}\n v_permlane16_swap_b32 {Q[1]}, {Q[3]}")
                A(f"buffer_store_dwordx4 {Q}, {s.l16}, {s.sws}, {so[i]} offen offset:{1024*M} {stflag}")
        s.vfree('g1m', '_ad', 'g1P', 'acc1', 'accc', 'g1wa', 'g1xa', 'g1vo'); s.afree('ones', 'xf', 'wf'); s.sfree('_so', 'sox', 'sow', 'shift')

    def b_setup(s):
        A = s.A; s.v('b_ga'); s.v('b_ua'); s.v('b_wo'); s.v('b_wa'); s.v('b_lin'); s.v('b_st'); t = s.v('_t'); u = s.v('_u')
        A(f"""v_lshrrev_b32 {t}, 4, {s.l}
        v_xor_b32 {t}, {t}, {s.l}
        v_and_b32 {t}, 1, {t}
        v_lshrrev_b32 {u}, 1, {s.l}
        v_lshlrev_b32 {s.b_ga}, 13, {u}
        v_lshl_add_u32 {s.b_ga}, {t}, 4, {s.b_ga}
        v_lshlrev_b32 {s.b_st}, 5, {u}
        v_lshl_add_u32 {s.b_st}, {t}, 4, {s.b_st}
        s_lshr_b32 {s.t0}, {s.w}, 1
        v_lshrrev_b32 {t}, 3, {s.n}
        v_xor_b32 {t}, {s.t0}, {t}
        v_lshlrev_b32 {t}, 4, {t}
        v_lshl_add_u32 {t}, {s.n}, 5, {t}
        v_lshl_add_u32 {t}, {s.q}, 11, {t}
        s_and_b32 {s.t0}, {s.w}, 1
        s_lshl_b32 {s.t0}, {s.t0}, 3
        s_add_u32 {s.t0}, {s.t0}, {L_U}
        v_add_u32 {s.b_ua}, {s.t0}, {t}
        v_mul_u32_u24 {s.b_wo}, 4112, v0
        v_lshlrev_b32 {t}, 4, {s.n}
        v_lshl_add_u32 {t}, {s.q}, 10, {t}
        s_lshl_b32 {s.t0}, {s.w}, 2
        s_add_u32 {s.t0}, {s.t0}, {L_E}
        v_add_u32 {s.b_wa}, {s.t0}, {t}
        s_lshl_b32 {s.t0}, {s.w}, 11
        s_add_u32 {s.t0}, {s.t0}, {L_U}
        v_add_u32 {s.b_lin}, {s.t0}, {s.l16}""")
        s.vfree('_t', '_u')
    def b_wload(s):
        A = s.A; W = s.v('b_wraw', 8)
        A(f"""s_mul_i32 {s.t0}, {s.xcd}, 514
        s_lshl_b32 {s.t1}, {s.j}, 4
        s_add_u32 {s.t0}, {s.t0}, {s.t1}
        s_add_u32 {s.t0}, {s.t0}, 2
        buffer_load_dwordx4 {W[0:4]}, {s.b_wo}, {s.swr}, {s.t0} offen
        buffer_load_dwordx4 {W[4:8]}, {s.b_wo}, {s.swi}, {s.t0} offen""")
    def b_wstage(s):
        A = s.A; W = s.b_wraw; t = s.v('_t')
        A(f"v_lshlrev_b32 {t}, 4, v0\n v_add_u32 {t}, {L_E}, {t}\n ds_write_b128 {t}, {W[0:4]}\n ds_write_b128 {t}, {W[4:8]} offset:4096")
        s.vfree('_t')
    def b_wread(s):
        A = s.A; W = s.b_wraw; X = s.v('b_W', 16)
        for x in range(2):
            for h in range(2): A(f"ds_read2st64_b32 {W[4*x+2*h:4*x+2*h+2]}, {s.b_wa} offset0:{16*x+2*h} offset1:{16*x+2*h+1}")
        A("s_waitcnt lgkmcnt(0)")
        for x in range(2):
            for r in range(4): A(f"v_lshlrev_b32 {X[4*x+r]}, 16, {W[4*x+r]}\n v_and_b32 {X[8+4*x+r]}, 0xffff0000, {W[4*x+r]}")
        s.vfree('b_wraw', 'b_wo', 'b_wa')
    def b_gather(s, ldflag):
        A = s.A
        A(f"""s_lshl_b32 {s.t0}, {s.w}, 11
        s_add_u32 m0, {s.t0}, {L_U}
        s_lshl_b32 {s.t0}, {s.w}, 9
        s_add_u32 {s.t0}, {s.t0}, {s.xcd}
        s_lshl_b32 {s.t0}, {s.t0}, 5
        s_add_u32 {s.t0}, {s.t0}, {s.j}
        s_lshl_b32 {s.t0}, {s.t0}, 5
        s_add_u32 {s.t1}, {s.t0}, {32*8192-1024}
        buffer_load_dwordx4 {s.b_ga}, {s.sws}, {s.t0} offen {ldflag} lds
        buffer_load_dwordx4 {s.b_ga}, {s.sws}, {s.t1} offen offset:1024 {ldflag} lds""")
        s.vfree('b_ga')
    def rd_pairs(s, F, addr, offs):
        A = s.A
        for pos, c in enumerate((0, 2, 1, 3)):
            ad = addr[c] if addr.n == 4 else addr
            A(f"ds_read_b64 {F[2*pos:2*pos+2]}, {ad} offset:{offs[c]}")
        A(f"s_waitcnt lgkmcnt(0)\n v_swap_b32 {F[1]}, {F[4]}\n v_swap_b32 {F[3]}, {F[6]}")
    def b_main(s):
        A = s.A; F = s.v('bF', 8); D = [[s.v(f'bD{i}{x}', 4) for x in 'ri'] for i in range(2)]; tmp = s.v('btmp', 4)
        U = [F[0:4], F[4:8]]
        s.rd_pairs(F, s.b_ua, [512*c for c in range(4)])
        stages = [(True, s.FWr, s.FWi), (False, s.FWr, s.FWi), (True, s.IVr, s.IVi), (False, s.IVr, s.IVi)]
        for k, (dataA, cr, ci) in enumerate(stages):
            for i in range(2):
                for x, cc in enumerate((cr, ci)):
                    A(f"{M16} {D[i][x]}, {U[i]}, {cc}, 0" if dataA else f"{M16} {D[i][x]}, {cc}, {U[i]}, 0")
            for i in range(2):
                if k == 0: s.cmul(D[i][0], D[i][1], D[i][0], D[i][1], s.T256c, s.T256s, tmp, False)
                if k == 1: s.cmul(D[i][0], D[i][1], D[i][0], D[i][1], s.b_W[8*i:8*i+4], s.b_W[8*i+4:8*i+8], tmp, True)
                if k == 2: s.cmul(D[i][0], D[i][1], D[i][0], D[i][1], s.T256c, s.T256s, tmp, True)
                for c in range(4):
                    dst = U[i][c] if k < 3 else F[2*c+i]
                    A(f"v_cvt_pk_bf16_f32 {dst}, {D[i][0][c]}, {D[i][1][c]}")
        for c in range(4): A(f"ds_write_b64 {s.b_ua}, {F[2*c:2*c+2]} offset:{512*c}")
        s.vfree('bD0r', 'bD0i', 'bD1r', 'bD1i', 'btmp', 'b_W', 'b_ua', 'T256c', 'T256s')
    def b_store(s, stflag):
        A = s.A; F = s.bF
        for t in range(2): A(f"ds_read_b128 {F[4*t:4*t+4]}, {s.b_lin} offset:{1024*t}")
        A(f"s_lshl_b32 {s.t0}, s2, 13\n s_lshl_b32 {s.t1}, {s.w}, 11\n s_add_u32 {s.t0}, {s.t0}, {s.t1}\n s_add_u32 {s.t0}, {s.t0}, {WS_Y1}")
        for t in range(2):
            A(f"s_waitcnt lgkmcnt({1-t})\n buffer_store_dwordx4 {F[4*t:4*t+4]}, {s.b_st}, {s.sws}, {s.t0} offen offset:{1024*t} {stflag}")
        s.vfree('bF', 'b_lin', 'b_st')

    def g2_setup(s):
        A = s.A; vo = s.v('g2vo', 4); ra = s.v('g2ra', 4); t = s.v('_t'); u = s.v('_u'); s.sg('sw2o')
        if not hasattr(s, 'm0b'): s.sg('m0b'); A(f"s_lshl_b32 {s.m0b}, {s.w}, 13")
        A(f"""v_and_b32 {t}, 1, {s.q}
        v_lshlrev_b32 {t}, 2, {t}
        v_xor_b32 {t}, {t}, {s.l}
        v_and_b32 {t}, 7, {t}
        v_lshrrev_b32 {u}, 3, {s.l}
        v_lshlrev_b32 {u}, 10, {u}
        v_lshl_add_u32 {vo[0]}, {t}, 4, {u}""")
        for z in range(1, 4): A(f"v_add_u32 {vo[z]}, {z*(8192-1024)}, {vo[0]}")
        A(f"""s_mul_i32 {s.sw2o}, {s.w}, {352*1024}
        s_lshl_b32 {s.t0}, {s.fs}, 7
        s_add_u32 {s.sw2o}, {s.sw2o}, {s.t0}
        v_lshrrev_b32 {t}, 5, {s.l}
        v_bfe_u32 {u}, {s.l}, 2, 2
        v_lshl_add_u32 {t}, {t}, 3, {u}
        v_lshlrev_b32 {t}, 7, {t}
        v_bfe_u32 {u}, {s.l}, 3, 1
        v_lshl_add_u32 {t}, {u}, 6, {t}
        v_and_b32 {u}, 1, {s.q}
        v_lshl_add_u32 {t}, {u}, 5, {t}
        v_and_b32 {u}, 3, {s.l}
        v_lshl_add_u32 {t}, {u}, 3, {t}
        v_add_u32 {ra[0]}, {s.m0b}, {t}
        v_xor_b32 {ra[1]}, 64, {ra[0]}
        v_add_u32 {ra[2]}, 65536, {ra[0]}
        v_add_u32 {ra[3]}, 65536, {ra[1]}""")
        s.vfree('_t', '_u')
    def g2_wdma(s, g, slot):
        o = []
        for hf in range(2 if g < 5 else 1):
            o.append(f"s_add_u32 m0, {s.m0b}, {slot*32768 + hf*4096}")
            o.append(f"s_add_u32 {s.t1}, {s.sw2o}, {(g*64 + hf*32)*1024}")
            for z in range(4): o.append(f"buffer_load_dwordx4 {s.g2vo[z]}, {s.sw2}, {s.t1} offen offset:{1024*z} lds")
        return o
    def g2_wread(s, g, slot):
        o = []
        for ks in range(4 if g < 5 else 2):
            step = 4*g + ks
            for nt in range(2):
                for i in range(2):
                    o.append(f"ds_read_b64_tr_b16 {s.w2f[8*step+4*nt+2*i:8*step+4*nt+2*i+2]}, {s.g2ra[2*(slot//2)+nt]} offset:{(slot%2)*32768 + ks*2048 + i*512}")
        return o
    def g2_hsrd(s):
        A = s.A; r = s.sg('sh', 4, 4)
        A(f"""s_mul_i32 {s.t0}, {s.rb}, 86
        s_mul_i32 {s.t1}, {s.w}, 22
        s_add_u32 {s.t0}, {s.t0}, {s.t1}
        s_lshl_b32 {s.t0}, {s.t0}, 11
        s_add_u32 {s.t0}, {s.t0}, {WS_H}
        s_add_u32 {r[0]}, s20, {s.t0}
        s_addc_u32 {r[1]}, s21, 0
        s_cmp_eq_u32 {s.w}, 3
        s_cselect_b32 {r[2]}, 20, 22
        s_lshl_b32 {r[2]}, {r[2]}, 11
        s_mov_b32 {r[3]}, 0x20000""")
        so = s.sg('hso', 11)
        for i in range(11): A(f"s_mov_b32 {so[i]}, {4096*i}")
    NH = 16
    def g2_hload(s, idx, ldflag):
        mt, i = divmod(idx, 22); sl = idx % s.NH
        return f"buffer_load_dwordx4 {s.hf[4*sl:4*sl+4]}, {s.l16}, {s.sh}, {s.hso[i//2]} offen offset:{(i%2)*2048 + mt*1024} {ldflag}"
    def g2_red_setup(s):
        A = s.A; s.v('g2rw'); s.v('g2rr'); s.v('g2st'); t = s.v('_t'); u = s.v('_u')
        A(f"""v_and_b32 {t}, 31, {s.l}
        v_mul_u32_u24 {t}, 272, {t}
        v_lshrrev_b32 {u}, 5, {s.l}
        v_lshl_add_u32 {t}, {u}, 4, {t}
        s_mul_i32 {s.t0}, {s.w}, {RED_S}
        v_add_u32 {s.g2rw}, {s.t0}, {t}
        v_lshrrev_b32 {t}, 3, {s.l}
        v_and_b32 {u}, 7, {s.l}
        v_lshlrev_b32 {s.g2st}, 10, {t}
        v_lshl_add_u32 {s.g2st}, {u}, 4, {s.g2st}
        v_mul_u32_u24 {t}, 272, {t}
        v_lshl_add_u32 {t}, {u}, 5, {t}
        s_mul_i32 {s.t0}, {s.w}, {8*272}
        v_add_u32 {s.g2rr}, {s.t0}, {t}""")
        s.vfree('_t', '_u')
    def g2_red_write(s, mt):
        return [f"ds_write_b128 {s.g2rw}, {s.acc2[32*mt+4*k:32*mt+4*k+4]} offset:{mt*4*RED_S + 32*k}" for k in range(8)]
    def g2_red_read(s, mt):
        return [f"ds_read_b128 {s.acc2[32*mt+4*k:32*mt+4*k+4]}, {s.g2rr} offset:{mt*4*RED_S + (k//2)*RED_S + (k%2)*16}" for k in range(8)]
    def g2_red_fin(s, mt, stflag):
        a = s.acc2[32*mt:32*mt+32]; o = []
        for h in range(0, 8, 2): o.append(f"v_pk_add_f32 {a[h:h+2]}, {a[h:h+2]}, {a[8+h:10+h]}")
        for h in range(0, 8, 2): o.append(f"v_pk_add_f32 {a[16+h:18+h]}, {a[16+h:18+h]}, {a[24+h:26+h]}")
        for h in range(0, 8, 2): o.append(f"v_pk_add_f32 {a[h:h+2]}, {a[h:h+2]}, {a[16+h:18+h]}")
        for c in range(4): o.append(f"v_cvt_pk_bf16_f32 {a[8+c]}, {a[2*c]}, {a[2*c+1]}")
        o += [f"s_lshl_b32 {s.t0}, {s.w}, 5", f"s_add_u32 {s.t0}, {s.t0}, {s.rb}", f"s_lshl_b32 {s.t0}, {s.t0}, 6", f"s_add_u32 {s.t0}, {s.t0}, {s.fs}",
              f"s_lshl_b32 {s.t0}, {s.t0}, 7", f"s_add_u32 {s.t0}, {s.t0}, {WS_O + mt*4*262144}",
              f"buffer_store_dwordx4 {a[8:12]}, {s.g2st}, {s.sws}, {s.t0} offen {stflag}"]
        return o

    def c_setup(s):
        A = s.A; s.v('c_ga'); s.v('c_ua'); s.v('c_ew'); s.v('c_xo'); t = s.v('_t'); u = s.v('_u')
        if not hasattr(s, 'mq0'): s.sg('mq0', 2); A(f"s_mov_b64 {s.mq0}, 0xffff")
        A(f"""v_lshrrev_b32 {t}, 1, {s.l}
        v_lshlrev_b32 {t}, 16, {t}
        v_and_b32 {u}, 1, {s.l}
        v_lshl_add_u32 {s.c_ga}, {u}, 4, {t}
        v_and_b32 {t}, 31, {s.l}
        v_lshrrev_b32 {u}, 5, {s.l}
        v_lshlrev_b32 {t}, 3, {t}
        v_lshl_add_u32 {t}, {u}, 12, {t}
        s_lshl_b32 {s.t0}, {s.w}, 8
        s_add_u32 {s.t0}, {s.t0}, {L_U}
        v_add_u32 {s.c_ua}, {s.t0}, {t}
        v_mul_u32_u24 {u}, {EH}, {u}
        v_lshl_add_u32 {u}, {s.n}, 5, {u}
        v_and_b32 {t}, 1, {s.q}
        v_mul_u32_u24 {t}, {33*16}, {t}
        s_mul_i32 {s.t0}, {s.w}, {66*16}
        s_add_u32 {s.t0}, {s.t0}, {L_E}
        v_add3_u32 {s.c_ew}, {s.t0}, {t}, {u}
        v_lshlrev_b32 {t}, 3, {s.q}
        v_lshl_add_u32 {s.c_xo}, {s.n}, 5, {t}""")
        s.vfree('_t', '_u')
        s.e_addr('c_er', True)
    def c_gather(s, ldflag):
        A = s.A
        A(f"""s_lshl_b32 {s.t0}, {s.w}, 11
        s_add_u32 m0, {s.t0}, {L_U}
        s_lshl_b32 {s.t0}, {s.w}, 14
        s_lshl_b32 {s.t1}, {s.p}, 5
        s_add_u32 {s.t0}, {s.t0}, {s.t1}
        s_add_u32 {s.t0}, {s.t0}, {WS_Y1}
        s_add_u32 {s.t1}, {s.t0}, {8192-1024}
        buffer_load_dwordx4 {s.c_ga}, {s.sws}, {s.t0} offen {ldflag} lds
        buffer_load_dwordx4 {s.c_ga}, {s.sws}, {s.t1} offen offset:1024 {ldflag} lds""")
        s.vfree('c_ga')
    def c_part1(s):
        A = s.A; F = s.v('cF', 8); D = [[s.v(f'cD{i}{x}', 4) for x in 'ri'] for i in range(2)]
        s.rd_pairs(F, s.c_ua, [1024*c for c in range(4)])
        for i in range(2): A(f"{M16} {D[i][0]}, {s.C3r}, {F[4*i:4*i+4]}, 0\n {M16} {D[i][1]}, {s.C3i}, {F[4*i:4*i+4]}, 0")
        for i in range(2):
            for c in range(4): A(f"v_cvt_pk_bf16_f32 {F[4*i+c]}, {D[i][0][c]}, {D[i][1][c]}")
            A(f"ds_write_b128 {s.c_ew}, {F[4*i:4*i+4]} offset:{16*i}")
        s.vfree('c_ua', 'c_ew', 'C3r', 'C3i')
    def c_part2(s):
        A = s.A; F = s.cF; D = [[s.cD0r, s.cD0i], [s.cD1r, s.cD1i]]
        Sp = [[s.v(f'cS{i}{x}', 4) for x in 'ri'] for i in range(2)]; tmp = s.v('ctmp', 4)
        s.rd_pairs(F, s.c_er, [0]*4)
        for i in range(2):
            U = F[4*i:4*i+4]
            A(f"{M16} {D[i][0]}, {U}, {s.CGr}, 0\n {M16} {D[i][1]}, {U}, {s.CGi}, 0\n {M16} {Sp[i][0]}, {U}, {s.SCr}, 0\n {M16} {Sp[i][1]}, {U}, {s.SCi}, 0")
        for i in range(2):
            for x in range(2): A(f"v_cndmask_b32 {D[i][x][0]}, {D[i][x][0]}, {Sp[i][x][0]}, {s.mq0}")
            s.cmul(D[i][0], D[i][1], D[i][0], D[i][1], s.T512c, s.T512s, tmp, True)
            for c in range(4): A(f"v_cvt_pk_bf16_f32 {F[4*i+c]}, {D[i][0][c]}, {D[i][1][c]}")
        for i in range(2):
            U = F[4*i:4*i+4]
            A(f"{M16} {D[i][0]}, {U}, {s.C1x}, 0\n {M16} {D[i][1]}, {U}, {s.C1y}, 0")
        s.vfree('cS0r', 'cS0i', 'cS1r', 'cS1i', 'ctmp', 'c_er', 'CGr', 'CGi', 'SCr', 'SCi', 'cF')
    def rowoff(s, dst, extra):
        s.A(f"""s_lshl_b32 {dst[0]}, {s.w}, 9
        s_add_u32 {dst[0]}, {dst[0]}, {s.p}
        s_lshl_b32 {dst[0]}, {dst[0]}, 10""")
        if extra: s.A(f"s_add_u32 {dst[0]}, {dst[0]}, {extra}")
        s.A(f"s_add_u32 {dst[1]}, {dst[0]}, 262144")
    def f_oload(s, ldflag):
        A = s.A; O = s.v('fO', 8); so = s.sg('_so', 2); s.rowoff(so, WS_O)
        for i in range(2):
            for y in range(2): A(f"buffer_load_dwordx2 {O[4*i+2*y:4*i+2*y+2]}, {s.c_xo}, {s.sws}, {so[i]} offen offset:{512*y} {ldflag}")
        s.sfree('_so')
    def f_xread(s):
        A = s.A; X = s.v('fX', 8); t = s.v('_t')
        A(f"s_lshl_b32 {s.t0}, {s.w}, 11\n s_add_u32 {s.t0}, {s.t0}, {L_XR}\n v_add_u32 {t}, {s.t0}, {s.c_xo}")
        for i in range(2):
            for y in range(2): A(f"ds_read_b64 {X[4*i+2*y:4*i+2*y+2]}, {t} offset:{1024*i+512*y}")
        s.vfree('_t')
    def f_final(s, waito):
        A = s.A; D = [[s.cD0r, s.cD0i], [s.cD1r, s.cD1i]]; O = s.fO; X = s.fX
        xf = s.v('fxf', 16); of = s.v('fof', 16); e = s.v('fe', 16); so = s.sg('_so', 2); nr = s.v('fnr', 2)
        s.rowoff(so, 0)
        A("s_waitcnt lgkmcnt(0)")
        for k in range(8): A(f"v_lshlrev_b32 {xf[2*k]}, 16, {X[k]}\n v_and_b32 {xf[2*k+1]}, 0xffff0000, {X[k]}")
        for i in range(2):
            A(f"v_mov_b32 {nr[i]}, {fl(-1.4426950408889634)}\n v_mul_f32 {nr[i]}, {s.r01[i]}, {nr[i]}")
            for y in range(2):
                for h in (0, 2): A(f"v_pk_mul_f32 {D[i][y][h:h+2]}, {D[i][y][h:h+2]}, {s.r01} op_sel:[0,{i}] op_sel_hi:[1,{i}]")
        A(waito)
        for g in range(4):
            i, y = divmod(g, 2); b = 4*g
            for k in range(2): A(f"v_lshlrev_b32 {of[b+2*k]}, 16, {O[2*g+k]}\n v_and_b32 {of[b+2*k+1]}, 0xffff0000, {O[2*g+k]}")
            for h in (0, 2): A(f"v_pk_mul_f32 {e[b+h:b+h+2]}, {of[b+h:b+h+2]}, {nr} op_sel:[0,{i}] op_sel_hi:[1,{i}]")
            for c in range(4): A(f"v_exp_f32 {e[b+c]}, {e[b+c]}")
            for h in (0, 2): A(f"v_pk_mul_f32 {of[b+h:b+h+2]}, {of[b+h:b+h+2]}, {D[i][y][h:h+2]}")
            for h in (0, 2): A(f"v_pk_add_f32 {e[b+h:b+h+2]}, {e[b+h:b+h+2]}, 1.0 op_sel_hi:[1,0]")
            for c in range(4): A(f"v_rcp_f32 {e[b+c]}, {e[b+c]}")
            for h in (0, 2): A(f"v_pk_fma_f32 {of[b+h:b+h+2]}, {of[b+h:b+h+2]}, {e[b+h:b+h+2]}, {xf[b+h:b+h+2]}")
            for k in range(2): A(f"v_cvt_pk_bf16_f32 {O[2*g+k]}, {of[b+2*k]}, {of[b+2*k+1]}")
            A(f"buffer_store_dwordx2 {O[2*g:2*g+2]}, {s.c_xo}, {s.sout}, {so[i]} offen offset:{512*y}")
        s.sfree('_so')
    def text(s):
        body = s.A.finish()
        head = f".globl {s.name}\n.p2align 8\n.type {s.name},@function\n{s.name}:\n"
        nv = 256 + s.AC.hw if s.AC.hw else s.V.hw
        acc = 256 if s.AC.hw else -(-s.V.hw // 4) * 4
        desc = f""".amdhsa_kernel {s.name}
  .amdhsa_next_free_vgpr {nv}
  .amdhsa_next_free_sgpr 102
  .amdhsa_accum_offset {acc}
  .amdhsa_group_segment_fixed_size 0
  .amdhsa_kernarg_size 72
  .amdhsa_user_sgpr_count 2
  .amdhsa_user_sgpr_kernarg_segment_ptr 1
  .amdhsa_system_sgpr_workgroup_id_x 1
.end_amdhsa_kernel
"""
        return head + body, desc
```

```python
import sys
from comp import *
def common(k):
    k.prologue(); k.v('l16'); k.A(f"v_lshlrev_b32 {k.l16}, 4, {k.l}")
def k1():
    k = K("k1_kernel"); A = k.A; common(k)
    k.g1_setup_dma()
    A("s_waitcnt lgkmcnt(0)")
    k.srd('sx', 'x', 2097152 + 2048, -2048); k.srd('sw1', 'w1', 1409024); k.srd('sws', 'ws', WS_SIZE)
    k.xr_issue()
    for x in k.g1_dma(0): A(x)
    k.base_kn(); k.const_32(True, False); k.const_T('T512', 512); k.const_F16(True, False, False); k.const_SA(); k.const_A3(); k.a_setup()
    for x in k.g1_dma(1): A(x)
    k.a_part1("s_waitcnt vmcnt(16)")
    for x in k.g1_dma(2): A(x)
    A("s_waitcnt lgkmcnt(0)\n s_barrier")
    k.a_part2("")
    t = k.v('_t', 2); u = k.v('_u')
    A(f"""v_mov_b32 {t[0]}, {k.r01[0]}
    v_mov_b32 {t[1]}, {k.r01[1]}
    v_mov_b32 {u}, 0
    s_lshl_b32 {k.t0}, s2, 2
    s_add_u32 {k.t0}, {k.t0}, {k.w}
    s_lshl_b32 {k.t0}, {k.t0}, 3
    s_add_u32 {k.t0}, {k.t0}, {WS_R}
    buffer_store_dwordx2 {t}, {u}, {k.sws}, {k.t0} offen""")
    k.vfree('_t', '_u')
    for x in k.g1_dma(3): A(x)
    k.g1_setup_rd()
    vm = [27, 19, 19, 16, 16, 16, 8, 0]
    extra = {2*st+1: k.g1_dma(st+4) for st in range(4)}
    A(f"s_cmp_eq_u32 {k.w}, 3\n s_cbranch_scc1 {k.lab('w3')}")
    k.g1_main(False, vm, extra)
    A(f"s_branch {k.lab('g1done')}\n {k.lab('w3')}:")
    k.g1_main(True, vm, extra)
    A(f"{k.lab('g1done')}:\n s_nop 7")
    k.g1_epilogue("")
    k.end(); return k
def k2():
    k = K("k2_kernel"); A = k.A; common(k)
    k.b_setup(); k.g2_setup()
    A("s_waitcnt lgkmcnt(0)")
    k.srd('swr', 'wr', 2048*514); k.srd('swi', 'wi', 2048*514); k.srd('sw2', 'w2', 1409024); k.srd('sws', 'ws', WS_SIZE)
    k.b_wload(); k.b_gather("")
    for g in range(4):
        for x in k.g2_wdma(g, g): A(x)
    k.base_kn(); k.const_T('T256', 256); k.const_F16(True, True, False)
    k.g2_hsrd(); k.g2_red_setup()
    k.a('w2f', 176); k.a('hf', 4*k.NH); k.v('acc2', 64)
    A("s_waitcnt vmcnt(32)")
    k.b_wstage()
    A("s_waitcnt lgkmcnt(0)\n s_barrier")
    k.b_wread(); k.b_main()
    A("s_waitcnt lgkmcnt(0)\n s_barrier")
    k.b_store("")
    for g in range(2):
        A(f"s_waitcnt vmcnt({26 if g == 0 else 26})")
        for x in k.g2_wread(g, g): A(x)
        A("s_waitcnt lgkmcnt(0)")
        for x in k.g2_wdma(4+g, g): A(x)
    for i in range(k.NH): A(k.g2_hload(i, ""))
    for g, n in ((2, 38), (3, 30), (4, 20), (5, 16)):
        A(f"s_waitcnt vmcnt({n})")
        for x in k.g2_wread(g, g % 4): A(x)
    A("s_waitcnt lgkmcnt(0)\n s_barrier")
    for idx in range(44):
        mt, i = divmod(idx, 22); sl = idx % k.NH
        out = min(44, idx + k.NH) - idx - 1
        if idx > 34: out += 1
        A(f"s_waitcnt vmcnt({out})")
        for nt in range(2):
            acc = k.acc2[32*mt+16*nt:32*mt+16*nt+16]
            A(f"{M32} {acc}, {k.w2f[8*i+4*nt:8*i+4*nt+4]}, {k.hf[4*sl:4*sl+4]}, {acc if i else 0}")
        if idx + k.NH < 44: A(k.g2_hload(idx + k.NH, ""))
        if 24 <= idx < 28:
            for x in k.g2_red_write(0)[2*(idx-24):2*(idx-24)+2]: A(x)
        if idx == 30:
            A("s_waitcnt lgkmcnt(0)\n s_barrier")
            for x in k.g2_red_read(0): A(x)
        if idx == 34:
            A("s_waitcnt lgkmcnt(0)")
            for x in k.g2_red_fin(0, ""): A(x)
    for x in k.g2_red_write(1): A(x)
    A("s_waitcnt lgkmcnt(0)\n s_barrier")
    for x in k.g2_red_read(1): A(x)
    A("s_waitcnt lgkmcnt(0)")
    for x in k.g2_red_fin(1, ""): A(x)
    k.end(); return k
def k3():
    k = K("k3_kernel"); A = k.A; common(k)
    k.c_setup()
    A("s_waitcnt lgkmcnt(0)")
    k.srd('sx', 'x', 2097152 + 2048, -2048); k.srd('sout', 'out', 2097152); k.srd('sws', 'ws', WS_SIZE)
    k.c_gather(""); k.xr_issue(); k.f_oload("")
    r = k.sg('r01', 2)
    A(f"""s_lshl_b32 {k.t0}, s2, 2
    s_add_u32 {k.t0}, {k.t0}, {k.w}
    s_lshl_b32 {k.t0}, {k.t0}, 3
    s_add_u32 {k.t0}, {k.t0}, {WS_R}
    s_load_dwordx2 {r}, s[20:21], {k.t0}""")
    k.base_kn(); k.const_C3(); k.const_32(False, True); k.const_T('T512', 512); k.const_F16(False, False, True); k.const_SC()
    A("s_waitcnt vmcnt(4) lgkmcnt(0)\n s_barrier")
    k.c_part1(); k.f_xread()
    A("s_waitcnt lgkmcnt(0)\n s_barrier")
    k.c_part2(); k.f_final("s_waitcnt vmcnt(0)")
    k.end(); return k
ks = [k1(), k2(), k3()]
o = open("recurrent_scan__spectral_gfnet__dense_activation_relu__prompt.s.ref").read().split("; Override launch")[0]
for k in ks: o += f"; @launch kernel={k.name} grid=(256,1,1) block=(256,1,1) lds={L_END}\n"
o += '.amdgcn_target "amdgcn-amd-amdhsa--gfx950"\n.text\n'
tx = [k.text() for k in ks]
for b, d in tx: o += b
o += '.section .rodata,"a"\n'
for b, d in tx: o += ".p2align 6\n" + d
open(sys.argv[1] if len(sys.argv) > 1 else "v1.s", "w").write(o)
for k in ks: print(k.name, "v", k.V.hw, "a", k.AC.hw, "s", k.S.hw, "instrs", len(k.A.lines), "nops", k.A.nops)
```

```python
import re
REG = re.compile(r'(?<![\w.])(-?\|?)([vas])(?:\[(\d+):(\d+)\]|(\d+))(?![\w])')
TRANS = ('v_exp_f32', 'v_log_f32', 'v_rcp_f32', 'v_rsq_f32', 'v_sqrt_f32', 'v_sin_f32', 'v_cos_f32')
def regs_of(tok):
    out = set()
    for m in REG.finditer(tok):
        k = m.group(2)
        if m.group(3) is not None: lo, hi = int(m.group(3)), int(m.group(4))
        else: lo = hi = int(m.group(5))
        out |= {(k, i) for i in range(lo, hi + 1)}
    t = tok.strip()
    if t in ('vcc', 'vcc_lo', 'vcc_hi'): out.add(('x', 'vcc'))
    if t in ('exec', 'exec_lo', 'exec_hi'): out.add(('x', 'exec'))
    if t == 'm0': out.add(('x', 'm0'))
    return out
class Ins:
    def __init__(self, text):
        self.text = text
        t = text.split(';')[0].strip()
        self.label = t.endswith(':'); self.directive = t.startswith('.') and not self.label
        self.empty = (t == '')
        self.op = t.split()[0] if t else ''
        self.r = set(); self.w = set(); self.kind = 'other'; self.passes = 0
        self.A = self.B = self.C = set(); self.sdata = set()
        if self.label or self.directive or self.empty: return
        rest = t[len(self.op):].strip()
        ops = [x.strip() for x in rest.split(',')] if rest else []
        mods = ''
        if ops:
            j = ','.join(ops); m = re.search(r'\s+(?=[a-z_0-9]+(:|\b))', j)
            parts = re.split(r'\s+', j, maxsplit=1)
            ops = parts[0].split(','); mods = parts[1] if len(parts) > 1 else ''
        self.mods = mods
        R = [regs_of(x) for x in ops]; op = self.op
        allr = lambda lst: set().union(*lst) if lst else set()
        if op.startswith('v_mfma'):
            self.kind = 'mfma'; self.passes = 8 if '32x32' in op else 4
            self.w = R[0]; self.A, self.B, self.C = R[1], R[2], R[3]; self.r = R[1] | R[2] | R[3]
        elif op.startswith('v_'):
            self.kind = 'valu'
            if op.startswith(('v_swap', 'v_permlane16_swap', 'v_permlane32_swap')): self.w = R[0] | R[1]; self.r = R[0] | R[1]
            elif op.startswith(('v_add_co', 'v_sub_co', 'v_addc_co')): self.w = R[0] | R[1]; self.r = allr(R[2:])
            elif op == 'v_nop': pass
            else:
                self.w = R[0]; self.r = allr(R[1:])
                if op.startswith(('v_fmac', 'v_dot2c', 'v_writelane')) or 'dpp' in op: self.r |= R[0]
                if op.startswith('v_cndmask') and len(ops) == 3: self.r.add(('x', 'vcc'))
            self.trans = op.startswith(TRANS)
            self.dpp = ('dpp' in op) or ('row_' in mods) or ('quad_perm' in mods)
        elif op.startswith('ds_'):
            self.kind = 'ds'
            if op.startswith(('ds_read', 'ds_bpermute', 'ds_permute', 'ds_swizzle')) or '_rtn' in op: self.w = R[0]; self.r = allr(R[1:])
            else: self.r = allr(R)
        elif op.startswith(('buffer_', 'global_')):
            self.kind = 'vmem'
            lds = ('lds' in op) or re.search(r'\blds\b', mods) is not None
            if lds: self.r = allr(R) | {('x', 'm0')}; self.dma = True
            elif 'load' in op: self.w = R[0]; self.r = allr(R[1:])
            elif 'atomic' in op and 'sc0' in mods:
                self.w = R[0]; self.r = allr(R[1:]) if op.startswith('global') else allr(R)
            else:
                self.r = allr(R)
                if op.endswith(('x3', 'x4')): self.sdata = R[0] if op.startswith('buffer') else R[1]
        elif op.startswith('s_'):
            self.kind = 'salu'
            if op.startswith(('s_cmp', 's_waitcnt', 's_nop', 's_barrier', 's_cbranch', 's_branch', 's_endpgm', 's_sleep', 's_setprio', 's_bitcmp')): self.r = allr(R)
            else:
                self.w = R[0] if R else set(); self.r = allr(R[1:])
                if 'saveexec' in op: self.w = self.w | {('x', 'exec')}
    def states(self):
        if self.label or self.directive or self.empty: return 0
        if self.op == 's_nop': return int(self.text.split(';')[0].split()[1]) + 1
        return 1
def vonly(s): return {x for x in s if x[0] in 'va'}
def sonly(s): return {x for x in s if x[0] == 's' or x == ('x', 'vcc')}
def need(p, c):
    n = 0
    if p.kind == 'valu':
        vw = vonly(p.w); sw = sonly(p.w)
        if c.kind == 'mfma' and vw & c.r: n = max(n, 2)
        if c.kind == 'valu':
            if c.dpp and vw & c.r: n = max(n, 2)
            if c.op.startswith('v_permlane') and vw & c.r: n = max(n, 2)
            if c.op.startswith(('v_readlane', 'v_readfirstlane')) and vw & c.r: n = max(n, 1)
            if p.trans and not c.trans and vw & c.r: n = max(n, 1)
            if sw & c.r: n = max(n, 4 if c.op.startswith(('v_readlane', 'v_writelane')) else 2)
        if c.kind == 'vmem' and sw & c.r: n = max(n, 5)
        if p.op.startswith('v_dot') and vw & (c.r | c.w): n = max(n, 3)
        if ('x', 'exec') in p.w: n = max(n, 5)
    if p.kind == 'mfma':
        big = {4: 8, 8: 12}[p.passes]
        if c.kind == 'mfma':
            if p.w & (c.A | c.B): n = max(n, big)
            if p.w & c.C and not (p.w == c.C and p.passes == c.passes): n = max(n, big - 2)
            if p.w & c.w and not (p.w == c.w and p.passes == c.passes): n = max(n, big)
        elif c.kind in ('valu', 'vmem', 'ds'):
            if p.w & (c.r | c.w): n = max(n, big)
            if c.kind == 'valu' and p.C & c.w: n = max(n, p.passes - 1)
    if p.kind == 'salu' and ('x', 'm0') in p.w and c.kind == 'vmem' and ('x', 'm0') in c.r: n = max(n, 1)
    if p.kind == 'vmem' and p.sdata and p.sdata & c.w: n = max(n, 2)
    return n
class Asm:
    def __init__(self): self.lines = []; self.vmlog = []
    def __call__(self, text):
        if isinstance(text, (list, tuple)):
            for t in text: self(t)
            return
        for l in text.split('\n'):
            l = l.strip()
            if not l: continue
            if l.startswith('@wait'):
                toks = l.split()[1:]; lg = [t for t in toks if t.startswith('lgkm=')]; tags = [t for t in toks if not t.startswith('lgkm=')]
                out = 's_waitcnt'
                if tags:
                    for t in tags: assert t in self.vmlog, (t, self.vmlog)
                    last = max(i for i, t in enumerate(self.vmlog) if t in tags)
                    n = len(self.vmlog) - 1 - last
                    assert n <= 63, n
                    out += f' vmcnt({n})'
                if lg: out += f' lgkmcnt({lg[0][5:]})'
                self.lines.append(out + f' ; {" ".join(tags)}'); continue
            assert not (l.startswith('v_pk_') and re.search(r'op_sel:\[[0-9,]*1', l)), l
            if l.startswith(('buffer_', 'global_')):
                m = re.search(r';@(\w+)', l); self.vmlog.append(m.group(1) if m else '_')
            self.lines.append(l)
    def finish(self):
        out = []; nops = 0
        for l in self.lines:
            c = Ins(l)
            if c.kind != 'other' and not c.label:
                dist = 0; req = 0
                for p in reversed(out):
                    if dist >= 12: break
                    req = max(req, need(p, c) - dist)
                    dist += p.states()
                if req > 0:
                    out.append(Ins(f's_nop {req-1}')); nops += req
            out.append(c)
        self.nops = nops
        return '\n'.join(('' if (i.label or i.directive) else '    ') + i.text for i in out) + '\n'
class Regs:
    def __init__(self, kind, lo, hi): self.kind = kind; self.free = list(range(lo, hi)); self.names = {}; self.hw = lo
    def alloc(self, name, n=1, align=None):
        align = align or (1 if n == 1 else (2 if self.kind in 'va' else (4 if n >= 4 else 2)))
        fs = set(self.free)
        for b in self.free:
            if b % align == 0 and all((b + i) in fs for i in range(n)):
                for i in range(n): self.free.remove(b + i)
                assert name not in self.names, name
                self.names[name] = (b, n); self.hw = max(self.hw, b + n)
                return R(self.kind, b, n)
        raise RuntimeError(f"out of {self.kind} regs for {name} x{n}; have {self.names}")
    def release(self, *names):
        for name in names:
            b, n = self.names.pop(name); self.free = sorted(self.free + list(range(b, b + n)))
class R:
    def __init__(self, k, b, n): self.k, self.b, self.n = k, b, n
    def __getitem__(self, i):
        if isinstance(i, slice):
            lo = i.start or 0; hi = self.n if i.stop is None else i.stop
            assert 0 <= lo < hi <= self.n
            return R(self.k, self.b + lo, hi - lo)
        assert 0 <= i < self.n, (i, self.n)
        return R(self.k, self.b + i, 1)
    def __str__(self): return f"{self.k}{self.b}" if self.n == 1 else f"{self.k}[{self.b}:{self.b+self.n-1}]"
    __repr__ = __str__
    def __format__(self, spec): return str(self)
```

```python
from asmlib import *
import struct
def f2u(x): return struct.unpack('<I', struct.pack('<f', x))[0]
def hx(x): return f"0x{x & 0xffffffff:08x}"
def fl(x): return hx(f2u(x))
M16 = "v_mfma_f32_16x16x32_bf16"; M32 = "v_mfma_f32_32x32x16_bf16"
WS_X1 = 0; WS_Y1 = 2 << 20; WS_H = 4 << 20; WS_O = 10 << 20; WS_R = 12 << 20; WS_FLAG = 13 << 20; WS_SIZE = 14 << 20
L_RING = 0; L_XR = 131072; L_E = L_XR + 8192; EH = 4288; L_U = L_E + 8704; L_MEAN = L_U + 8192; L_END = L_MEAN + 256
RED_S = 8704

class K:
    def __init__(s, name):
        s.name = name; s.A = Asm(); s.V = Regs('v', 1, 256); s.AC = Regs('a', 0, 256); s.S = Regs('s', 22, 100); s.c = {}; s.uid = 0
    def v(s, name, n=1, align=None): r = s.V.alloc(name, n, align); setattr(s, name, r); return r
    def a(s, name, n=1, align=None): r = s.AC.alloc(name, n, align); setattr(s, name, r); return r
    def sg(s, name, n=1, align=None): r = s.S.alloc(name, n, align); setattr(s, name, r); return r
    def vfree(s, *n): s.V.release(*n)
    def afree(s, *n): s.AC.release(*n)
    def sfree(s, *n): s.S.release(*n)
    def lab(s, x): return f"L_{s.name}_{x}"

    def prologue(s):
        A = s.A
        s.stamp('start')
        A(f"""s_load_dwordx16 s[4:19], s[0:1], 0
        s_load_dwordx2 s[20:21], s[0:1], 64
        s_cmp_ge_u32 s2, 256
        s_cbranch_scc1 {s.lab('end')}""")
        s.v('l'); s.v('n'); s.v('q'); s.sg('w'); s.sg('rb'); s.sg('fs'); s.sg('p'); s.sg('t0'); s.sg('t1'); s.sg('xcd'); s.sg('j')
        A(f"""v_lshrrev_b32 {s.q}, 6, v0
        v_and_b32 {s.l}, 63, v0
        v_readfirstlane_b32 {s.w}, {s.q}
        v_and_b32 {s.n}, 15, v0
        v_lshrrev_b32 {s.q}, 4, {s.l}
        s_and_b32 {s.xcd}, s2, 7
        s_lshr_b32 {s.j}, s2, 3
        s_and_b32 {s.t0}, {s.j}, 3
        s_lshl_b32 {s.rb}, {s.xcd}, 2
        s_add_u32 {s.rb}, {s.rb}, {s.t0}
        s_lshr_b32 {s.fs}, s2, 5
        s_lshl_b32 {s.p}, {s.rb}, 3
        s_add_u32 {s.p}, {s.p}, {s.fs}""")
    PTR = dict(x=4, wr=6, wi=8, w1=12, w2=14, out=16, dbg=18, ws=20)
    def srd(s, name, ptr, size, bias=0):
        r = s.sg(name, 4, 4); b = s.PTR[ptr]; A = s.A
        if bias < 0: A(f"s_sub_u32 {r[0]}, s{b}, {-bias}\n s_subb_u32 {r[1]}, s{b+1}, 0")
        elif bias > 0: A(f"s_add_u32 {r[0]}, s{b}, {bias}\n s_addc_u32 {r[1]}, s{b+1}, 0")
        else: A(f"s_mov_b32 {r[0]}, s{b}\n s_mov_b32 {r[1]}, s{b+1}")
        A(f"s_mov_b32 {r[2]}, {size}\n s_mov_b32 {r[3]}, 0x20000")
        return r
    STAMPS = False
    def stamp(s, tag=''):
        if not s.STAMPS: return
        if not hasattr(s, 'stampn'): s.stampn = 0; s.tags = []
        if tag in s.tags: i = s.tags.index(tag)
        else: i = s.stampn; s.stampn += 1; s.tags.append(tag); s.sg(f'_stamp{i}', 2)
        s.A(f"s_memrealtime {getattr(s, f'_stamp{i}')}")
    def end(s, slot=0):
        if s.STAMPS:
            s.A("s_waitcnt vmcnt(0)"); s.stamp('end'); s.A("s_waitcnt lgkmcnt(0)")
            s.A(f"s_lshl_b32 {s.t0}, s2, 2\n s_add_u32 {s.t0}, {s.t0}, {s.w}\n s_lshl_b32 {s.t0}, {s.t0}, 7\n s_add_u32 {s.t0}, {s.t0}, {(32<<20) + slot*(1<<20)}\n v_mov_b32 v1, {s.t0}")
            for i in range(s.stampn):
                s.A(f"v_mov_b32 v2, {getattr(s, f'_stamp{i}')[0]}\n global_store_dword v1, v2, s[20:21] offset:{4*i}")
        s.A(f"{s.lab('end')}:\n s_endpgm")

    def base_kn(s):
        A = s.A; kn = s.v('kn', 4)
        A(f"""v_mul_u32_u24 {kn[0]}, {s.q}, {s.n}
        v_lshlrev_b32 {kn[0]}, 2, {kn[0]}
        v_cvt_f32_u32 {kn[3]}, {s.n}
        v_cvt_f32_u32 {kn[0]}, {kn[0]}
        v_add_f32 {kn[1]}, {kn[0]}, {kn[3]}
        v_add_f32 {kn[2]}, {kn[1]}, {kn[3]}
        v_add_f32 {kn[3]}, {kn[2]}, {kn[3]}""")
    def trig(s, co, si, src, scale):
        A = s.A
        for c in range(4): A(f"v_mul_f32 {si[c]}, {fl(scale)}, {src[c]}")
        for c in range(4): A(f"v_cos_f32 {co[c]}, {si[c]}")
        for c in range(4): A(f"v_sin_f32 {si[c]}, {si[c]}")
    def const_T(s, name, N):
        co = s.v(name + 'c', 4); si = s.v(name + 's', 4); s.trig(co, si, s.kn, 1.0 / N)
    def const_F16(s, fwd, inv, cg):
        A = s.A; co = s.v('_co', 4); si = s.v('_si', 4); s.trig(co, si, s.kn, 1.0 / 16)
        if fwd:
            s.v('FWr', 4); s.v('FWi', 4)
            for c in range(4): A(f"v_cvt_pk_bf16_f32 {s.FWr[c]}, {co[c]}, {si[c]}\n v_cvt_pk_bf16_f32 {s.FWi[c]}, -{si[c]}, {co[c]}")
        if inv:
            s.v('IVr', 4); s.v('IVi', 4)
            for c in range(4): A(f"v_cvt_pk_bf16_f32 {s.IVr[c]}, {co[c]}, -{si[c]}\n v_cvt_pk_bf16_f32 {s.IVi[c]}, {si[c]}, {co[c]}")
        if cg:
            s.v('CGr', 4); s.v('CGi', 4); m = s.v('_m')
            A(f"v_lshlrev_b32 {m}, 30, {s.q}\n v_and_b32 {m}, 0x80000000, {m}")
            for c in range(4):
                if inv: A(f"v_xor_b32 {s.CGr[c]}, {s.IVr[c]}, {m}\n v_xor_b32 {s.CGi[c]}, {s.IVi[c]}, {m}")
                else:
                    A(f"v_cvt_pk_bf16_f32 {s.CGr[c]}, {co[c]}, -{si[c]}\n v_cvt_pk_bf16_f32 {s.CGi[c]}, {si[c]}, {co[c]}")
                    A(f"v_xor_b32 {s.CGr[c]}, {s.CGr[c]}, {m}\n v_xor_b32 {s.CGi[c]}, {s.CGi[c]}, {m}")
            s.vfree('_m')
        s.vfree('_co', '_si')
    def const_32(s, a1, c1):
        A = s.A; co = s.v('_co', 4); si = s.v('_si', 4); s.trig(co, si, s.kn, 1.0 / 32); m = s.v('_m'); t = s.v('_t')
        if a1:
            s.v('B1r', 4); s.v('B1i', 4)
            A(f"""v_and_b32 {m}, 1, {s.n}
            v_mul_u32_u24 {m}, 0x10001, {m}
            v_lshlrev_b32 {m}, 15, {m}
            v_cmp_eq_u32 vcc, 0, {s.n}
            v_mov_b32 {t}, 0xbf803f80""")
            for h in range(2):
                A(f"""v_cvt_pk_bf16_f32 {s.B1r[h]}, {co[2*h]}, {co[2*h+1]}
                v_cvt_pk_bf16_f32 {s.B1i[h]}, -{si[2*h]}, -{si[2*h+1]}
                v_cndmask_b32 {s.B1i[h]}, {s.B1i[h]}, {t}, vcc
                v_xor_b32 {s.B1r[2+h]}, {s.B1r[h]}, {m}
                v_xor_b32 {s.B1i[2+h]}, {s.B1i[h]}, {m}""")
        if c1:
            s.v('C1x', 4); s.v('C1y', 4)
            A(f"""v_lshlrev_b32 {t}, 31, {s.n}
            v_xor_b32 {t}, 0xbf800000, {t}
            v_cmp_gt_u32 vcc, 16, {s.l}
            v_cndmask_b32 {si[0]}, {si[0]}, {t}, vcc""")
            for c in range(4):
                A(f"v_mul_f32 {co[c]}, {fl(2.0**-19)}, {co[c]}\n v_mul_f32 {si[c]}, {fl(2.0**-19)}, {si[c]}")
                A(f"v_cvt_pk_bf16_f32 {s.C1x[c]}, {co[c]}, -{si[c]}")
                if c % 2 == 0: A(f"v_mov_b32 {s.C1y[c]}, {s.C1x[c]}")
                else: A(f"v_xor_b32 {s.C1y[c]}, 0x80008000, {s.C1x[c]}")
        s.vfree('_co', '_si', '_m', '_t')
    def const_SA(s):
        A = s.A; co = s.v('_co', 4); si = s.v('_si', 4); m = s.v('_m'); t = s.v('_t'); s.v('SAr', 4); s.v('SAi', 4)
        A(f"""v_lshrrev_b32 {t}, 3, {s.n}
        v_lshl_add_u32 {m}, {s.n}, 1, {t}
        v_cmp_eq_u32 vcc, 0, {s.n}
        v_lshlrev_b32 {t}, 4, {t}
        v_cndmask_b32 {m}, {m}, 16, vcc
        v_mul_u32_u24 {co[0]}, {s.q}, {m}
        v_lshlrev_b32 {co[0]}, 2, {co[0]}
        v_cvt_f32_u32 {m}, {m}
        v_cvt_f32_u32 {co[0]}, {co[0]}
        v_add_f32 {co[1]}, {co[0]}, {m}
        v_add_f32 {co[2]}, {co[1]}, {m}
        v_add_f32 {co[3]}, {co[2]}, {m}
        v_mov_b32 {m}, 0xffff
        v_lshlrev_b32 {m}, {t}, {m}""")
        s.trig(co, si, co, 1.0 / 32)
        for c in range(4):
            A(f"""v_cvt_pk_bf16_f32 {s.SAr[c]}, {co[c]}, {co[c]}
            v_cvt_pk_bf16_f32 {s.SAi[c]}, -{si[c]}, -{si[c]}
            v_and_b32 {s.SAr[c]}, {s.SAr[c]}, {m}
            v_and_b32 {s.SAi[c]}, {s.SAi[c]}, {m}""")
        s.vfree('_co', '_si', '_m', '_t')
    def const_SC(s):
        A = s.A; co = s.v('_co', 4); si = s.v('_si', 4); m = s.v('_m'); t = s.v('_t'); s.v('SCr', 4); s.v('SCi', 4)
        A(f"""v_lshrrev_b32 {t}, 1, {s.q}
        v_mul_u32_u24 {t}, {t}, {s.n}
        v_cvt_f32_u32 {t}, {t}
        v_lshlrev_b32 {m}, 4, {s.n}
        v_cvt_f32_u32 {m}, {m}
        v_cmp_gt_u32 vcc, 16, {s.l}""")
        for c in range(4): A(f"v_fma_f32 {co[c]}, 2.0, {s.kn[c]}, {t}")
        A(f"v_cndmask_b32 {co[0]}, {co[0]}, {m}, vcc")
        s.trig(co, si, co, 1.0 / 32)
        A(f"""v_mul_f32 {t}, 0.5, {co[0]}
        v_cndmask_b32 {co[0]}, {co[0]}, {t}, vcc
        v_cndmask_b32 {si[0]}, {si[0]}, 0, vcc
        v_cmp_gt_u32 vcc, 32, {s.l}""")
        for c in range(4):
            A(f"""v_cvt_pk_bf16_f32 {s.SCr[c]}, {co[c]}, -{si[c]}
            v_cvt_pk_bf16_f32 {s.SCi[c]}, {co[c]}, {si[c]}
            v_cndmask_b32 {s.SCr[c]}, 0, {s.SCr[c]}, vcc
            v_cndmask_b32 {s.SCi[c]}, {s.SCi[c]}, 0, vcc""")
        s.vfree('_co', '_si', '_m', '_t')
    def const_A3(s):
        A = s.A; co = s.v('_co', 4); si = s.v('_si', 4); m = s.v('_m'); t = s.v('_t'); s.v('A3r', 4); s.v('A3i', 4)
        A(f"""v_and_b32 {t}, 1, {s.q}
        v_lshlrev_b32 {t}, 10, {t}
        v_add_u32 {t}, {s.p}, {t}
        v_lshrrev_b32 {m}, 1, {s.n}
        v_mul_u32_u24 {co[0]}, {m}, {t}
        v_lshlrev_b32 {m}, 8, {m}
        v_cvt_f32_u32 {co[0]}, {co[0]}
        v_cvt_f32_u32 {m}, {m}
        v_lshrrev_b32 {t}, 1, {s.q}
        v_add_f32 {co[1]}, {co[0]}, {m}
        v_add_f32 {co[2]}, {co[1]}, {m}
        v_add_f32 {co[3]}, {co[2]}, {m}
        v_and_b32 {m}, 1, {s.n}
        v_cmp_eq_u32 vcc, {m}, {t}""")
        s.trig(co, si, co, 1.0 / 2048)
        for c in range(4):
            A(f"""v_cvt_pk_bf16_f32 {s.A3r[c]}, {co[c]}, {si[c]}
            v_cvt_pk_bf16_f32 {s.A3i[c]}, -{si[c]}, {co[c]}
            v_cndmask_b32 {s.A3r[c]}, 0, {s.A3r[c]}, vcc
            v_cndmask_b32 {s.A3i[c]}, 0, {s.A3i[c]}, vcc""")
        s.vfree('_co', '_si', '_m', '_t')
    def const_C3(s):
        A = s.A; co = s.v('_co', 4); si = s.v('_si', 4); m = s.v('_m'); t = s.v('_t'); s.v('C3r', 4); s.v('C3i', 4)
        A(f"""v_lshrrev_b32 {t}, 3, {s.n}
        v_and_b32 {m}, 3, {s.n}
        v_lshl_add_u32 {t}, {t}, 2, {m}
        v_lshlrev_b32 {t}, 8, {t}
        v_add_u32 {t}, {s.p}, {t}
        v_lshrrev_b32 {m}, 1, {s.q}
        v_mul_u32_u24 {co[0]}, {m}, {t}
        v_lshlrev_b32 {co[0]}, 2, {co[0]}
        v_cvt_f32_u32 {t}, {t}
        v_cvt_f32_u32 {co[0]}, {co[0]}
        v_bfe_u32 {m}, {s.n}, 2, 1
        v_add_f32 {co[1]}, {co[0]}, {t}
        v_add_f32 {co[2]}, {co[1]}, {t}
        v_add_f32 {co[3]}, {co[2]}, {t}
        v_and_b32 {t}, 1, {s.q}
        v_cmp_eq_u32 vcc, {m}, {t}""")
        s.trig(co, si, co, 1.0 / 2048)
        for c in range(4):
            A(f"""v_cvt_pk_bf16_f32 {s.C3r[c]}, {co[c]}, -{si[c]}
            v_cvt_pk_bf16_f32 {s.C3i[c]}, {si[c]}, {co[c]}
            v_cndmask_b32 {s.C3r[c]}, 0, {s.C3r[c]}, vcc
            v_cndmask_b32 {s.C3i[c]}, 0, {s.C3i[c]}, vcc""")
        s.vfree('_co', '_si', '_m', '_t')
    def e_addr(s, name, k1_is_n):
        A = s.A; d = s.v(name, 4); k = s.v('_k'); t = s.v('_t'); u = s.v('_u')
        A(f"""s_lshr_b32 {s.t0}, {s.w}, 1
        s_mul_i32 {s.t0}, {s.t0}, {EH}
        s_and_b32 {s.t1}, {s.w}, 1
        s_lshl_b32 {s.t1}, {s.t1}, 3
        s_add_u32 {s.t0}, {s.t0}, {s.t1}
        s_add_u32 {s.t0}, {s.t0}, {L_E}""")
        for c in range(4):
            A(f"v_lshl_add_u32 {k}, {s.q}, 2, {c}")
            k1, k2 = (s.n, k) if k1_is_n else (k, s.n)
            A(f"""v_lshl_add_u32 {t}, {k2}, 5, {k1}
            v_cmp_eq_u32 vcc, 0, {k1}
            v_sub_u32 {u}, 512, {t}
            v_subrev_u32 {d[c]}, 16, {u}
            v_cndmask_b32 {u}, {u}, {d[c]}, vcc
            v_cmp_gt_u32 vcc, 8, {k2}
            v_cndmask_b32 {t}, {u}, {t}, vcc
            v_add_u32 {t}, -1, {t}
            v_and_b32 {t}, 255, {t}
            v_lshrrev_b32 {u}, 5, {t}
            v_add_u32 {t}, {t}, {u}
            v_lshl_add_u32 {d[c]}, {t}, 4, {s.t0}""")
        s.vfree('_k', '_t', '_u')

    def cmul(s, outr, outi, dr, di, co, si, tmp, conj):
        A = s.A
        neg = " neg_lo:[0,0,1] neg_hi:[0,0,1]"
        for h in (0, 2):
            P = lambda r: r[h:h+2]
            A(f"v_pk_mul_f32 {tmp[0:2]}, {P(di)}, {P(si)}")
            A(f"v_pk_mul_f32 {tmp[2:4]}, {P(dr)}, {P(si)}")
            A(f"v_pk_fma_f32 {P(outr)}, {P(dr)}, {P(co)}, {tmp[0:2]}" + (neg if conj else ""))
            A(f"v_pk_fma_f32 {P(outi)}, {P(di)}, {P(co)}, {tmp[2:4]}" + ("" if conj else neg))

    def xr_issue(s):
        A = s.A
        A(f"""s_lshl_b32 {s.t0}, {s.w}, 11
        s_add_u32 m0, {s.t0}, {L_XR}
        s_lshl_b32 {s.t0}, {s.w}, 9
        s_add_u32 {s.t0}, {s.t0}, {s.p}
        s_lshl_b32 {s.t0}, {s.t0}, 10
        s_add_u32 {s.t0}, {s.t0}, 2048
        s_add_u32 {s.t1}, {s.t0}, {262144-1024}
        buffer_load_dwordx4 {s.l16}, {s.sx}, {s.t0} offen lds ;@xr
        buffer_load_dwordx4 {s.l16}, {s.sx}, {s.t1} offen offset:1024 lds ;@xr""")
    def a_setup(s):
        A = s.A
        s.v('a_trad'); s.v('a_rd'); s.v('a_st'); s.v('sel0'); s.v('sel1'); s.v('mn0'); s.v('sgn'); s.sg('mq0', 2); t = s.v('_t'); u = s.v('_u')
        A(f"""s_lshl_b32 {s.t0}, {s.w}, 11
        s_add_u32 {s.t0}, {s.t0}, {L_XR}
        v_lshl_add_u32 {s.a_trad}, {s.l}, 3, {s.t0}
        v_mov_b32 {s.sel0}, 0x3f80
        v_mov_b32 {s.sel1}, 1.0
        v_cmp_eq_u32 vcc, 0, {s.n}
        s_mov_b64 {s.mq0}, 0xffff
        v_cndmask_b32 {s.mn0}, 0, 1.0, vcc
        v_cmp_gt_u32 vcc, 8, {s.n}
        s_mul_i32 {s.t0}, {s.w}, {66*16}
        v_cndmask_b32 {s.sgn}, -1.0, 1.0, vcc
        s_add_u32 {s.t0}, {s.t0}, {L_E}
        v_lshrrev_b32 {t}, 2, {s.n}
        v_and_b32 {u}, 3, {s.n}
        v_lshl_add_u32 {t}, {t}, 3, {u}
        v_lshrrev_b32 {u}, 1, {s.q}
        v_lshl_add_u32 {t}, {u}, 2, {t}
        v_and_b32 {u}, 1, {s.q}
        v_mul_u32_u24 {u}, {EH}, {u}
        v_lshl_add_u32 {t}, {t}, 4, {u}
        v_add_u32 {s.a_rd}, {s.t0}, {t}
        v_lshrrev_b32 {t}, 1, {s.n}
        v_lshlrev_b32 {t}, 10, {t}
        v_lshl_add_u32 {t}, {s.q}, 5, {t}
        v_and_b32 {u}, 1, {s.n}
        v_lshl_add_u32 {s.a_st}, {u}, 4, {t}""")
        s.vfree('_t', '_u')
        s.e_addr('a_wr', False)
    def a_part1(s, waitx):
        A = s.A
        F = [s.v('aF0', 4), s.v('aF1', 4)]
        D = [[s.v(f'aD{i}{x}', 4) for x in 'ri'] for i in range(2)]
        Sp = [[s.v(f'aS{i}{x}', 4) for x in 'ri'] for i in range(2)]
        d = s.v('ad', 8); st = s.v('ast', 4); tmp = s.v('atmp', 4); P = s.v('aP', 8)
        s.sg('r01', 2); piv = s.sg('apiv', 2)
        A(waitx)
        for i in range(2):
            A(f"ds_read_b64_tr_b16 {F[i][0:2]}, {s.a_trad} offset:{1024*i}\n ds_read_b64_tr_b16 {F[i][2:4]}, {s.a_trad} offset:{1024*i+512}")
        for i in range(2):
            A(f"s_waitcnt lgkmcnt({2-2*i})")
            A(f"{M16} {D[i][0]}, {F[i]}, {s.B1r}, 0\n {M16} {D[i][1]}, {F[i]}, {s.B1i}, 0")
            A(f"v_readfirstlane_b32 {piv[i]}, {F[i][0]}")
        for i in range(2):
            A(f"s_lshl_b32 {piv[i]}, {piv[i]}, 16\n s_xor_b32 {piv[i]}, {piv[i]}, 0x80000000")
        for i in range(2):
            for c in range(4):
                A(f"v_dot2_f32_bf16 {d[2*c]}, {F[i][c]}, {s.sel0}, {piv[i]}\n v_dot2_f32_bf16 {d[2*c+1]}, {F[i][c]}, {s.sel1}, {piv[i]}")
            A("s_nop 2")
            A(f"""v_pk_mul_f32 {tmp[0:2]}, {d[0:2]}, {d[0:2]}
            v_pk_add_f32 {tmp[2:4]}, {d[0:2]}, {d[2:4]}
            v_pk_fma_f32 {tmp[0:2]}, {d[2:4]}, {d[2:4]}, {tmp[0:2]}
            v_pk_add_f32 {tmp[2:4]}, {tmp[2:4]}, {d[4:6]}
            v_pk_fma_f32 {tmp[0:2]}, {d[4:6]}, {d[4:6]}, {tmp[0:2]}
            v_pk_add_f32 {tmp[2:4]}, {tmp[2:4]}, {d[6:8]}
            v_pk_fma_f32 {tmp[0:2]}, {d[6:8]}, {d[6:8]}, {tmp[0:2]}
            v_add_f32 {st[i]}, {tmp[2]}, {tmp[3]}
            v_add_f32 {st[2+i]}, {tmp[0]}, {tmp[1]}""")
        for i in range(2):
            A(f"v_readfirstlane_b32 {piv[i]}, {D[i][0][0]}")
        A(f"""v_permlane32_swap_b32 {st[0]}, {st[1]}
        v_permlane32_swap_b32 {st[2]}, {st[3]}
        v_add_f32 {st[0]}, {st[0]}, {st[1]}
        v_add_f32 {st[2]}, {st[2]}, {st[3]}""")
        for i in range(2):
            A(f"v_mul_f32 {d[2*i]}, {piv[i]}, {s.mn0}")
        A(f"v_permlane16_swap_b32 {st[0]}, {st[2]}\n v_add_f32 {st[0]}, {st[0]}, {st[2]}")
        red = [f"v_add_f32_dpp {st[0]}, {st[0]}, {st[0]} row_ror:{k} row_mask:0xf bank_mask:0xf" for k in (8, 4, 2, 1)]
        for i in range(2):
            for h in (0, 2):
                A(f"v_pk_add_f32 {D[i][0][h:h+2]}, {D[i][0][h:h+2]}, {d[2*i:2*i+2]} op_sel_hi:[1,0] neg_lo:[0,1] neg_hi:[0,1]")
            A(red[2*i])
            s.cmul(D[i][0], D[i][1], D[i][0], D[i][1], s.T512c, s.T512s, tmp, False)
            A(red[2*i+1])
            for c in range(4): A(f"v_cvt_pk_bf16_f32 {F[i][c]}, {D[i][0][c]}, {D[i][1][c]}")
        A(f"v_mov_b32 {st[1]}, {st[0]}")
        fin = f"""v_permlane16_swap_b32 {st[0]}, {st[1]}
        v_mul_f32 {st[0]}, {fl(1/512)}, {st[0]}
        v_mul_f32 {st[1]}, {fl(1/512)}, {st[1]}
        v_fma_f32 {st[1]}, -{st[0]}, {st[0]}, {st[1]}
        v_max_f32 {st[1]}, 0, {st[1]}
        v_cvt_pk_bf16_f32 {st[1]}, {st[1]}, {st[1]}
        v_lshlrev_b32 {st[1]}, 16, {st[1]}
        v_add_f32 {st[1]}, {fl(1e-5)}, {st[1]}
        v_cvt_pk_bf16_f32 {st[1]}, {st[1]}, {st[1]}
        v_lshlrev_b32 {st[1]}, 16, {st[1]}
        v_sqrt_f32 {st[1]}, {st[1]}
        v_cvt_pk_bf16_f32 {st[1]}, {st[1]}, {st[1]}
        v_lshlrev_b32 {st[1]}, 16, {st[1]}
        v_rcp_f32 {st[1]}, {st[1]}
        v_readlane_b32 {s.r01[0]}, {st[1]}, 0
        v_readlane_b32 {s.r01[1]}, {st[1]}, 32""".split('\n')
        mf = []
        for i in range(2):
            mf += [f"{M16} {D[i][0]}, {F[i]}, {s.FWr}, 0", f"{M16} {D[i][1]}, {F[i]}, {s.FWi}, 0", f"{M16} {Sp[i][0]}, {F[i]}, {s.SAr}, 0", f"{M16} {Sp[i][1]}, {F[i]}, {s.SAi}, 0"]
        for k in range(8):
            A(mf[k]); A(fin[2*k]); A(fin[2*k+1])
        for i in range(2): A(f"v_mul_f32 {d[2*i]}, {s.r01[i]}, {s.sgn}")
        for i in range(2):
            for x in range(2): A(f"v_cndmask_b32 {D[i][x][0]}, {D[i][x][0]}, {Sp[i][x][0]}, {s.mq0}")
            for h in (0, 2):
                A(f"v_pk_mul_f32 {D[i][0][h:h+2]}, {D[i][0][h:h+2]}, {s.r01} op_sel:[0,{i}] op_sel_hi:[1,{i}]")
                A(f"v_pk_mul_f32 {D[i][1][h:h+2]}, {D[i][1][h:h+2]}, {d[2*i:2*i+2]} op_sel_hi:[1,0]")
            for c in range(4): A(f"v_cvt_pk_bf16_f32 {P[2*c+i]}, {D[i][0][c]}, {D[i][1][c]}")
        for c in range(4): A(f"ds_write_b64 {s.a_wr[c]}, {P[2*c:2*c+2]}")
        s.vfree('aS0r', 'aS0i', 'aS1r', 'aS1i', 'ad', 'ast', 'atmp', 'aP'); s.sfree('apiv')
    def a_part2(s, stflag):
        A = s.A; F = [s.aF0, s.aF1]; D = [[s.aD0r, s.aD0i], [s.aD1r, s.aD1i]]
        for t in range(2): A(f"ds_read_b128 {F[t]}, {s.a_rd} offset:{t*33*16}")
        A(f"s_lshl_b32 {s.t0}, {s.p}, 13\n s_lshl_b32 {s.t1}, {s.w}, 8\n s_add_u32 {s.t0}, {s.t0}, {s.t1}")
        for t in range(2):
            A(f"s_waitcnt lgkmcnt({1-t})")
            A(f"{M16} {D[t][0]}, {F[t]}, {s.A3r}, 0\n {M16} {D[t][1]}, {F[t]}, {s.A3i}, 0")
        for t in range(2):
            for c in range(4): A(f"v_cvt_pk_bf16_f32 {F[t][c]}, {D[t][0][c]}, {D[t][1][c]}")
            A(f"buffer_store_dwordx4 {F[t]}, {s.a_st}, {s.sws}, {s.t0} offen offset:{WS_X1 + 128*t} {stflag} ;@x1")
        s.vfree('aF0', 'aF1', 'aD0r', 'aD0i', 'aD1r', 'aD1i', 'a_trad', 'a_rd', 'a_st', 'sel0', 'sel1', 'mn0', 'sgn', 'a_wr',
                'B1r', 'B1i', 'SAr', 'SAi', 'A3r', 'A3i')

    def g1_setup_dma(s):
        A = s.A; vo = s.v('g1vo', 8); t = s.v('_t'); u = s.v('_u'); k = s.v('_k')
        s.sg('sox', 8); s.sg('sow', 8); s.sg('m0b'); s.sg('shift'); s.sg('tile0')
        imm = [0, 1024, 2048, 3072, 0, 1024]
        for z in range(3):
            A(f"""v_add_u32 {t}, {64*z}, {s.l}
            v_mul_u32_u24 {u}, 2731, {t}
            v_lshrrev_b32 {u}, 16, {u}
            v_mul_u32_u24 {k}, 24, {u}
            v_sub_u32 {t}, {t}, {k}
            v_and_b32 {k}, 6, {u}
            v_xor_b32 {t}, {t}, {k}
            v_and_b32 {k}, 4, {u}
            v_add_u32 {u}, {u}, {k}
            v_mul_u32_u24 {u}, 2752, {u}
            v_lshl_add_u32 {t}, {t}, 4, {u}
            v_subrev_u32 {vo[z]}, {imm[z]}, {t}
            v_add_u32 {vo[3+z]}, {16*2752 - imm[3+z]}, {t}""")
        A(f"""v_lshrrev_b32 {u}, 3, {s.l}
        v_and_b32 {t}, 7, {s.l}
        v_xor_b32 {t}, {t}, {s.q}
        v_lshlrev_b32 {u}, 10, {u}
        v_lshl_add_u32 {vo[6]}, {t}, 4, {u}
        v_xor_b32 {vo[7]}, 64, {vo[6]}
        v_add_u32 {vo[7]}, {262144-1024}, {vo[7]}
        s_mul_i32 {s.tile0}, {s.fs}, 11
        s_cmp_eq_u32 {s.fs}, 7
        s_cselect_b32 {s.t0}, 1, 0
        s_sub_u32 {s.tile0}, {s.tile0}, {s.t0}
        s_and_b32 {s.shift}, {s.tile0}, 1
        s_lshl_b32 {s.m0b}, {s.w}, 13
        s_and_b32 {s.t0}, {s.j}, 3
        s_lshl_b32 {s.t0}, {s.t0}, 1
        s_add_u32 {s.t0}, {s.t0}, {s.fs}
        s_add_u32 {s.t0}, {s.t0}, {s.xcd}""")
        bx = s.sg('_bx'); bw = s.sg('_bw')
        A(f"""s_lshl_b32 {bx}, {s.w}, 6
        s_add_u32 {bx}, {bx}, {s.rb}
        s_lshl_b32 {bx}, {bx}, 13
        s_lshr_b32 {bw}, {s.w}, 1
        s_lshl_b32 {bw}, {bw}, 3
        s_and_b32 {s.t1}, {s.w}, 1
        s_add_u32 {bw}, {bw}, {s.t1}
        s_mul_i32 {bw}, {bw}, {4*2752}
        s_lshr_b32 {s.t1}, {s.tile0}, 1
        s_lshl_b32 {s.t1}, {s.t1}, 6
        s_add_u32 {bw}, {bw}, {s.t1}""")
        for st in range(8):
            A(f"""s_and_b32 {s.t0}, {s.t0}, 7
            s_lshl_b32 {s.t1}, {s.t0}, 7
            s_add_u32 {s.sox[st]}, {bx}, {s.t1}
            s_mul_i32 {s.t1}, {s.t0}, {64*2752}
            s_add_u32 {s.sow[st]}, {bw}, {s.t1}
            s_add_u32 {s.t0}, {s.t0}, 1""")
        s.vfree('_t', '_u', '_k'); s.sfree('_bx', '_bw')
    def g1_dma(s, st):
        vo = s.g1vo; base = (st % 4) * 32768
        o = [f"s_add_u32 m0, {s.m0b}, {base}"]
        for z in range(4): o.append(f"buffer_load_dwordx4 {vo[z]}, {s.sw1}, {s.sow[st]} offen offset:{1024*z} lds ;@st{st}")
        o.append(f"s_add_u32 m0, {s.m0b}, {base+4096}")
        for z in range(2): o.append(f"buffer_load_dwordx4 {vo[4+z]}, {s.sw1}, {s.sow[st]} offen offset:{1024*z} lds ;@st{st}")
        for z in range(2): o.append(f"buffer_load_dwordx4 {vo[6+z]}, {s.sx}, {s.sox[st]} offen offset:{2048+1024*z} lds ;@st{st}")
        return o
    def g1_setup_rd(s):
        A = s.A; wa = s.v('g1wa', 6); xa = s.v('g1xa', 4); t = s.v('_t'); u = s.v('_u'); k = s.v('_k')
        A(f"""v_lshrrev_b32 {t}, 2, {s.l}
        v_mul_u32_u24 {u}, 384, {t}
        v_and_b32 {k}, 3, {s.l}
        v_lshl_add_u32 {u}, {k}, 3, {u}
        v_bfe_u32 {t}, {s.l}, 3, 2
        s_mul_i32 {s.t0}, {s.w}, 3
        s_add_u32 {s.t0}, {s.t0}, {s.shift}""")
        for i in range(3):
            A(f"""v_xor_b32 {k}, {s.t0}, {t}
            v_lshl_add_u32 {wa[i]}, {k}, 5, {u}
            v_add_u32 {wa[3+i]}, 65536, {wa[i]}
            s_add_u32 {s.t0}, {s.t0}, 1""")
        A(f"""v_lshrrev_b32 {t}, 1, {s.n}
        v_xor_b32 {t}, {t}, {s.q}
        v_lshlrev_b32 {t}, 4, {t}
        v_lshl_add_u32 {t}, {s.n}, 7, {t}
        v_add_u32 {xa[0]}, 6144, {t}
        v_xor_b32 {xa[1]}, 64, {xa[0]}
        v_add_u32 {xa[2]}, 65536, {xa[0]}
        v_add_u32 {xa[3]}, 65536, {xa[1]}""")
        s.vfree('_t', '_u', '_k')
        s.v('acc1', 48); s.v('accc', 12); s.a('ones', 4); s.a('xf', 32); s.a('wf', 24)
        t = s.v('_t'); A(f"v_mov_b32 {t}, 0x3f803f80")
        for c in range(4): A(f"v_accvgpr_write_b32 {s.ones[c]}, {t}")
        s.vfree('_t')
    def g1_reads(s, step, w3):
        st = step // 2; ks = step % 2; sl = st % 4; hi = sl // 2; base = (sl % 2) * 32768; b = step % 2
        o = []
        nt = 2 if w3 else 3
        xr = [f"ds_read_b128 {s.xf[16*b+4*mt:16*b+4*mt+4]}, {s.g1xa[2*hi+ks]} offset:{base + mt*8192}" for mt in range(4)]
        wr = [[f"ds_read_b64_tr_b16 {s.wf[12*b+4*i+2*h:12*b+4*i+2*h+2]}, {s.g1wa[3*hi+i]} offset:{base + (2*ks+h)*8192}" for h in range(2)] for i in range(nt)]
        o = wr[0] + xr
        for i in range(1, nt): o += wr[i]
        return o
    def g1_mfmas(s, step, w3):
        b = step % 2; o = []
        for i in range(3):
            wf = s.wf[12*b+4*i:12*b+4*i+4]
            if w3 and i == 2: wf = s.ones
            for mt in range(4):
                acc = s.acc1[16*i+4*mt:16*i+4*mt+4]
                o.append(f"{M16} {acc}, {wf}, {s.xf[16*b+4*mt:16*b+4*mt+4]}, {acc if step else 0}")
            if not (w3 and i == 2):
                acc = s.accc[4*i:4*i+4]
                o.append(f"{M16} {acc}, {wf}, {s.ones}, {acc if step else 0}")
        return o
    def g1_main(s, w3, vm, extra):
        A = s.A
        A(f"s_waitcnt vmcnt({vm[0]})\n s_barrier")
        for x in s.g1_reads(0, w3): A(x)
        for step in range(16):
            fill = []
            if step % 2 == 1:
                nx = step // 2 + 1
                A(f"s_waitcnt lgkmcnt(0)" + (f" vmcnt({vm[nx]})" if nx < 8 else "")); A("s_barrier")
            else: A("s_waitcnt lgkmcnt(0)")
            if step in (1, 7, 15): s.stamp(f'g1s{step}')
            if step < 15: fill += s.g1_reads(step + 1, w3)
            fill += extra.get(step, [])
            mf = s.g1_mfmas(step, w3)
            per = -(-len(fill) // len(mf)); per = max(per, 2) if fill else 0
            for m in mf:
                A(m)
                for x in fill[:per]: A(x)
                fill = fill[per:]
        if w3:
            t = s.v('_t', 4); ad = s.v('_ad')
            A(f"v_lshlrev_b32 {ad}, 4, {s.n}\n v_add_u32 {ad}, {L_MEAN}, {ad}")
            for mt in range(4): A(f"v_mul_f32 {t[mt]}, {fl(-1/512)}, {s.acc1[32+4*mt]}")
            for mt in range(4): A(f"v_cvt_pk_bf16_f32 {t[mt]}, {t[mt]}, {t[mt]}")
            for mt in range(4): A(f"v_lshlrev_b32 {t[mt]}, 16, {t[mt]}")
            A(f"ds_write_b128 {ad}, {t}\n s_waitcnt lgkmcnt(0)")
            s.vfree('_t', '_ad')
    def g1_epilogue(s, stflag):
        A = s.A; mm = s.v('g1m', 4); ad = s.v('_ad'); P = s.v('g1P', 24); so = s.sg('_so', 3)
        A(f"v_lshlrev_b32 {ad}, 4, {s.n}\n v_add_u32 {ad}, {L_MEAN}, {ad}\n s_barrier\n ds_read_b128 {mm}, {ad}")
        A(f"""s_mul_i32 {s.t0}, {s.rb}, 86
        s_add_u32 {s.t0}, {s.t0}, {s.tile0}
        s_mul_i32 {s.t1}, {s.w}, 3
        s_add_u32 {s.t0}, {s.t0}, {s.t1}
        s_lshl_b32 {s.t0}, {s.t0}, 11
        s_add_u32 {so[0]}, {s.t0}, {WS_H}
        s_add_u32 {so[1]}, {so[0]}, 2048
        s_add_u32 {so[2]}, {so[0]}, 4096
        s_cmp_eq_u32 {s.w}, 3
        s_cselect_b32 {so[2]}, {WS_SIZE}, {so[2]}
        s_cselect_b32 {s.t0}, {s.fs}, 0
        s_cmp_ge_u32 {s.t0}, 6
        s_cselect_b32 {so[1]}, {WS_SIZE}, {so[1]}
        s_waitcnt lgkmcnt(0)""")
        for i in range(3):
            for mt in range(4):
                acc = s.acc1[16*i+4*mt:16*i+4*mt+4]; mp = mm[(mt//2)*2:(mt//2)*2+2]; e = mt % 2
                for h in (0, 2):
                    A(f"v_pk_fma_f32 {acc[h:h+2]}, {s.accc[4*i+h:4*i+h+2]}, {mp}, {acc[h:h+2]} op_sel:[0,{e},0] op_sel_hi:[1,{e},1]")
                for h in range(2): A(f"v_cvt_pk_bf16_f32 {P[8*i+2*mt+h]}, {acc[2*h]}, {acc[2*h+1]}")
                for h in range(2): A(f"v_pk_max_i16 {P[8*i+2*mt+h]}, {P[8*i+2*mt+h]}, 0")
            for M in range(2):
                Q = P[8*i+4*M:8*i+4*M+4]
                A(f"v_permlane16_swap_b32 {Q[0]}, {Q[2]}\n v_permlane16_swap_b32 {Q[1]}, {Q[3]}")
                A(f"buffer_store_dwordx4 {Q}, {s.l16}, {s.sws}, {so[i]} offen offset:{1024*M} {stflag} ;@h")
        s.vfree('g1m', '_ad', 'g1P', 'acc1', 'accc', 'g1wa', 'g1xa', 'g1vo'); s.afree('ones', 'xf', 'wf'); s.sfree('_so', 'sox', 'sow', 'shift')

    def b_setup(s):
        A = s.A; s.v('b_ga'); s.v('b_ua'); s.v('b_wo'); s.v('b_wa'); s.v('b_lin'); s.v('b_st'); t = s.v('_t'); u = s.v('_u')
        A(f"""v_lshrrev_b32 {t}, 4, {s.l}
        v_xor_b32 {t}, {t}, {s.l}
        v_and_b32 {t}, 1, {t}
        v_lshrrev_b32 {u}, 1, {s.l}
        v_lshlrev_b32 {s.b_ga}, 13, {u}
        v_lshl_add_u32 {s.b_ga}, {t}, 4, {s.b_ga}
        v_lshlrev_b32 {s.b_st}, 5, {u}
        v_lshl_add_u32 {s.b_st}, {t}, 4, {s.b_st}
        s_lshr_b32 {s.t0}, {s.w}, 1
        v_lshrrev_b32 {t}, 3, {s.n}
        v_xor_b32 {t}, {s.t0}, {t}
        v_lshlrev_b32 {t}, 4, {t}
        v_lshl_add_u32 {t}, {s.n}, 5, {t}
        v_lshl_add_u32 {t}, {s.q}, 11, {t}
        s_and_b32 {s.t0}, {s.w}, 1
        s_lshl_b32 {s.t0}, {s.t0}, 3
        s_add_u32 {s.t0}, {s.t0}, {L_U}
        v_add_u32 {s.b_ua}, {s.t0}, {t}
        v_mul_u32_u24 {s.b_wo}, 4112, v0
        v_lshlrev_b32 {t}, 4, {s.n}
        v_lshl_add_u32 {t}, {s.q}, 10, {t}
        s_lshl_b32 {s.t0}, {s.w}, 2
        s_add_u32 {s.t0}, {s.t0}, {L_E}
        v_add_u32 {s.b_wa}, {s.t0}, {t}
        s_lshl_b32 {s.t0}, {s.w}, 11
        s_add_u32 {s.t0}, {s.t0}, {L_U}
        v_add_u32 {s.b_lin}, {s.t0}, {s.l16}""")
        s.vfree('_t', '_u')
    def b_wload(s):
        A = s.A; W = s.v('b_wraw', 8)
        A(f"""s_mul_i32 {s.t0}, {s.xcd}, 514
        s_lshl_b32 {s.t1}, {s.j}, 4
        s_add_u32 {s.t0}, {s.t0}, {s.t1}
        s_add_u32 {s.t0}, {s.t0}, 2
        buffer_load_dwordx4 {W[0:4]}, {s.b_wo}, {s.swr}, {s.t0} offen ;@W
        buffer_load_dwordx4 {W[4:8]}, {s.b_wo}, {s.swi}, {s.t0} offen ;@W""")
    def b_wstage(s):
        A = s.A; W = s.b_wraw; t = s.v('_t')
        A(f"v_lshlrev_b32 {t}, 4, v0\n v_add_u32 {t}, {L_E}, {t}\n ds_write_b128 {t}, {W[0:4]}\n ds_write_b128 {t}, {W[4:8]} offset:4096")
        s.vfree('_t')
    def b_wread(s):
        A = s.A; W = s.b_wraw; X = s.v('b_W', 16)
        for x in range(2):
            for h in range(2): A(f"ds_read2st64_b32 {W[4*x+2*h:4*x+2*h+2]}, {s.b_wa} offset0:{16*x+2*h} offset1:{16*x+2*h+1}")
        A("s_waitcnt lgkmcnt(0)")
        for x in range(2):
            for r in range(4): A(f"v_lshlrev_b32 {X[4*x+r]}, 16, {W[4*x+r]}\n v_and_b32 {X[8+4*x+r]}, 0xffff0000, {W[4*x+r]}")
        s.vfree('b_wraw', 'b_wo', 'b_wa')
    def b_gather(s, ldflag):
        A = s.A
        A(f"""s_lshl_b32 {s.t0}, {s.w}, 11
        s_add_u32 m0, {s.t0}, {L_U}
        s_lshl_b32 {s.t0}, {s.w}, 9
        s_add_u32 {s.t0}, {s.t0}, {s.xcd}
        s_lshl_b32 {s.t0}, {s.t0}, 5
        s_add_u32 {s.t0}, {s.t0}, {s.j}
        s_lshl_b32 {s.t0}, {s.t0}, 5
        s_add_u32 {s.t1}, {s.t0}, {32*8192-1024}
        buffer_load_dwordx4 {s.b_ga}, {s.sws}, {s.t0} offen {ldflag} lds ;@gx
        buffer_load_dwordx4 {s.b_ga}, {s.sws}, {s.t1} offen offset:1024 {ldflag} lds ;@gx""")
        s.vfree('b_ga')
    def rd_pairs(s, F, addr, offs):
        A = s.A
        for pos, c in enumerate((0, 2, 1, 3)):
            ad = addr[c] if addr.n == 4 else addr
            A(f"ds_read_b64 {F[2*pos:2*pos+2]}, {ad} offset:{offs[c]}")
        A(f"s_waitcnt lgkmcnt(0)\n v_swap_b32 {F[1]}, {F[4]}\n v_swap_b32 {F[3]}, {F[6]}")
    def b_main(s):
        A = s.A; F = s.v('bF', 8); D = [[s.v(f'bD{i}{x}', 4) for x in 'ri'] for i in range(2)]; tmp = s.v('btmp', 4)
        U = [F[0:4], F[4:8]]
        s.rd_pairs(F, s.b_ua, [512*c for c in range(4)])
        stages = [(True, s.FWr, s.FWi), (False, s.FWr, s.FWi), (True, s.IVr, s.IVi), (False, s.IVr, s.IVi)]
        for k, (dataA, cr, ci) in enumerate(stages):
            for i in range(2):
                for x, cc in enumerate((cr, ci)):
                    A(f"{M16} {D[i][x]}, {U[i]}, {cc}, 0" if dataA else f"{M16} {D[i][x]}, {cc}, {U[i]}, 0")
            for i in range(2):
                if k == 0: s.cmul(D[i][0], D[i][1], D[i][0], D[i][1], s.T256c, s.T256s, tmp, False)
                if k == 1: s.cmul(D[i][0], D[i][1], D[i][0], D[i][1], s.b_W[8*i:8*i+4], s.b_W[8*i+4:8*i+8], tmp, True)
                if k == 2: s.cmul(D[i][0], D[i][1], D[i][0], D[i][1], s.T256c, s.T256s, tmp, True)
                for c in range(4):
                    dst = U[i][c] if k < 3 else F[2*c+i]
                    A(f"v_cvt_pk_bf16_f32 {dst}, {D[i][0][c]}, {D[i][1][c]}")
        for c in range(4): A(f"ds_write_b64 {s.b_ua}, {F[2*c:2*c+2]} offset:{512*c}")
        s.vfree('bD0r', 'bD0i', 'bD1r', 'bD1i', 'btmp', 'b_W', 'b_ua', 'T256c', 'T256s')
    def b_store(s, stflag):
        A = s.A; F = s.bF
        for t in range(2): A(f"ds_read_b128 {F[4*t:4*t+4]}, {s.b_lin} offset:{1024*t}")
        A(f"s_lshl_b32 {s.t0}, s2, 13\n s_lshl_b32 {s.t1}, {s.w}, 11\n s_add_u32 {s.t0}, {s.t0}, {s.t1}\n s_add_u32 {s.t0}, {s.t0}, {WS_Y1}")
        for t in range(2):
            A(f"s_waitcnt lgkmcnt({1-t})\n buffer_store_dwordx4 {F[4*t:4*t+4]}, {s.b_st}, {s.sws}, {s.t0} offen offset:{1024*t} {stflag} ;@y1")
        s.vfree('bF', 'b_lin', 'b_st')

    def g2_setup(s):
        A = s.A; vo = s.v('g2vo', 4); ra = s.v('g2ra', 4); t = s.v('_t'); u = s.v('_u'); s.sg('sw2o')
        if not hasattr(s, 'm0b'): s.sg('m0b'); A(f"s_lshl_b32 {s.m0b}, {s.w}, 13")
        A(f"""v_and_b32 {t}, 1, {s.q}
        v_lshlrev_b32 {t}, 2, {t}
        v_xor_b32 {t}, {t}, {s.l}
        v_and_b32 {t}, 7, {t}
        v_lshrrev_b32 {u}, 3, {s.l}
        v_lshlrev_b32 {u}, 10, {u}
        v_lshl_add_u32 {vo[0]}, {t}, 4, {u}""")
        for z in range(1, 4): A(f"v_add_u32 {vo[z]}, {z*(8192-1024)}, {vo[0]}")
        A(f"""s_mul_i32 {s.sw2o}, {s.w}, {352*1024}
        s_lshl_b32 {s.t0}, {s.fs}, 7
        s_add_u32 {s.sw2o}, {s.sw2o}, {s.t0}
        v_lshrrev_b32 {t}, 5, {s.l}
        v_bfe_u32 {u}, {s.l}, 2, 2
        v_lshl_add_u32 {t}, {t}, 3, {u}
        v_lshlrev_b32 {t}, 7, {t}
        v_bfe_u32 {u}, {s.l}, 3, 1
        v_lshl_add_u32 {t}, {u}, 6, {t}
        v_and_b32 {u}, 1, {s.q}
        v_lshl_add_u32 {t}, {u}, 5, {t}
        v_and_b32 {u}, 3, {s.l}
        v_lshl_add_u32 {t}, {u}, 3, {t}
        v_add_u32 {ra[0]}, {s.m0b}, {t}
        v_xor_b32 {ra[1]}, 64, {ra[0]}
        v_add_u32 {ra[2]}, 65536, {ra[0]}
        v_add_u32 {ra[3]}, 65536, {ra[1]}""")
        s.vfree('_t', '_u')
    def g2_wdma(s, g, slot):
        o = []
        for hf in range(2 if g < 5 else 1):
            o.append(f"s_add_u32 m0, {s.m0b}, {slot*32768 + hf*4096}")
            o.append(f"s_add_u32 {s.t1}, {s.sw2o}, {(g*64 + hf*32)*1024}")
            for z in range(4): o.append(f"buffer_load_dwordx4 {s.g2vo[z]}, {s.sw2}, {s.t1} offen offset:{1024*z} lds ;@wb{g}")
        return o
    def g2_wread(s, g, slot):
        o = []
        for ks in range(4 if g < 5 else 2):
            step = 4*g + ks
            for nt in range(2):
                for i in range(2):
                    o.append(f"ds_read_b64_tr_b16 {s.w2f[8*step+4*nt+2*i:8*step+4*nt+2*i+2]}, {s.g2ra[2*(slot//2)+nt]} offset:{(slot%2)*32768 + ks*2048 + i*512}")
        return o
    def g2_hsrd(s):
        A = s.A; r = s.sg('sh', 4, 4)
        A(f"""s_mul_i32 {s.t0}, {s.rb}, 86
        s_mul_i32 {s.t1}, {s.w}, 22
        s_add_u32 {s.t0}, {s.t0}, {s.t1}
        s_lshl_b32 {s.t0}, {s.t0}, 11
        s_add_u32 {s.t0}, {s.t0}, {WS_H}
        s_add_u32 {r[0]}, s20, {s.t0}
        s_addc_u32 {r[1]}, s21, 0
        s_cmp_eq_u32 {s.w}, 3
        s_cselect_b32 {r[2]}, 20, 22
        s_lshl_b32 {r[2]}, {r[2]}, 11
        s_mov_b32 {r[3]}, 0x20000""")
        so = s.sg('hso', 11)
        for i in range(11): A(f"s_mov_b32 {so[i]}, {4096*i}")
    NH = 16
    def g2_hload(s, idx, ldflag):
        mt, i = divmod(idx, 22); sl = idx % s.NH
        return f"buffer_load_dwordx4 {s.hf[4*sl:4*sl+4]}, {s.l16}, {s.sh}, {s.hso[i//2]} offen offset:{(i%2)*2048 + mt*1024} {ldflag} ;@h{idx}"
    def g2_red_setup(s):
        A = s.A; s.v('g2rw'); s.v('g2rr'); s.v('g2st'); t = s.v('_t'); u = s.v('_u')
        A(f"""v_and_b32 {t}, 31, {s.l}
        v_mul_u32_u24 {t}, 272, {t}
        v_lshrrev_b32 {u}, 5, {s.l}
        v_lshl_add_u32 {t}, {u}, 4, {t}
        s_mul_i32 {s.t0}, {s.w}, {RED_S}
        v_add_u32 {s.g2rw}, {s.t0}, {t}
        v_lshrrev_b32 {t}, 3, {s.l}
        v_and_b32 {u}, 7, {s.l}
        v_lshlrev_b32 {s.g2st}, 10, {t}
        v_lshl_add_u32 {s.g2st}, {u}, 4, {s.g2st}
        v_mul_u32_u24 {t}, 272, {t}
        v_lshl_add_u32 {t}, {u}, 5, {t}
        s_mul_i32 {s.t0}, {s.w}, {8*272}
        v_add_u32 {s.g2rr}, {s.t0}, {t}""")
        s.vfree('_t', '_u')
    def g2_red_write(s, mt):
        return [f"ds_write_b128 {s.g2rw}, {s.acc2[32*mt+4*k:32*mt+4*k+4]} offset:{mt*4*RED_S + 32*k}" for k in range(8)]
    def g2_red_read(s, mt):
        return [f"ds_read_b128 {s.acc2[32*mt+4*k:32*mt+4*k+4]}, {s.g2rr} offset:{mt*4*RED_S + (k//2)*RED_S + (k%2)*16}" for k in range(8)]
    def g2_red_fin(s, mt, stflag):
        a = s.acc2[32*mt:32*mt+32]; o = []
        for h in range(0, 8, 2): o.append(f"v_pk_add_f32 {a[h:h+2]}, {a[h:h+2]}, {a[8+h:10+h]}")
        for h in range(0, 8, 2): o.append(f"v_pk_add_f32 {a[16+h:18+h]}, {a[16+h:18+h]}, {a[24+h:26+h]}")
        for h in range(0, 8, 2): o.append(f"v_pk_add_f32 {a[h:h+2]}, {a[h:h+2]}, {a[16+h:18+h]}")
        for c in range(4): o.append(f"v_cvt_pk_bf16_f32 {a[8+c]}, {a[2*c]}, {a[2*c+1]}")
        o += [f"s_lshl_b32 {s.t0}, {s.w}, 5", f"s_add_u32 {s.t0}, {s.t0}, {s.rb}", f"s_lshl_b32 {s.t0}, {s.t0}, 6", f"s_add_u32 {s.t0}, {s.t0}, {s.fs}",
              f"s_lshl_b32 {s.t0}, {s.t0}, 7", f"s_add_u32 {s.t0}, {s.t0}, {WS_O + mt*4*262144}",
              f"buffer_store_dwordx4 {a[8:12]}, {s.g2st}, {s.sws}, {s.t0} offen {stflag} ;@o{mt}"]
        return o

    def c_setup(s):
        A = s.A; s.v('c_ga'); s.v('c_ua'); s.v('c_ew'); s.v('c_xo'); t = s.v('_t'); u = s.v('_u')
        if not hasattr(s, 'mq0'): s.sg('mq0', 2); A(f"s_mov_b64 {s.mq0}, 0xffff")
        A(f"""v_lshrrev_b32 {t}, 1, {s.l}
        v_lshlrev_b32 {t}, 16, {t}
        v_and_b32 {u}, 1, {s.l}
        v_lshl_add_u32 {s.c_ga}, {u}, 4, {t}
        v_and_b32 {t}, 31, {s.l}
        v_lshrrev_b32 {u}, 5, {s.l}
        v_lshlrev_b32 {t}, 3, {t}
        v_lshl_add_u32 {t}, {u}, 12, {t}
        s_lshl_b32 {s.t0}, {s.w}, 8
        s_add_u32 {s.t0}, {s.t0}, {L_U}
        v_add_u32 {s.c_ua}, {s.t0}, {t}
        v_mul_u32_u24 {u}, {EH}, {u}
        v_lshl_add_u32 {u}, {s.n}, 5, {u}
        v_and_b32 {t}, 1, {s.q}
        v_mul_u32_u24 {t}, {33*16}, {t}
        s_mul_i32 {s.t0}, {s.w}, {66*16}
        s_add_u32 {s.t0}, {s.t0}, {L_E}
        v_add3_u32 {s.c_ew}, {s.t0}, {t}, {u}
        v_lshlrev_b32 {t}, 3, {s.q}
        v_lshl_add_u32 {s.c_xo}, {s.n}, 5, {t}""")
        s.vfree('_t', '_u')
        s.e_addr('c_er', True)
    def c_gather(s, ldflag):
        A = s.A
        A(f"""s_lshl_b32 {s.t0}, {s.w}, 11
        s_add_u32 m0, {s.t0}, {L_U}
        s_lshl_b32 {s.t0}, {s.w}, 14
        s_lshl_b32 {s.t1}, {s.p}, 5
        s_add_u32 {s.t0}, {s.t0}, {s.t1}
        s_add_u32 {s.t0}, {s.t0}, {WS_Y1}
        s_add_u32 {s.t1}, {s.t0}, {8192-1024}
        buffer_load_dwordx4 {s.c_ga}, {s.sws}, {s.t0} offen {ldflag} lds ;@gy
        buffer_load_dwordx4 {s.c_ga}, {s.sws}, {s.t1} offen offset:1024 {ldflag} lds ;@gy""")
        s.vfree('c_ga')
    def c_part1(s):
        A = s.A; F = s.v('cF', 8); D = [[s.v(f'cD{i}{x}', 4) for x in 'ri'] for i in range(2)]
        s.rd_pairs(F, s.c_ua, [1024*c for c in range(4)])
        for i in range(2): A(f"{M16} {D[i][0]}, {s.C3r}, {F[4*i:4*i+4]}, 0\n {M16} {D[i][1]}, {s.C3i}, {F[4*i:4*i+4]}, 0")
        for i in range(2):
            for c in range(4): A(f"v_cvt_pk_bf16_f32 {F[4*i+c]}, {D[i][0][c]}, {D[i][1][c]}")
            A(f"ds_write_b128 {s.c_ew}, {F[4*i:4*i+4]} offset:{16*i}")
        s.vfree('c_ua', 'c_ew', 'C3r', 'C3i')
    def c_part2(s):
        A = s.A; F = s.cF; D = [[s.cD0r, s.cD0i], [s.cD1r, s.cD1i]]
        Sp = [[s.v(f'cS{i}{x}', 4) for x in 'ri'] for i in range(2)]; tmp = s.v('ctmp', 4)
        s.rd_pairs(F, s.c_er, [0]*4)
        for i in range(2):
            U = F[4*i:4*i+4]
            A(f"{M16} {D[i][0]}, {U}, {s.CGr}, 0\n {M16} {D[i][1]}, {U}, {s.CGi}, 0\n {M16} {Sp[i][0]}, {U}, {s.SCr}, 0\n {M16} {Sp[i][1]}, {U}, {s.SCi}, 0")
        for i in range(2):
            for x in range(2): A(f"v_cndmask_b32 {D[i][x][0]}, {D[i][x][0]}, {Sp[i][x][0]}, {s.mq0}")
            s.cmul(D[i][0], D[i][1], D[i][0], D[i][1], s.T512c, s.T512s, tmp, True)
            for c in range(4): A(f"v_cvt_pk_bf16_f32 {F[4*i+c]}, {D[i][0][c]}, {D[i][1][c]}")
        for i in range(2):
            U = F[4*i:4*i+4]
            A(f"{M16} {D[i][0]}, {U}, {s.C1x}, 0\n {M16} {D[i][1]}, {U}, {s.C1y}, 0")
        s.vfree('cS0r', 'cS0i', 'cS1r', 'cS1i', 'ctmp', 'c_er', 'CGr', 'CGi', 'SCr', 'SCi', 'cF')
    def rowoff(s, dst, extra):
        s.A(f"""s_lshl_b32 {dst[0]}, {s.w}, 9
        s_add_u32 {dst[0]}, {dst[0]}, {s.p}
        s_lshl_b32 {dst[0]}, {dst[0]}, 10""")
        if extra: s.A(f"s_add_u32 {dst[0]}, {dst[0]}, {extra}")
        s.A(f"s_add_u32 {dst[1]}, {dst[0]}, 262144")
    def f_oload(s, ldflag):
        A = s.A; O = s.v('fO', 8); so = s.sg('_so2', 2); s.rowoff(so, WS_O)
        for i in range(2):
            for y in range(2): A(f"buffer_load_dwordx2 {O[4*i+2*y:4*i+2*y+2]}, {s.c_xo}, {s.sws}, {so[i]} offen offset:{512*y} {ldflag} ;@old")
    def f_xread(s):
        A = s.A; X = s.v('fX', 8); t = s.v('_t')
        A(f"s_lshl_b32 {s.t0}, {s.w}, 11\n s_add_u32 {s.t0}, {s.t0}, {L_XR}\n v_add_u32 {t}, {s.t0}, {s.c_xo}")
        for i in range(2):
            for y in range(2): A(f"ds_read_b64 {X[4*i+2*y:4*i+2*y+2]}, {t} offset:{1024*i+512*y}")
        s.vfree('_t')
    def f_final(s, waito):
        A = s.A; D = [[s.cD0r, s.cD0i], [s.cD1r, s.cD1i]]; O = s.fO; X = s.fX
        xf = s.v('fxf', 16); of = s.v('fof', 16); e = s.v('fe', 16); so = s.sg('_so', 2); nr = s.v('fnr', 2)
        s.rowoff(so, 0)
        A("s_waitcnt lgkmcnt(0)")
        for k in range(8): A(f"v_lshlrev_b32 {xf[2*k]}, 16, {X[k]}\n v_and_b32 {xf[2*k+1]}, 0xffff0000, {X[k]}")
        for i in range(2):
            A(f"v_mov_b32 {nr[i]}, {fl(-1.4426950408889634)}\n v_mul_f32 {nr[i]}, {s.r01[i]}, {nr[i]}")
            for y in range(2):
                for h in (0, 2): A(f"v_pk_mul_f32 {D[i][y][h:h+2]}, {D[i][y][h:h+2]}, {s.r01} op_sel:[0,{i}] op_sel_hi:[1,{i}]")
        A(waito)
        for g in range(4):
            i, y = divmod(g, 2); b = 4*g
            for k in range(2): A(f"v_lshlrev_b32 {of[b+2*k]}, 16, {O[2*g+k]}\n v_and_b32 {of[b+2*k+1]}, 0xffff0000, {O[2*g+k]}")
            for h in (0, 2): A(f"v_pk_mul_f32 {e[b+h:b+h+2]}, {of[b+h:b+h+2]}, {nr} op_sel:[0,{i}] op_sel_hi:[1,{i}]")
            for c in range(4): A(f"v_exp_f32 {e[b+c]}, {e[b+c]}")
            for h in (0, 2): A(f"v_pk_mul_f32 {of[b+h:b+h+2]}, {of[b+h:b+h+2]}, {D[i][y][h:h+2]}")
            for h in (0, 2): A(f"v_pk_add_f32 {e[b+h:b+h+2]}, {e[b+h:b+h+2]}, 1.0 op_sel_hi:[1,0]")
            for c in range(4): A(f"v_rcp_f32 {e[b+c]}, {e[b+c]}")
            for h in (0, 2): A(f"v_pk_fma_f32 {of[b+h:b+h+2]}, {of[b+h:b+h+2]}, {e[b+h:b+h+2]}, {xf[b+h:b+h+2]}")
            for k in range(2): A(f"v_cvt_pk_bf16_f32 {O[2*g+k]}, {of[b+2*k]}, {of[b+2*k+1]}")
            A(f"buffer_store_dwordx2 {O[2*g:2*g+2]}, {s.c_xo}, {s.sout}, {so[i]} offen offset:{512*y}")
        s.sfree('_so')
    def text(s):
        body = s.A.finish()
        head = f".globl {s.name}\n.p2align 8\n.type {s.name},@function\n{s.name}:\n"
        nv = 256 + s.AC.hw if s.AC.hw else s.V.hw
        acc = 256 if s.AC.hw else -(-s.V.hw // 4) * 4
        desc = f""".amdhsa_kernel {s.name}
  .amdhsa_next_free_vgpr {nv}
  .amdhsa_next_free_sgpr 102
  .amdhsa_accum_offset {acc}
  .amdhsa_group_segment_fixed_size 0
  .amdhsa_kernarg_size 72
  .amdhsa_user_sgpr_count 2
  .amdhsa_user_sgpr_kernarg_segment_ptr 1
  .amdhsa_system_sgpr_workgroup_id_x 1
.end_amdhsa_kernel
"""
        return head + body, desc
```

```python
import numpy as np
def bf(x):
    x = np.asarray(x, np.float32)
    u = x.view(np.uint32).astype(np.uint64)
    r = ((u + 0x7FFF + ((u >> 16) & 1)) >> 16).astype(np.uint32) << 16
    return r.astype(np.uint32).view(np.float32)
def bfc(z): return bf(z.real.astype(np.float32)) + 1j * bf(z.imag.astype(np.float32))
S, D, F = 2048, 512, 1376
def make_inputs(seed=0, mean=0.0):
    g = np.random.default_rng(seed)
    x = bf(bf(g.standard_normal((S, D))) * 0.05 + mean)
    wr = bf(bf(bf(g.standard_normal((S, 257))) * 0.2) * 0.02); wi = bf(bf(bf(g.standard_normal((S, 257))) * 0.2) * 0.02)
    w1 = bf(bf(g.standard_normal((D, F))) * 0.1); w2 = bf(bf(g.standard_normal((F, D))) * 0.1)
    return x, wr, wi, w1, w2
def reference(x, wr, wi, w1, w2):
    m = bf(x.astype(np.float64).mean(1, keepdims=True)); v = bf(x.astype(np.float64).var(1, keepdims=True))
    xn = bf(bf(x - m) / bf(np.sqrt(bf(v + np.float32(1e-5)))))
    X = np.fft.rfft2(xn.astype(np.float64)) * (wr + 1j * wi)
    s = bf(np.fft.irfft2(X, s=(S, D)))
    h = np.maximum(bf(xn @ w1), 0); o = bf(h @ w2)
    g = bf(o / (1 + np.exp(-o)))
    return bf(x + bf(s * g)), s, o
def e(n, N): return np.exp(-2j * np.pi * np.asarray(n, np.float64) / N)
def model(x, wr, wi, w1, w2):
    mean = x.astype(np.float64).mean(1); var = x.astype(np.float64).var(1)
    r = (1.0 / bf(np.sqrt(bf(bf(var) + np.float32(1e-5))))).astype(np.float32)
    mb = bf(mean)
    a = np.arange(32); b = np.arange(16); k1 = np.arange(16); o = np.arange(16)
    xr = x.reshape(S, 32, 16)
    B1 = bfc(e(np.outer(a, k1), 32)); B1r = B1.real.copy(); B1i = B1.imag.copy(); B1i[:, 0] = (-1.0) ** a
    D1 = np.einsum('sab,ak->sbk', xr, B1r) + 1j * np.einsum('sab,ak->sbk', xr, B1i)
    D1[:, :, 0] -= D1[:, 0:1, 0].real
    U = bfc(D1 * e(np.outer(b, k1), 512)[None])
    k2 = np.where(o % 2 == 0, o // 2, 15 - o // 2)
    C2 = bfc(e(np.outer(b, k2), 16))
    D2 = np.einsum('sbk,bo->sko', U, C2)
    D2[:, :, 1::2] = np.conj(D2[:, :, 1::2])
    Cs = bfc(e(np.outer(b, o), 32))
    P = U[:, :, 0].real; Q = U[:, :, 0].imag
    sp = np.where((o % 2 == 0)[None], P @ Cs, Q @ Cs)
    sp[:, 0] = P @ ((-1.0) ** b)
    D2[:, 0, :] = sp
    D2 = bfc(D2 * r[:, None, None])
    t = np.where((o % 2 == 0)[None, :], k1[:, None], (16 - k1[:, None]) % 16)
    sig = (16 * o[None, :] + t - 1) % 256
    X1 = np.zeros((S, 256), complex); X1[:, sig.ravel()] = D2.reshape(S, 256)
    X1 = X1.reshape(8, 256, 256)
    ka = np.arange(8); sa = np.arange(8); sb = np.arange(256)
    A3 = bfc(e(ka[None, :, None] * (256 * sa[None, None, :] + sb[:, None, None]), 2048))
    U3 = bfc(np.einsum('pka,aps->pks', A3, X1))
    F16 = bfc(e(np.outer(np.arange(16), np.arange(16)), 16)); T = e(np.outer(np.arange(16), np.arange(16)), 256)
    Z = U3.reshape(16, 16, 8, 256)
    Z = bfc(np.einsum('abks,ac->bcks', Z, F16) * T[:, :, None, None])
    Z = np.einsum('bcks,bd->dcks', Z, F16)
    W = (wr + 1j * wi)[:, 1:].reshape(16, 16, 8, 256)
    Z = bfc(Z * W)
    Z = bfc(np.einsum('dcks,db->cbks', Z, F16.conj()) * T.conj()[:, :, None, None])
    V = bfc(np.einsum('cbks,ca->abks', Z, F16.conj())).reshape(256, 8, 256)
    Y1 = bfc(np.einsum('pka,pks->aps', A3.conj(), V)).reshape(S, 256)
    Zc = Y1[:, sig.ravel()].reshape(S, 16, 16)
    Zf = Zc.copy(); Zf[:, :, 1::2] = np.conj(Zf[:, :, 1::2])
    R = np.einsum('sko,bo->skb', Zf, C2.conj())
    z0 = Zc[:, 0, :]
    ev = (o % 2 == 0) & (o > 0); od = o % 2 == 1
    Pp = (z0[:, ev] @ Cs.conj().T[ev]).real + 0.5 * z0[:, 0:1].real * ((-1.0) ** b)[None]
    Qp = (z0[:, od] @ Cs.conj().T[od]).real
    R[:, 0, :] = Pp + 1j * Qp
    R = bfc(R * np.conj(e(np.outer(k1, b), 512))[None])
    y = (np.einsum('skb,ak->sab', R.real, B1r) + np.einsum('skb,ak->sab', R.imag, B1i)) * 2.0 ** -19
    s = bf(y.reshape(S, D))
    c = w1.astype(np.float64).sum(0)
    h = bf(np.maximum(x.astype(np.float64) @ w1 - mb[:, None] * c[None], 0))
    op = bf(h.astype(np.float64) @ w2)
    oo = op * r[:, None]
    g = bf(oo / (1 + np.exp(-oo)))
    return bf(x + bf(s * g)), s, oo, dict(U3=U3, V=V, h=h, op=op, r=r, mb=mb)
if __name__ == "__main__":
    for mean in (0.0, 0.5):
        inp = make_inputs(0, mean)
        ref, s0, o0 = reference(*inp); out, s1, o1, _ = model(*inp)
        print("mean", mean, "thr", np.abs(ref).max() / 32, "maxerr", np.abs(ref - out).max(), "rms", np.sqrt(((ref - out) ** 2).mean()),
              "s relrms", np.sqrt(((s0 - s1) ** 2).mean() / (s0 ** 2).mean()), "o relrms", np.sqrt(((o0 - o1) ** 2).mean() / (o0 ** 2).mean()))
```

```python
import numpy as np
from model import bf
l = np.arange(64); n = l & 15; q = l >> 4
def u32(x): return np.asarray(x, np.float32).view(np.uint32)
def pk(lo, hi): return (u32(bf(lo)) >> 16) | (u32(bf(hi)) & 0xffff0000)
def cs(num, N):
    a = 2 * np.pi * (np.asarray(num) % N) / N
    c = np.cos(a); s = np.sin(a); c[np.abs(c) < 1e-12] = 0; s[np.abs(s) < 1e-12] = 0
    return c, s
kk = [4 * q + c for c in range(4)]
def T(N):
    x = [cs(k * n, N) for k in kk]; return [u32(a[0]) for a in x], [u32(a[1]) for a in x]
def B1():
    a = [16 * (j >> 2) + 4 * q + (j & 3) for j in range(8)]
    x = [cs(aa * n, 32) for aa in a]
    im = [np.where(n == 0, (-1.0) ** aa, -xx[1]) for aa, xx in zip(a, x)]
    return [pk(x[2*h][0], x[2*h+1][0]) for h in range(4)], [pk(im[2*h], im[2*h+1]) for h in range(4)]
def F16():
    x = [cs(k * n, 16) for k in kk]
    return dict(FWr=[pk(c, s) for c, s in x], FWi=[pk(-s, c) for c, s in x], IVr=[pk(c, -s) for c, s in x], IVi=[pk(s, c) for c, s in x],
                CGr=[pk(c, np.where(q >= 2, s, -s)) for c, s in x], CGi=[pk(s, np.where(q >= 2, -c, c)) for c, s in x])
def kappa(k): return np.where(k == 0, 16, 2 * k + (k >= 8))
def SA():
    x = [cs(k * kappa(n), 32) for k in kk]; z = np.zeros(64)
    f = lambda v: np.where(n < 8, pk(v, z), pk(z, v))
    return [f(c) for c, s in x], [f(-s) for c, s in x]
def SC():
    x = [cs(kappa(k) * n, 32) for k in kk]; r = []; i = []
    for k, (c, s) in zip(kk, x):
        c = np.where(k == 0, 0.5 * c, c)
        r.append(np.where(q < 2, pk(c, -s), 0)); i.append(np.where(q >= 2, pk(c, s), 0))
    return r, i
def C1():
    out = []
    for add in (0, 16):
        a = n + add; fr = []
        for k in kk:
            c, s = cs(k * a, 32); ms = np.where(k == 0, (-1.0) ** a, -s)
            fr.append(pk(c * 2.0**-19, ms * 2.0**-19))
        out.append(fr)
    return out
def sig_unit(k1, k2):
    t0 = 32 * k2 + k1; t1 = 512 - t0 - np.where(k1 == 0, 16, 0)
    sg = (np.where(k2 < 8, t0, t1) - 1) & 255
    return sg + (sg >> 5)
class Table:
    def __init__(self): self.regs = []
    def add(self, quad):
        assert len(quad) == 4
        self.regs.append(np.stack([np.asarray(x).astype(np.uint32) for x in quad], axis=1)); return len(self.regs) - 1
    def text(self, label):
        o = [".p2align 8", f"{label}:"]
        for r in self.regs:
            f = r.reshape(-1)
            for i in range(0, 256, 8): o.append(".long " + ",".join("0x%x" % v for v in f[i:i+8]))
        return "\n".join(o) + "\n"
```

```python
import sys
from comp import *
import tables as TB
import numpy as np
KN = "recurrent_scan__spectral_gfnet__dense_activation_relu__prompt_kernel"
F1 = WS_FLAG; F3 = WS_FLAG + 4096; F2 = WS_FLAG + 8192; F4 = WS_FLAG + 12288; FG = WS_FLAG + 16384
OPT = dict(a.split('=') for a in sys.argv[2:] if '=' in a)
class P(K):
    def __init__(s):
        super().__init__(KN); s.S = Regs('s', 3, 100); s.tail = []; s.tb = TB.Table()
    def lab(s, x): return f"L_{x}"
    def cap(s, fn, *a):
        out = []
        class C:
            def __call__(c, t):
                if isinstance(t, (list, tuple)):
                    for x in t: c(x)
                else: out.extend(l.strip() for l in t.split('\n') if l.strip())
        old = s.A; s.A = C(); fn(*a); s.A = old; return out
    def stamp(s, tag=''):
        if not s.STAMPS: return
        if not hasattr(s, 'tags'): s.tags = []; s.sg('_sp', 4, 2); s.v('_sv'); s.prev = None
        if tag not in s.tags: s.tags.append(tag)
        i = s.tags.index(tag)
        s.A(f"s_memrealtime {s._sp[2*(i%2):2*(i%2)+2]}")
        if i > 0: s.A(f"v_writelane_b32 {s._sv}, {s._sp[2*((i-1)%2)]}, {i-1}")
    def end(s):
        A = s.A
        if s.STAMPS:
            A("s_waitcnt vmcnt(0)"); s.stamp('end'); n = len(s.tags)
            A(f"""s_waitcnt lgkmcnt(0)
            v_writelane_b32 {s._sv}, {s._sp[2*((n-1)%2)]}, {n-1}
            s_lshl_b32 {s.t0}, s2, 2
            s_add_u32 {s.t0}, {s.t0}, {s.w}
            s_lshl_b32 {s.t0}, {s.t0}, 7
            s_add_u32 {s.t0}, {s.t0}, {32<<20}
            v_lshl_add_u32 v0, {s.l}, 2, {s.t0}
            s_mov_b64 exec, 0xffffffff
            global_store_dword v0, {s._sv}, {s.sws[0:2]}""")
        A(f"{s.lab('end')}:\n s_endpgm")
        A(s.tail)
        A("L_codeend:")
    def tload(s, name, quad):
        i = s.tb.add(quad); r = s.v(name, 4)
        base = s.stb if i < 8 else s.stb2
        s.A(f"global_load_dwordx4 {r}, {s.l16}, {base} offset:{(i%8)*1024-4096} ;@tb")
        return r
    def prologue(s):
        A = s.A
        s.stamp('start')
        for nm in ('sx', 'sw1', 'sws', 'swr', 'swi', 'sw2', 'sout'): s.sg(nm, 4, 4)
        s.sg('stb', 2); s.sg('stb2', 2); s.sg('spc', 2)
        s.v('l'); s.v('n'); s.v('q'); s.v('l16')
        for nm in ('w', 'rb', 'fs', 'p', 't0', 't1', 'xcd', 'j', 'tag', 'spin'): s.sg(nm)
        A(f"""s_load_dwordx2 {s.sx[0:2]}, s[0:1], 0
        s_load_dwordx2 {s.sw1[0:2]}, s[0:1], 32
        s_load_dwordx2 {s.sws[0:2]}, s[0:1], 64
        s_cmp_ge_u32 s2, 256
        s_cbranch_scc1 {s.lab('end')}
        s_getpc_b64 {s.spc}
        L_pc:
        s_add_u32 {s.stb[0]}, {s.spc[0]}, tbl@rel32@lo+4+4096
        s_addc_u32 {s.stb[1]}, {s.spc[1]}, tbl@rel32@hi+12+4096
        v_and_b32 {s.l}, 63, v0
        v_lshlrev_b32 {s.l16}, 4, {s.l}
        s_add_u32 {s.stb2[0]}, {s.stb[0]}, 8192
        s_addc_u32 {s.stb2[1]}, {s.stb[1]}, 0""")
        t = s.v('_t'); u = s.v('cpf')
        A(f"""s_lshr_b32 {s.j}, s2, 3
        s_and_b32 {s.t0}, {s.j}, 7
        s_lshl_b32 {s.t0}, {s.t0}, 12
        v_lshrrev_b32 {t}, 3, v0
        v_lshl_add_u32 {t}, {t}, 7, {s.t0}
        v_min_u32 {t}, L_codeend-L_pc-4, {t}
        global_load_dword {u}, {t}, {s.spc} ;@cpf""")
        s.vfree('_t')
        r, i = TB.B1(); s.tload('B1r', r); s.tload('B1i', i)
        c, si = TB.T(512); s.tload('T512c', c); s.tload('T512s', si)
        f = TB.F16(); s.tload('FWr', f['FWr']); s.tload('FWi', f['FWi'])
        r, i = TB.SA(); s.tload('SAr', r); s.tload('SAi', i)
        n, q = TB.n, TB.q
        s.tload('a_wr', [L_E + 16 * TB.sig_unit(k, n) for k in TB.kk])
        m = s.tload('amisc', [L_E + 16 * (8*(n >> 2) + 4*(q >> 1) + (n & 3)) + EH * (q & 1), 1024*(n >> 1) + 32*q + 16*(n & 1),
                              TB.u32(np.where(n == 0, 1.0, 0.0)), TB.u32(np.where(n < 8, 1.0, -1.0))])
        s.a_rd, s.a_st, s.mn0, s.sgn = m[0], m[1], m[2], m[3]
        A(f"""s_load_dwordx2 {s.swr[0:2]}, s[0:1], 8
        s_load_dwordx2 {s.swi[0:2]}, s[0:1], 16
        s_load_dwordx2 {s.sw2[0:2]}, s[0:1], 40
        s_load_dwordx2 {s.sout[0:2]}, s[0:1], 48
        v_lshrrev_b32 {s.q}, 6, v0
        v_and_b32 {s.n}, 15, v0
        v_readfirstlane_b32 {s.w}, {s.q}
        v_lshrrev_b32 {s.q}, 4, {s.l}
        s_and_b32 {s.xcd}, s2, 7
        s_and_b32 {s.t0}, {s.j}, 3
        s_lshl_b32 {s.rb}, {s.xcd}, 2
        s_add_u32 {s.rb}, {s.rb}, {s.t0}
        s_lshr_b32 {s.fs}, s2, 5
        s_lshl_b32 {s.p}, {s.rb}, 3
        s_add_u32 {s.p}, {s.p}, {s.fs}""")
        for nm, sz in (('sx', 2097152 + 2048), ('sw1', 1409024), ('sws', WS_SIZE), ('swr', 2048*514), ('swi', 2048*514), ('sw2', 1409024), ('sout', 2097152)):
            r = getattr(s, nm); A(f"s_mov_b32 {r[2]}, {sz}\n s_mov_b32 {r[3]}, 0x20000")
        s.sfree('stb', 'stb2', 'spc')
    def a_setup(s):
        A = s.A; s.v('a_trad'); s.v('sel0'); s.v('sel1'); s.sg('mq0', 2)
        A(f"""s_lshl_b32 {s.t0}, {s.w}, 11
        s_add_u32 {s.t0}, {s.t0}, {L_XR}
        v_lshl_add_u32 {s.a_trad}, {s.l}, 3, {s.t0}
        v_mov_b32 {s.sel0}, 0x3f80
        v_mov_b32 {s.sel1}, 1.0
        s_mov_b64 {s.mq0}, 0xffff
        s_lshr_b32 {s.t0}, {s.w}, 1
        s_mul_i32 {s.t0}, {s.t0}, {EH}
        s_and_b32 {s.t1}, {s.w}, 1
        s_lshl_b32 {s.t1}, {s.t1}, 3
        s_add_u32 {s.t0}, {s.t0}, {s.t1}
        s_mul_i32 {s.t1}, {s.w}, {66*16}
        @wait tb""")
        for c in range(4): A(f"v_add_u32 {s.a_wr[c]}, {s.t0}, {s.a_wr[c]}")
        A(f"v_add_u32 {s.a_rd}, {s.t1}, {s.a_rd}")
        s.vfree('cpf')
    def vfree(s, *names):
        names = [x for x in names if x not in ('a_rd', 'a_st', 'mn0', 'sgn')]
        if 'a_wr' in names: names.append('amisc')
        super().vfree(*names)
    def flags_setup(s):
        A = s.A; s.v('vtag'); s.v('pa'); s.v('pg'); s.v('pv'); s.sg('fo_all'); s.sg('fo_grp'); s.sg('po_grp')
        A(f"""s_mul_i32 {s.tag}, {s.tag}, 1664525
        s_add_u32 {s.tag}, {s.tag}, 1013904223
        v_mov_b32 {s.vtag}, {s.tag}
        v_lshlrev_b32 {s.pa}, 4, v0
        v_and_b32 {s.pg}, 0x70, {s.pa}
        v_add_u32 {s.pa}, {F1}, {s.pa}
        s_lshl_b32 {s.po_grp}, {s.rb}, 7
        s_add_u32 {s.po_grp}, {s.po_grp}, {F2}
        v_add_u32 {s.pg}, {s.po_grp}, {s.pg}
        s_lshl_b32 {s.fo_all}, s2, 4
        s_add_u32 {s.fo_all}, {s.fo_all}, {F1}
        s_lshl_b32 {s.fo_grp}, {s.p}, 4
        s_add_u32 {s.fo_grp}, {s.fo_grp}, {F2}
        s_cmp_eq_u32 {s.w}, 0
        s_cselect_b32 {s.fo_all}, {s.fo_all}, {WS_SIZE}
        s_cselect_b32 {s.fo_grp}, {s.fo_grp}, {WS_SIZE}
        s_mov_b32 {s.spin}, 0
        s_mov_b32 {s.po_grp}, 4096""")
    def flag(s, which):
        so = s.fo_all if which in (1, 3) else s.fo_grp
        o = [f"s_mov_b64 exec, 1\n buffer_store_dword {s.vtag}, off, {s.sws}, {so} sc1 ;@flag{which}\n s_mov_b64 exec, -1"]
        if which in (1, 2): o.append(f"s_add_u32 {so}, {so}, 4096")
        return o
    def poll_ins(s, which):
        ad = s.pa if which in (1, 3) else s.pg
        return f"buffer_load_dword {s.pv}, {ad}, {s.sws}, {0 if which in (1, 2) else s.po_grp} offen sc1"
    def poll_issue(s, which): return [s.poll_ins(which) + f" ;@poll{which}"]
    def poll_check(s, which):
        s.tail += f"""L_retry{which}:
        s_add_u32 {s.spin}, {s.spin}, 1
        s_cmp_ge_u32 {s.spin}, 40000
        s_cbranch_scc1 L_back{which}
        s_sleep 2
        {s.poll_ins(which)}
        s_waitcnt vmcnt(0)
        v_cmp_ne_u32 vcc, {s.tag}, {s.pv}
        s_cbranch_vccnz L_retry{which}
        s_branch L_back{which}""".split('\n')
        return [f"@wait poll{which}", f"v_cmp_ne_u32 vcc, {s.tag}, {s.pv}", f"s_cbranch_vccnz L_retry{which}", f"L_back{which}:"]
    def g1_main(s, w3, extra, also):
        A = s.A
        A("@wait st0\n s_barrier")
        A(s.g1_reads(0, w3))
        for step in range(16):
            fill = []
            if step % 2 == 1:
                nx = step // 2 + 1
                A("@wait lgkm=0 " + (f"st{nx} " if nx < 8 else "") + also.get(step, "")); A("s_barrier")
            else: A("@wait lgkm=0 " + also.get(step, ""))
            if step in (1, 7, 15): s.stamp(f'g1s{step}')
            if step < 15: fill += s.g1_reads(step + 1, w3)
            fill += extra.get(step, [])
            mf = s.g1_mfmas(step, w3)
            for i, m in enumerate(mf):
                A(m)
                left = len(mf) - i
                k = 1 if len(fill) < 2 * left - 1 and len(fill) <= left else -(-len(fill) // left)
                for x in fill[:k]: A(x)
                fill = fill[k:]
        if w3:
            t = s.v('_t', 4); ad = s.v('_ad')
            A(f"v_lshlrev_b32 {ad}, 4, {s.n}\n v_add_u32 {ad}, {L_MEAN}, {ad}")
            for mt in range(4): A(f"v_mul_f32 {t[mt]}, {fl(-1/512)}, {s.acc1[32+4*mt]}")
            for mt in range(4): A(f"v_cvt_pk_bf16_f32 {t[mt]}, {t[mt]}, {t[mt]}")
            for mt in range(4): A(f"v_lshlrev_b32 {t[mt]}, 16, {t[mt]}")
            A(f"ds_write_b128 {ad}, {t}\n s_waitcnt lgkmcnt(0)")
            s.vfree('_t', '_ad')
    def g2_hsrd(s):
        A = s.A; r = s.sg('sh', 4, 4)
        A(f"""s_mul_i32 {s.t0}, {s.rb}, 86
        s_mul_i32 {s.t1}, {s.w}, 22
        s_add_u32 {s.t0}, {s.t0}, {s.t1}
        s_lshl_b32 {s.t0}, {s.t0}, 11
        s_add_u32 {s.t0}, {s.t0}, {WS_H}
        s_add_u32 {r[0]}, {s.sws[0]}, {s.t0}
        s_addc_u32 {r[1]}, {s.sws[1]}, 0
        s_cmp_eq_u32 {s.w}, 3
        s_cselect_b32 {r[2]}, 20, 22
        s_lshl_b32 {r[2]}, {r[2]}, 11
        s_mov_b32 {r[3]}, 0x20000""")
        so = s.sg('hso', 11, 1)
        for i in range(11): A(f"s_mov_b32 {so[i]}, {4096*i}")
    def const_IV(s):
        s.v('IVr', 4); s.v('IVi', 4)
        for c in range(4): s.A(f"v_xor_b32 {s.IVr[c]}, 0x80000000, {s.FWr[c]}\n v_xor_b32 {s.IVi[c]}, 0x8000, {s.FWi[c]}")
    def const_CG(s):
        m = s.v('_m'); s.v('CGr', 4); s.v('CGi', 4)
        s.A(f"v_lshlrev_b32 {m}, 30, {s.q}\n v_and_b32 {m}, 0x80000000, {m}")
        for c in range(4): s.A(f"v_xor_b32 {s.CGr[c]}, {s.IVr[c]}, {m}\n v_xor_b32 {s.CGi[c]}, {s.IVi[c]}, {m}")
        s.vfree('_m')
def sprinkle(base, ins, first, every):
    out = []; ins = list(ins)
    for i, x in enumerate(base):
        out.append(x)
        if ins and i >= first and (i - first) % every == 0: out.append(ins.pop(0))
    return out + ins

def build():
    k = P(); A = k.A; ST = "sc1"; LD = "sc1"
    k.prologue(); k.g1_setup_dma()
    A(f"""s_waitcnt lgkmcnt(0)
    s_sub_u32 {k.sx[0]}, {k.sx[0]}, 2048
    s_subb_u32 {k.sx[1]}, {k.sx[1]}, 0""")
    k.stamp('karg'); k.xr_issue(); A(k.g1_dma(0))
    A(f"s_mov_b32 {k.t0}, {FG}\n s_load_dword {k.tag}, {k.sws[0:2]}, {k.t0}")
    k.const_A3(); k.a_setup(); k.g1_setup_rd()
    d1 = k.g1_dma(1); A(d1[:5])
    A("s_waitcnt lgkmcnt(0)"); k.flags_setup()
    k.stamp('consts'); A("@wait xr"); k.stamp('xin')
    A(sprinkle(k.cap(k.a_part1, ""), d1[5:] + k.g1_dma(2), 12, 9))
    k.stamp('a1')
    A("s_waitcnt lgkmcnt(0)\n s_barrier")
    k.a_part2(ST); k.stamp('a2')
    k.b_setup(); k.g2_setup()
    d3 = k.g1_dma(3); A(d3[:5])
    extra = {0: d3[5:]}
    for st in range(4):
        d = k.g1_dma(st + 4); extra[2*st+1] = d[:5]; extra[2*st+2] = d[5:]
    fs = int(OPT.get('f1step', 3))
    extra[fs] = k.flag(1) + extra[fs]
    also = {fs: 'x1'}
    extra[8] = extra[8] + k.cap(k.b_wload)
    for g in range(3):
        d = k.g2_wdma(g, g); extra[9+2*g] = d[:6]; extra[10+2*g] = d[6:]
    also[14] = 'W'; extra[14] = k.cap(k.b_wstage) + extra[14]
    extra[15] = k.poll_issue(1)
    A(f"s_cmp_eq_u32 {k.w}, 3\n s_cbranch_scc1 L_w3")
    log = list(A.vmlog)
    k.g1_main(False, extra, also)
    A("s_branch L_g1done\n L_w3:")
    log2 = A.vmlog; A.vmlog = log
    k.g1_main(True, extra, also)
    assert log2 == A.vmlog
    A("L_g1done:\n s_nop 7")
    k.stamp('g1main'); k.g1_epilogue(ST); k.stamp('g1epi')
    k.a('w2f', 176); k.a('hf', 4*k.NH); k.v('acc2', 64)
    A(k.poll_check(1)); A("s_barrier"); k.stamp('f1')
    k.b_gather(LD); A(k.g2_wdma(3, 3))
    for g in range(2):
        A(k.g2_wread(g, g));
        if g == 0: k.base_kn(); k.const_T('T256', 256); k.const_IV()
        else: k.g2_hsrd(); k.g2_red_setup()
        A("s_waitcnt lgkmcnt(0)"); A(k.g2_wdma(4+g, g))
    A(k.g2_wread(2, 2)); k.b_wread()
    k.const_CG(); k.const_32(False, True); k.const_SC(); k.const_C3(); k.c_setup(); k.vfree('kn')
    k.stamp('pre'); A("@wait h\n s_barrier"); A(k.flag(2)); k.stamp('hack')
    A("@wait gx wb3\n s_barrier"); A(k.g2_wread(3, 3)); k.stamp('gx')
    k.b_main()
    A("@wait wb5"); A(k.poll_issue(2)); A(k.g2_wread(4, 0)); A(k.g2_wread(5, 1))
    A("s_waitcnt lgkmcnt(0)\n s_barrier"); k.stamp('b')
    A(k.poll_check(2)); k.stamp('f2')
    NH = k.NH
    for i in range(6): A(k.g2_hload(i, LD))
    k.b_store(ST)
    for i in range(6, NH): A(k.g2_hload(i, LD))
    f3 = int(OPT.get('f3idx', 10)); p3 = int(OPT.get('p3idx', 38))
    for idx in range(44):
        mt, i = divmod(idx, 22); sl = idx % NH
        A(f"@wait h{idx}")
        if idx == 0: k.stamp('h0')
        for nt in range(2):
            acc = k.acc2[32*mt+16*nt:32*mt+16*nt+16]
            A(f"{M32} {acc}, {k.w2f[8*i+4*nt:8*i+4*nt+4]}, {k.hf[4*sl:4*sl+4]}, {acc if i else 0}")
        if idx + NH < 44: A(k.g2_hload(idx + NH, LD))
        if idx == f3: A("@wait y1\n s_barrier"); A(k.flag(3))
        if 24 <= idx < 28: A(k.g2_red_write(0)[2*(idx-24):2*(idx-24)+2])
        if idx == 30: A("s_waitcnt lgkmcnt(0)\n s_barrier"); A(k.g2_red_read(0))
        if idx == 33: A("s_waitcnt lgkmcnt(0)")
        if 33 <= idx < 37:
            fin = k.g2_red_fin(0, ST); A(fin[6*(idx-33):6*(idx-33)+6])
        if idx == p3: A(k.poll_issue(3))
    k.stamp('g2main')
    A(k.g2_red_write(1)); A(k.poll_check(3))
    A("s_waitcnt lgkmcnt(0)\n s_barrier"); k.stamp('f3')
    A(k.g2_red_read(1)); k.c_gather(LD)
    A("s_waitcnt lgkmcnt(0)"); A(k.g2_red_fin(1, ST)); k.stamp('g2fin')
    A(f"""s_cmp_eq_u32 s2, 0
    s_cselect_b32 {k.t0}, {k.fo_all}, {WS_SIZE}
    s_add_u32 {k.t0}, {k.t0}, {FG - F3}""")
    A("@wait o1\n s_barrier"); A(k.flag(4)); k.stamp('oack')
    A(f"s_mov_b64 exec, 1\n buffer_store_dword {k.vtag}, off, {k.sws}, {k.t0} sc1\n s_mov_b64 exec, -1")
    k.c_part1(); k.f_xread()
    A("s_waitcnt lgkmcnt(0)\n s_barrier")
    k.c_part2(); k.stamp('c')
    pre = "\n".join(k.poll_issue(4) + k.poll_check(4) + k.cap(k.f_oload, LD) + ["@wait old"])
    k.f_final(pre); k.stamp('fin')
    k.end(); return k
P.STAMPS = 'stamps' in sys.argv[2:]
k = build()
o = open("recurrent_scan__spectral_gfnet__dense_activation_relu__prompt.s.ref").read().split("; Override launch")[0]
o += f"; @launch grid=(256,1,1) block=(256,1,1) lds={L_END}\n"
o += '.amdgcn_target "amdgcn-amd-amdhsa--gfx950"\n.text\n'
b, d = k.text()
o += b + '.section .rodata,"a"\n.p2align 6\n' + d + k.tb.text("tbl")
open(sys.argv[1], "w").write(o)
print("v", k.V.hw, "a", k.AC.hw, "s", k.S.hw, "instrs", len(k.A.lines), "nops", k.A.nops)
if P.STAMPS: open(sys.argv[1] + ".tags", "w").write(" ".join(k.tags))
```

```python
from asmlib import *
import struct
def f2u(x): return struct.unpack('<I', struct.pack('<f', x))[0]
def hx(x): return f"0x{x & 0xffffffff:08x}"
def fl(x): return hx(f2u(x))
M16 = "v_mfma_f32_16x16x32_bf16"; M32 = "v_mfma_f32_32x32x16_bf16"
WS_X1 = 0; WS_Y1 = 2 << 20; WS_H = 4 << 20; WS_O = 10 << 20; WS_R = 12 << 20; WS_FLAG = 13 << 20; WS_SIZE = 14 << 20
L_RING = 0; L_XR = 131072; L_E = L_XR + 8192; EH = 4288; L_U = L_E + 8704; L_MEAN = L_U + 8192; L_END = L_MEAN + 256
RED_S = 8704; SWZ_BITS = 2

class K:
    def __init__(s, name):
        s.name = name; s.A = Asm(); s.V = Regs('v', 1, 256); s.AC = Regs('a', 0, 256); s.S = Regs('s', 22, 100); s.c = {}; s.uid = 0
    def v(s, name, n=1, align=None): r = s.V.alloc(name, n, align); setattr(s, name, r); return r
    def a(s, name, n=1, align=None): r = s.AC.alloc(name, n, align); setattr(s, name, r); return r
    def sg(s, name, n=1, align=None): r = s.S.alloc(name, n, align); setattr(s, name, r); return r
    def vfree(s, *n): s.V.release(*n)
    def afree(s, *n): s.AC.release(*n)
    def sfree(s, *n): s.S.release(*n)
    def lab(s, x): return f"L_{s.name}_{x}"

    def prologue(s):
        A = s.A
        s.stamp('start')
        A(f"""s_load_dwordx16 s[4:19], s[0:1], 0
        s_load_dwordx2 s[20:21], s[0:1], 64
        s_cmp_ge_u32 s2, 256
        s_cbranch_scc1 {s.lab('end')}""")
        s.v('l'); s.v('n'); s.v('q'); s.sg('w'); s.sg('rb'); s.sg('fs'); s.sg('p'); s.sg('t0'); s.sg('t1'); s.sg('xcd'); s.sg('j')
        A(f"""v_lshrrev_b32 {s.q}, 6, v0
        v_and_b32 {s.l}, 63, v0
        v_readfirstlane_b32 {s.w}, {s.q}
        v_and_b32 {s.n}, 15, v0
        v_lshrrev_b32 {s.q}, 4, {s.l}
        s_and_b32 {s.xcd}, s2, 7
        s_lshr_b32 {s.j}, s2, 3
        s_and_b32 {s.t0}, {s.j}, 3
        s_lshl_b32 {s.rb}, {s.xcd}, 2
        s_add_u32 {s.rb}, {s.rb}, {s.t0}
        s_lshr_b32 {s.fs}, s2, 5
        s_lshl_b32 {s.p}, {s.rb}, 3
        s_add_u32 {s.p}, {s.p}, {s.fs}""")
    PTR = dict(x=4, wr=6, wi=8, w1=12, w2=14, out=16, dbg=18, ws=20)
    def srd(s, name, ptr, size, bias=0):
        r = s.sg(name, 4, 4); b = s.PTR[ptr]; A = s.A
        if bias < 0: A(f"s_sub_u32 {r[0]}, s{b}, {-bias}\n s_subb_u32 {r[1]}, s{b+1}, 0")
        elif bias > 0: A(f"s_add_u32 {r[0]}, s{b}, {bias}\n s_addc_u32 {r[1]}, s{b+1}, 0")
        else: A(f"s_mov_b32 {r[0]}, s{b}\n s_mov_b32 {r[1]}, s{b+1}")
        A(f"s_mov_b32 {r[2]}, {size}\n s_mov_b32 {r[3]}, 0x20000")
        return r
    STAMPS = False
    def stamp(s, tag=''):
        if not s.STAMPS: return
        if not hasattr(s, 'stampn'): s.stampn = 0; s.tags = []
        if tag in s.tags: i = s.tags.index(tag)
        else: i = s.stampn; s.stampn += 1; s.tags.append(tag); s.sg(f'_stamp{i}', 2)
        s.A(f"s_memrealtime {getattr(s, f'_stamp{i}')}")
    def end(s, slot=0):
        if s.STAMPS:
            s.A("s_waitcnt vmcnt(0)"); s.stamp('end'); s.A("s_waitcnt lgkmcnt(0)")
            s.A(f"s_lshl_b32 {s.t0}, s2, 2\n s_add_u32 {s.t0}, {s.t0}, {s.w}\n s_lshl_b32 {s.t0}, {s.t0}, 7\n s_add_u32 {s.t0}, {s.t0}, {(32<<20) + slot*(1<<20)}\n v_mov_b32 v1, {s.t0}")
            for i in range(s.stampn):
                s.A(f"v_mov_b32 v2, {getattr(s, f'_stamp{i}')[0]}\n global_store_dword v1, v2, s[20:21] offset:{4*i}")
        s.A(f"{s.lab('end')}:\n s_endpgm")

    def base_kn(s):
        A = s.A; kn = s.v('kn', 4)
        A(f"""v_mul_u32_u24 {kn[0]}, {s.q}, {s.n}
        v_lshlrev_b32 {kn[0]}, 2, {kn[0]}
        v_cvt_f32_u32 {kn[3]}, {s.n}
        v_cvt_f32_u32 {kn[0]}, {kn[0]}
        v_add_f32 {kn[1]}, {kn[0]}, {kn[3]}
        v_add_f32 {kn[2]}, {kn[1]}, {kn[3]}
        v_add_f32 {kn[3]}, {kn[2]}, {kn[3]}""")
    def trig(s, co, si, src, scale):
        A = s.A
        for c in range(4): A(f"v_mul_f32 {si[c]}, {fl(scale)}, {src[c]}")
        for c in range(4): A(f"v_cos_f32 {co[c]}, {si[c]}")
        for c in range(4): A(f"v_sin_f32 {si[c]}, {si[c]}")
    def const_T(s, name, N):
        co = s.v(name + 'c', 4); si = s.v(name + 's', 4); s.trig(co, si, s.kn, 1.0 / N)
    def const_F16(s, fwd, inv, cg):
        A = s.A; co = s.v('_co', 4); si = s.v('_si', 4); s.trig(co, si, s.kn, 1.0 / 16)
        if fwd:
            s.v('FWr', 4); s.v('FWi', 4)
            for c in range(4): A(f"v_cvt_pk_bf16_f32 {s.FWr[c]}, {co[c]}, {si[c]}\n v_cvt_pk_bf16_f32 {s.FWi[c]}, -{si[c]}, {co[c]}")
        if inv:
            s.v('IVr', 4); s.v('IVi', 4)
            for c in range(4): A(f"v_cvt_pk_bf16_f32 {s.IVr[c]}, {co[c]}, -{si[c]}\n v_cvt_pk_bf16_f32 {s.IVi[c]}, {si[c]}, {co[c]}")
        if cg:
            s.v('CGr', 4); s.v('CGi', 4); m = s.v('_m')
            A(f"v_lshlrev_b32 {m}, 30, {s.q}\n v_and_b32 {m}, 0x80000000, {m}")
            for c in range(4):
                if inv: A(f"v_xor_b32 {s.CGr[c]}, {s.IVr[c]}, {m}\n v_xor_b32 {s.CGi[c]}, {s.IVi[c]}, {m}")
                else:
                    A(f"v_cvt_pk_bf16_f32 {s.CGr[c]}, {co[c]}, -{si[c]}\n v_cvt_pk_bf16_f32 {s.CGi[c]}, {si[c]}, {co[c]}")
                    A(f"v_xor_b32 {s.CGr[c]}, {s.CGr[c]}, {m}\n v_xor_b32 {s.CGi[c]}, {s.CGi[c]}, {m}")
            s.vfree('_m')
        s.vfree('_co', '_si')
    def const_32(s, a1, c1):
        A = s.A; co = s.v('_co', 4); si = s.v('_si', 4); s.trig(co, si, s.kn, 1.0 / 32); m = s.v('_m'); t = s.v('_t')
        if a1:
            s.v('B1r', 4); s.v('B1i', 4)
            A(f"""v_and_b32 {m}, 1, {s.n}
            v_mul_u32_u24 {m}, 0x10001, {m}
            v_lshlrev_b32 {m}, 15, {m}
            v_cmp_eq_u32 vcc, 0, {s.n}
            v_mov_b32 {t}, 0xbf803f80""")
            for h in range(2):
                A(f"""v_cvt_pk_bf16_f32 {s.B1r[h]}, {co[2*h]}, {co[2*h+1]}
                v_cvt_pk_bf16_f32 {s.B1i[h]}, -{si[2*h]}, -{si[2*h+1]}
                v_cndmask_b32 {s.B1i[h]}, {s.B1i[h]}, {t}, vcc
                v_xor_b32 {s.B1r[2+h]}, {s.B1r[h]}, {m}
                v_xor_b32 {s.B1i[2+h]}, {s.B1i[h]}, {m}""")
        if c1:
            s.v('C1x', 4); s.v('C1y', 4)
            A(f"""v_lshlrev_b32 {t}, 31, {s.n}
            v_xor_b32 {t}, 0xbf800000, {t}
            v_cmp_gt_u32 vcc, 16, {s.l}
            v_cndmask_b32 {si[0]}, {si[0]}, {t}, vcc""")
            for c in range(4):
                A(f"v_mul_f32 {co[c]}, {fl(2.0**-19)}, {co[c]}\n v_mul_f32 {si[c]}, {fl(2.0**-19)}, {si[c]}")
                A(f"v_cvt_pk_bf16_f32 {s.C1x[c]}, {co[c]}, -{si[c]}")
                if c % 2 == 0: A(f"v_mov_b32 {s.C1y[c]}, {s.C1x[c]}")
                else: A(f"v_xor_b32 {s.C1y[c]}, 0x80008000, {s.C1x[c]}")
        s.vfree('_co', '_si', '_m', '_t')
    def const_SA(s):
        A = s.A; co = s.v('_co', 4); si = s.v('_si', 4); m = s.v('_m'); t = s.v('_t'); s.v('SAr', 4); s.v('SAi', 4)
        A(f"""v_lshrrev_b32 {t}, 3, {s.n}
        v_lshl_add_u32 {m}, {s.n}, 1, {t}
        v_cmp_eq_u32 vcc, 0, {s.n}
        v_lshlrev_b32 {t}, 4, {t}
        v_cndmask_b32 {m}, {m}, 16, vcc
        v_mul_u32_u24 {co[0]}, {s.q}, {m}
        v_lshlrev_b32 {co[0]}, 2, {co[0]}
        v_cvt_f32_u32 {m}, {m}
        v_cvt_f32_u32 {co[0]}, {co[0]}
        v_add_f32 {co[1]}, {co[0]}, {m}
        v_add_f32 {co[2]}, {co[1]}, {m}
        v_add_f32 {co[3]}, {co[2]}, {m}
        v_mov_b32 {m}, 0xffff
        v_lshlrev_b32 {m}, {t}, {m}""")
        s.trig(co, si, co, 1.0 / 32)
        for c in range(4):
            A(f"""v_cvt_pk_bf16_f32 {s.SAr[c]}, {co[c]}, {co[c]}
            v_cvt_pk_bf16_f32 {s.SAi[c]}, -{si[c]}, -{si[c]}
            v_and_b32 {s.SAr[c]}, {s.SAr[c]}, {m}
            v_and_b32 {s.SAi[c]}, {s.SAi[c]}, {m}""")
        s.vfree('_co', '_si', '_m', '_t')
    def const_SC(s):
        A = s.A; co = s.v('_co', 4); si = s.v('_si', 4); m = s.v('_m'); t = s.v('_t'); s.v('SCr', 4); s.v('SCi', 4)
        A(f"""v_lshrrev_b32 {t}, 1, {s.q}
        v_mul_u32_u24 {t}, {t}, {s.n}
        v_cvt_f32_u32 {t}, {t}
        v_lshlrev_b32 {m}, 4, {s.n}
        v_cvt_f32_u32 {m}, {m}
        v_cmp_gt_u32 vcc, 16, {s.l}""")
        for c in range(4): A(f"v_fma_f32 {co[c]}, 2.0, {s.kn[c]}, {t}")
        A(f"v_cndmask_b32 {co[0]}, {co[0]}, {m}, vcc")
        s.trig(co, si, co, 1.0 / 32)
        A(f"""v_mul_f32 {t}, 0.5, {co[0]}
        v_cndmask_b32 {co[0]}, {co[0]}, {t}, vcc
        v_cndmask_b32 {si[0]}, {si[0]}, 0, vcc
        v_cmp_gt_u32 vcc, 32, {s.l}""")
        for c in range(4):
            A(f"""v_cvt_pk_bf16_f32 {s.SCr[c]}, {co[c]}, -{si[c]}
            v_cvt_pk_bf16_f32 {s.SCi[c]}, {co[c]}, {si[c]}
            v_cndmask_b32 {s.SCr[c]}, 0, {s.SCr[c]}, vcc
            v_cndmask_b32 {s.SCi[c]}, {s.SCi[c]}, 0, vcc""")
        s.vfree('_co', '_si', '_m', '_t')
    def const_A3(s):
        A = s.A; co = s.v('_co', 4); si = s.v('_si', 4); m = s.v('_m'); t = s.v('_t'); s.v('A3r', 4); s.v('A3i', 4)
        A(f"""v_and_b32 {t}, 1, {s.q}
        v_lshlrev_b32 {t}, 10, {t}
        v_add_u32 {t}, {s.p}, {t}
        v_lshrrev_b32 {m}, 1, {s.n}
        v_mul_u32_u24 {co[0]}, {m}, {t}
        v_lshlrev_b32 {m}, 8, {m}
        v_cvt_f32_u32 {co[0]}, {co[0]}
        v_cvt_f32_u32 {m}, {m}
        v_lshrrev_b32 {t}, 1, {s.q}
        v_add_f32 {co[1]}, {co[0]}, {m}
        v_add_f32 {co[2]}, {co[1]}, {m}
        v_add_f32 {co[3]}, {co[2]}, {m}
        v_and_b32 {m}, 1, {s.n}
        v_cmp_eq_u32 vcc, {m}, {t}""")
        s.trig(co, si, co, 1.0 / 2048)
        for c in range(4):
            A(f"""v_cvt_pk_bf16_f32 {s.A3r[c]}, {co[c]}, {si[c]}
            v_cvt_pk_bf16_f32 {s.A3i[c]}, -{si[c]}, {co[c]}
            v_cndmask_b32 {s.A3r[c]}, 0, {s.A3r[c]}, vcc
            v_cndmask_b32 {s.A3i[c]}, 0, {s.A3i[c]}, vcc""")
        s.vfree('_co', '_si', '_m', '_t')
    def const_C3(s):
        A = s.A; co = s.v('_co', 4); si = s.v('_si', 4); m = s.v('_m'); t = s.v('_t'); s.v('C3r', 4); s.v('C3i', 4)
        A(f"""v_lshrrev_b32 {t}, 3, {s.n}
        v_and_b32 {m}, 3, {s.n}
        v_lshl_add_u32 {t}, {t}, 2, {m}
        v_lshlrev_b32 {t}, 8, {t}
        v_add_u32 {t}, {s.p}, {t}
        v_lshrrev_b32 {m}, 1, {s.q}
        v_mul_u32_u24 {co[0]}, {m}, {t}
        v_lshlrev_b32 {co[0]}, 2, {co[0]}
        v_cvt_f32_u32 {t}, {t}
        v_cvt_f32_u32 {co[0]}, {co[0]}
        v_bfe_u32 {m}, {s.n}, 2, 1
        v_add_f32 {co[1]}, {co[0]}, {t}
        v_add_f32 {co[2]}, {co[1]}, {t}
        v_add_f32 {co[3]}, {co[2]}, {t}
        v_and_b32 {t}, 1, {s.q}
        v_cmp_eq_u32 vcc, {m}, {t}""")
        s.trig(co, si, co, 1.0 / 2048)
        for c in range(4):
            A(f"""v_cvt_pk_bf16_f32 {s.C3r[c]}, {co[c]}, -{si[c]}
            v_cvt_pk_bf16_f32 {s.C3i[c]}, {si[c]}, {co[c]}
            v_cndmask_b32 {s.C3r[c]}, 0, {s.C3r[c]}, vcc
            v_cndmask_b32 {s.C3i[c]}, 0, {s.C3i[c]}, vcc""")
        s.vfree('_co', '_si', '_m', '_t')
    def e_addr(s, name, k1_is_n):
        A = s.A; d = s.v(name, 4); k = s.v('_k'); t = s.v('_t'); u = s.v('_u')
        A(f"""s_lshr_b32 {s.t0}, {s.w}, 1
        s_mul_i32 {s.t0}, {s.t0}, {EH}
        s_and_b32 {s.t1}, {s.w}, 1
        s_lshl_b32 {s.t1}, {s.t1}, 3
        s_add_u32 {s.t0}, {s.t0}, {s.t1}
        s_add_u32 {s.t0}, {s.t0}, {L_E}""")
        for c in range(4):
            A(f"v_lshl_add_u32 {k}, {s.q}, 2, {c}")
            k1, k2 = (s.n, k) if k1_is_n else (k, s.n)
            A(f"""v_lshl_add_u32 {t}, {k2}, 5, {k1}
            v_cmp_eq_u32 vcc, 0, {k1}
            v_sub_u32 {u}, 512, {t}
            v_subrev_u32 {d[c]}, 16, {u}
            v_cndmask_b32 {u}, {u}, {d[c]}, vcc
            v_cmp_gt_u32 vcc, 8, {k2}
            v_cndmask_b32 {t}, {u}, {t}, vcc
            v_add_u32 {t}, -1, {t}
            v_and_b32 {t}, 255, {t}
            v_lshrrev_b32 {u}, 5, {t}
            v_add_u32 {t}, {t}, {u}
            v_lshl_add_u32 {d[c]}, {t}, 4, {s.t0}""")
        s.vfree('_k', '_t', '_u')

    def cmul(s, outr, outi, dr, di, co, si, tmp, conj):
        A = s.A
        neg = " neg_lo:[0,0,1] neg_hi:[0,0,1]"
        for h in (0, 2):
            P = lambda r: r[h:h+2]
            A(f"v_pk_mul_f32 {tmp[0:2]}, {P(di)}, {P(si)}")
            A(f"v_pk_mul_f32 {tmp[2:4]}, {P(dr)}, {P(si)}")
            A(f"v_pk_fma_f32 {P(outr)}, {P(dr)}, {P(co)}, {tmp[0:2]}" + (neg if conj else ""))
            A(f"v_pk_fma_f32 {P(outi)}, {P(di)}, {P(co)}, {tmp[2:4]}" + ("" if conj else neg))

    def xr_issue(s):
        A = s.A
        A(f"""s_lshl_b32 {s.t0}, {s.w}, 11
        s_add_u32 m0, {s.t0}, {L_XR}
        s_lshl_b32 {s.t0}, {s.w}, 9
        s_add_u32 {s.t0}, {s.t0}, {s.p}
        s_lshl_b32 {s.t0}, {s.t0}, 10
        s_add_u32 {s.t0}, {s.t0}, 2048
        s_add_u32 {s.t1}, {s.t0}, {262144-1024}
        buffer_load_dwordx4 {s.l16}, {s.sx}, {s.t0} offen lds ;@xr
        buffer_load_dwordx4 {s.l16}, {s.sx}, {s.t1} offen offset:1024 lds ;@xr""")
    def a_setup(s):
        A = s.A
        s.v('a_trad'); s.v('a_rd'); s.v('a_st'); s.v('sel0'); s.v('sel1'); s.v('mn0'); s.v('sgn'); s.sg('mq0', 2); t = s.v('_t'); u = s.v('_u')
        A(f"""s_lshl_b32 {s.t0}, {s.w}, 11
        s_add_u32 {s.t0}, {s.t0}, {L_XR}
        v_lshl_add_u32 {s.a_trad}, {s.l}, 3, {s.t0}
        v_mov_b32 {s.sel0}, 0x3f80
        v_mov_b32 {s.sel1}, 1.0
        v_cmp_eq_u32 vcc, 0, {s.n}
        s_mov_b64 {s.mq0}, 0xffff
        v_cndmask_b32 {s.mn0}, 0, 1.0, vcc
        v_cmp_gt_u32 vcc, 8, {s.n}
        s_mul_i32 {s.t0}, {s.w}, {66*16}
        v_cndmask_b32 {s.sgn}, -1.0, 1.0, vcc
        s_add_u32 {s.t0}, {s.t0}, {L_E}
        v_lshrrev_b32 {t}, 2, {s.n}
        v_and_b32 {u}, 3, {s.n}
        v_lshl_add_u32 {t}, {t}, 3, {u}
        v_lshrrev_b32 {u}, 1, {s.q}
        v_lshl_add_u32 {t}, {u}, 2, {t}
        v_and_b32 {u}, 1, {s.q}
        v_mul_u32_u24 {u}, {EH}, {u}
        v_lshl_add_u32 {t}, {t}, 4, {u}
        v_add_u32 {s.a_rd}, {s.t0}, {t}
        v_lshrrev_b32 {t}, 1, {s.n}
        v_lshlrev_b32 {t}, 10, {t}
        v_lshl_add_u32 {t}, {s.q}, 5, {t}
        v_and_b32 {u}, 1, {s.n}
        v_lshl_add_u32 {s.a_st}, {u}, 4, {t}""")
        s.vfree('_t', '_u')
        s.e_addr('a_wr', False)
    def a_part1(s, waitx):
        A = s.A
        F = [s.v('aF0', 4), s.v('aF1', 4)]
        D = [[s.v(f'aD{i}{x}', 4) for x in 'ri'] for i in range(2)]
        Sp = [[s.v(f'aS{i}{x}', 4) for x in 'ri'] for i in range(2)]
        d = s.v('ad', 8); st = s.v('ast', 4); tmp = s.v('atmp', 4); P = s.v('aP', 8)
        s.sg('r01', 4, 2); piv = s.sg('apiv', 2)
        A(waitx)
        for i in range(2):
            A(f"ds_read_b64_tr_b16 {F[i][0:2]}, {s.a_trad} offset:{1024*i}\n ds_read_b64_tr_b16 {F[i][2:4]}, {s.a_trad} offset:{1024*i+512}")
        for i in range(2):
            A(f"s_waitcnt lgkmcnt({2-2*i})")
            A(f"{M16} {D[i][0]}, {F[i]}, {s.B1r}, 0\n {M16} {D[i][1]}, {F[i]}, {s.B1i}, 0")
            A(f"v_readfirstlane_b32 {piv[i]}, {F[i][0]}")
        for i in range(2):
            A(f"s_lshl_b32 {piv[i]}, {piv[i]}, 16\n s_xor_b32 {piv[i]}, {piv[i]}, 0x80000000")
        for i in range(2):
            for c in range(4):
                A(f"v_dot2_f32_bf16 {d[2*c]}, {F[i][c]}, {s.sel0}, {piv[i]}\n v_dot2_f32_bf16 {d[2*c+1]}, {F[i][c]}, {s.sel1}, {piv[i]}")
            A("s_nop 2")
            A(f"""v_pk_mul_f32 {tmp[0:2]}, {d[0:2]}, {d[0:2]}
            v_pk_add_f32 {tmp[2:4]}, {d[0:2]}, {d[2:4]}
            v_pk_fma_f32 {tmp[0:2]}, {d[2:4]}, {d[2:4]}, {tmp[0:2]}
            v_pk_add_f32 {tmp[2:4]}, {tmp[2:4]}, {d[4:6]}
            v_pk_fma_f32 {tmp[0:2]}, {d[4:6]}, {d[4:6]}, {tmp[0:2]}
            v_pk_add_f32 {tmp[2:4]}, {tmp[2:4]}, {d[6:8]}
            v_pk_fma_f32 {tmp[0:2]}, {d[6:8]}, {d[6:8]}, {tmp[0:2]}
            v_add_f32 {st[i]}, {tmp[2]}, {tmp[3]}
            v_add_f32 {st[2+i]}, {tmp[0]}, {tmp[1]}""")
        for i in range(2):
            A(f"v_readfirstlane_b32 {piv[i]}, {D[i][0][0]}")
        A(f"""v_permlane32_swap_b32 {st[0]}, {st[1]}
        v_permlane32_swap_b32 {st[2]}, {st[3]}
        v_add_f32 {st[0]}, {st[0]}, {st[1]}
        v_add_f32 {st[2]}, {st[2]}, {st[3]}""")
        for i in range(2):
            A(f"v_mul_f32 {d[2*i]}, {piv[i]}, {s.mn0}")
        A(f"v_permlane16_swap_b32 {st[0]}, {st[2]}\n v_add_f32 {st[0]}, {st[0]}, {st[2]}")
        red = [f"v_add_f32_dpp {st[0]}, {st[0]}, {st[0]} row_ror:{k} row_mask:0xf bank_mask:0xf" for k in (8, 4, 2, 1)]
        for i in range(2):
            for h in (0, 2):
                A(f"v_pk_add_f32 {D[i][0][h:h+2]}, {D[i][0][h:h+2]}, {d[2*i:2*i+2]} op_sel_hi:[1,0] neg_lo:[0,1] neg_hi:[0,1]")
            A(red[2*i])
            s.cmul(D[i][0], D[i][1], D[i][0], D[i][1], s.T512c, s.T512s, tmp, False)
            A(red[2*i+1])
            for c in range(4): A(f"v_cvt_pk_bf16_f32 {F[i][c]}, {D[i][0][c]}, {D[i][1][c]}")
        A(f"v_mov_b32 {st[1]}, {st[0]}")
        fin = f"""v_permlane16_swap_b32 {st[0]}, {st[1]}
        v_mul_f32 {st[0]}, {fl(1/512)}, {st[0]}
        v_mul_f32 {st[1]}, {fl(1/512)}, {st[1]}
        v_fma_f32 {st[1]}, -{st[0]}, {st[0]}, {st[1]}
        v_max_f32 {st[1]}, 0, {st[1]}
        v_cvt_pk_bf16_f32 {st[1]}, {st[1]}, {st[1]}
        v_lshlrev_b32 {st[1]}, 16, {st[1]}
        v_add_f32 {st[1]}, {fl(1e-5)}, {st[1]}
        v_cvt_pk_bf16_f32 {st[1]}, {st[1]}, {st[1]}
        v_lshlrev_b32 {st[1]}, 16, {st[1]}
        v_sqrt_f32 {st[1]}, {st[1]}
        v_cvt_pk_bf16_f32 {st[1]}, {st[1]}, {st[1]}
        v_lshlrev_b32 {st[1]}, 16, {st[1]}
        v_rcp_f32 {st[1]}, {st[1]}
        v_readlane_b32 {s.r01[0]}, {st[1]}, 0
        v_readlane_b32 {s.r01[2]}, {st[1]}, 32""".split('\n')
        mf = []
        for i in range(2):
            mf += [f"{M16} {D[i][0]}, {F[i]}, {s.FWr}, 0", f"{M16} {D[i][1]}, {F[i]}, {s.FWi}, 0", f"{M16} {Sp[i][0]}, {F[i]}, {s.SAr}, 0", f"{M16} {Sp[i][1]}, {F[i]}, {s.SAi}, 0"]
        for k in range(8):
            A(mf[k]); A(fin[2*k]); A(fin[2*k+1])
        for i in range(2): A(f"v_mul_f32 {d[2*i]}, {s.r01[2*i]}, {s.sgn}")
        for i in range(2):
            for x in range(2): A(f"v_cndmask_b32 {D[i][x][0]}, {D[i][x][0]}, {Sp[i][x][0]}, {s.mq0}")
            for h in (0, 2):
                A(f"v_pk_mul_f32 {D[i][0][h:h+2]}, {D[i][0][h:h+2]}, {s.r01[2*i:2*i+2]} op_sel_hi:[1,0]")
                A(f"v_pk_mul_f32 {D[i][1][h:h+2]}, {D[i][1][h:h+2]}, {d[2*i:2*i+2]} op_sel_hi:[1,0]")
            for c in range(4): A(f"v_cvt_pk_bf16_f32 {P[2*c+i]}, {D[i][0][c]}, {D[i][1][c]}")
        for c in range(4): A(f"ds_write_b64 {s.a_wr[c]}, {P[2*c:2*c+2]}")
        s.vfree('aS0r', 'aS0i', 'aS1r', 'aS1i', 'ad', 'ast', 'atmp', 'aP'); s.sfree('apiv')
    def a_part2(s, stflag):
        A = s.A; F = [s.aF0, s.aF1]; D = [[s.aD0r, s.aD0i], [s.aD1r, s.aD1i]]
        for t in range(2): A(f"ds_read_b128 {F[t]}, {s.a_rd} offset:{t*33*16}")
        A(f"s_lshl_b32 {s.t0}, {s.p}, 13\n s_lshl_b32 {s.t1}, {s.w}, 8\n s_add_u32 {s.t0}, {s.t0}, {s.t1}")
        for t in range(2):
            A(f"s_waitcnt lgkmcnt({1-t})")
            A(f"{M16} {D[t][0]}, {F[t]}, {s.A3r}, 0\n {M16} {D[t][1]}, {F[t]}, {s.A3i}, 0")
        for t in range(2):
            for c in range(4): A(f"v_cvt_pk_bf16_f32 {F[t][c]}, {D[t][0][c]}, {D[t][1][c]}")
            A(f"buffer_store_dwordx4 {F[t]}, {s.a_st}, {s.sws}, {s.t0} offen offset:{WS_X1 + 128*t} {stflag} ;@x1")
        s.vfree('aF0', 'aF1', 'aD0r', 'aD0i', 'aD1r', 'aD1i', 'a_trad', 'a_rd', 'a_st', 'sel0', 'sel1', 'mn0', 'sgn', 'a_wr',
                'B1r', 'B1i', 'SAr', 'SAi', 'A3r', 'A3i')

    def g1_setup_dma(s):
        A = s.A; vo = s.v('g1vo', 8); t = s.v('_t'); u = s.v('_u'); k = s.v('_k')
        s.sg('sox', 8); s.sg('sow', 8); s.sg('m0b'); s.sg('shift'); s.sg('tile0')
        imm = [0, 1024, 2048, 3072, 0, 1024]
        for z in range(3):
            A(f"""v_add_u32 {t}, {64*z}, {s.l}
            v_mul_u32_u24 {u}, 2731, {t}
            v_lshrrev_b32 {u}, 16, {u}
            v_mul_u32_u24 {k}, 24, {u}
            v_sub_u32 {t}, {t}, {k}
            v_and_b32 {k}, 6, {u}
            v_xor_b32 {t}, {t}, {k}
            v_and_b32 {k}, 4, {u}
            v_add_u32 {u}, {u}, {k}
            v_mul_u32_u24 {u}, 2752, {u}
            v_lshl_add_u32 {t}, {t}, 4, {u}
            v_subrev_u32 {vo[z]}, {imm[z]}, {t}
            v_add_u32 {vo[3+z]}, {16*2752 - imm[3+z]}, {t}""")
        A(f"""v_lshrrev_b32 {u}, 3, {s.l}
        v_and_b32 {t}, 7, {s.l}
        v_xor_b32 {t}, {t}, {s.q}
        v_lshlrev_b32 {u}, 10, {u}
        v_lshl_add_u32 {vo[6]}, {t}, 4, {u}
        v_xor_b32 {vo[7]}, 64, {vo[6]}
        v_add_u32 {vo[7]}, {262144-1024}, {vo[7]}
        s_mul_i32 {s.tile0}, {s.fs}, 11
        s_cmp_eq_u32 {s.fs}, 7
        s_cselect_b32 {s.t0}, 1, 0
        s_sub_u32 {s.tile0}, {s.tile0}, {s.t0}
        s_and_b32 {s.shift}, {s.tile0}, 1
        s_lshl_b32 {s.m0b}, {s.w}, 13
        s_and_b32 {s.t0}, {s.j}, 3
        s_lshl_b32 {s.t0}, {s.t0}, 1
        s_add_u32 {s.t0}, {s.t0}, {s.fs}
        s_add_u32 {s.t0}, {s.t0}, {s.xcd}""")
        bx = s.sg('_bx'); bw = s.sg('_bw')
        A(f"""s_lshl_b32 {bx}, {s.w}, 6
        s_add_u32 {bx}, {bx}, {s.rb}
        s_lshl_b32 {bx}, {bx}, 13
        s_lshr_b32 {bw}, {s.w}, 1
        s_lshl_b32 {bw}, {bw}, 3
        s_and_b32 {s.t1}, {s.w}, 1
        s_add_u32 {bw}, {bw}, {s.t1}
        s_mul_i32 {bw}, {bw}, {4*2752}
        s_lshr_b32 {s.t1}, {s.tile0}, 1
        s_lshl_b32 {s.t1}, {s.t1}, 6
        s_add_u32 {bw}, {bw}, {s.t1}""")
        for st in range(8):
            A(f"""s_and_b32 {s.t0}, {s.t0}, 7
            s_lshl_b32 {s.t1}, {s.t0}, 7
            s_add_u32 {s.sox[st]}, {bx}, {s.t1}
            s_mul_i32 {s.t1}, {s.t0}, {64*2752}
            s_add_u32 {s.sow[st]}, {bw}, {s.t1}
            s_add_u32 {s.t0}, {s.t0}, 1""")
        s.vfree('_t', '_u', '_k'); s.sfree('_bx', '_bw')
    def g1_dma(s, st):
        vo = s.g1vo; base = (st % 4) * 32768
        o = [f"s_add_u32 m0, {s.m0b}, {base}"]
        for z in range(4): o.append(f"buffer_load_dwordx4 {vo[z]}, {s.sw1}, {s.sow[st]} offen offset:{1024*z} lds ;@st{st}")
        o.append(f"s_add_u32 m0, {s.m0b}, {base+4096}")
        for z in range(2): o.append(f"buffer_load_dwordx4 {vo[4+z]}, {s.sw1}, {s.sow[st]} offen offset:{1024*z} lds ;@st{st}")
        for z in range(2): o.append(f"buffer_load_dwordx4 {vo[6+z]}, {s.sx}, {s.sox[st]} offen offset:{2048+1024*z} lds ;@st{st}")
        return o
    def g1_setup_rd(s):
        A = s.A; wa = s.v('g1wa', 6); xa = s.v('g1xa', 4); t = s.v('_t'); u = s.v('_u'); k = s.v('_k')
        A(f"""v_lshrrev_b32 {t}, 2, {s.l}
        v_mul_u32_u24 {u}, 384, {t}
        v_and_b32 {k}, 3, {s.l}
        v_lshl_add_u32 {u}, {k}, 3, {u}
        v_bfe_u32 {t}, {s.l}, 3, {SWZ_BITS}
        s_mul_i32 {s.t0}, {s.w}, 3
        s_add_u32 {s.t0}, {s.t0}, {s.shift}""")
        for i in range(3):
            A(f"""v_xor_b32 {k}, {s.t0}, {t}
            v_lshl_add_u32 {wa[i]}, {k}, 5, {u}
            v_add_u32 {wa[3+i]}, 65536, {wa[i]}
            s_add_u32 {s.t0}, {s.t0}, 1""")
        A(f"""v_lshrrev_b32 {t}, 1, {s.n}
        v_xor_b32 {t}, {t}, {s.q}
        v_lshlrev_b32 {t}, 4, {t}
        v_lshl_add_u32 {t}, {s.n}, 7, {t}
        v_add_u32 {xa[0]}, 6144, {t}
        v_xor_b32 {xa[1]}, 64, {xa[0]}
        v_add_u32 {xa[2]}, 65536, {xa[0]}
        v_add_u32 {xa[3]}, 65536, {xa[1]}""")
        s.vfree('_t', '_u', '_k')
        s.v('acc1', 48); s.v('accc', 12); s.a('ones', 4); s.a('xf', 32); s.a('wf', 24)
        t = s.v('_t'); A(f"v_mov_b32 {t}, 0x3f803f80")
        for c in range(4): A(f"v_accvgpr_write_b32 {s.ones[c]}, {t}")
        s.vfree('_t')
    def g1_reads(s, step, w3):
        st = step // 2; ks = step % 2; sl = st % 4; hi = sl // 2; base = (sl % 2) * 32768; b = step % 2
        o = []
        nt = 2 if w3 else 3
        xr = [f"ds_read_b128 {s.xf[16*b+4*mt:16*b+4*mt+4]}, {s.g1xa[2*hi+ks]} offset:{base + mt*8192}" for mt in range(4)]
        wr = [[f"ds_read_b64_tr_b16 {s.wf[12*b+4*i+2*h:12*b+4*i+2*h+2]}, {s.g1wa[3*hi+i]} offset:{base + (2*ks+h)*8192}" for h in range(2)] for i in range(nt)]
        o = wr[0] + xr
        for i in range(1, nt): o += wr[i]
        return o
    def g1_mfmas(s, step, w3):
        b = step % 2; o = []
        for i in range(3):
            wf = s.wf[12*b+4*i:12*b+4*i+4]
            if w3 and i == 2: wf = s.ones
            for mt in range(4):
                acc = s.acc1[16*i+4*mt:16*i+4*mt+4]
                o.append(f"{M16} {acc}, {wf}, {s.xf[16*b+4*mt:16*b+4*mt+4]}, {acc if step else 0}")
            if not (w3 and i == 2):
                acc = s.accc[4*i:4*i+4]
                o.append(f"{M16} {acc}, {wf}, {s.ones}, {acc if step else 0}")
        return o
    def g1_main(s, w3, vm, extra):
        A = s.A
        A(f"s_waitcnt vmcnt({vm[0]})\n s_barrier")
        for x in s.g1_reads(0, w3): A(x)
        for step in range(16):
            fill = []
            if step % 2 == 1:
                nx = step // 2 + 1
                A(f"s_waitcnt lgkmcnt(0)" + (f" vmcnt({vm[nx]})" if nx < 8 else "")); A("s_barrier")
            else: A("s_waitcnt lgkmcnt(0)")
            if step in (1, 7, 15): s.stamp(f'g1s{step}')
            if step < 15: fill += s.g1_reads(step + 1, w3)
            fill += extra.get(step, [])
            mf = s.g1_mfmas(step, w3)
            per = -(-len(fill) // len(mf)); per = max(per, 2) if fill else 0
            for m in mf:
                A(m)
                for x in fill[:per]: A(x)
                fill = fill[per:]
        if w3:
            t = s.v('_t', 4); ad = s.v('_ad')
            A(f"v_lshlrev_b32 {ad}, 4, {s.n}\n v_add_u32 {ad}, {L_MEAN}, {ad}")
            for mt in range(4): A(f"v_mul_f32 {t[mt]}, {fl(-1/512)}, {s.acc1[32+4*mt]}")
            for mt in range(4): A(f"v_cvt_pk_bf16_f32 {t[mt]}, {t[mt]}, {t[mt]}")
            for mt in range(4): A(f"v_lshlrev_b32 {t[mt]}, 16, {t[mt]}")
            A(f"ds_write_b128 {ad}, {t}\n s_waitcnt lgkmcnt(0)")
            s.vfree('_t', '_ad')
    def g1_epilogue(s, stflag):
        A = s.A; mm = s.v('g1m', 8); ad = s.v('_ad'); P = s.v('g1P', 24); so = s.sg('_so', 3)
        A(f"v_lshlrev_b32 {ad}, 4, {s.n}\n v_add_u32 {ad}, {L_MEAN}, {ad}\n s_barrier\n ds_read_b128 {mm[0:4]}, {ad}")
        A(f"""s_mul_i32 {s.t0}, {s.rb}, 86
        s_add_u32 {s.t0}, {s.t0}, {s.tile0}
        s_mul_i32 {s.t1}, {s.w}, 3
        s_add_u32 {s.t0}, {s.t0}, {s.t1}
        s_lshl_b32 {s.t0}, {s.t0}, 11
        s_add_u32 {so[0]}, {s.t0}, {WS_H}
        s_add_u32 {so[1]}, {so[0]}, 2048
        s_add_u32 {so[2]}, {so[0]}, 4096
        s_cmp_eq_u32 {s.w}, 3
        s_cselect_b32 {so[2]}, {WS_SIZE}, {so[2]}
        s_cselect_b32 {s.t0}, {s.fs}, 0
        s_cmp_ge_u32 {s.t0}, 6
        s_cselect_b32 {so[1]}, {WS_SIZE}, {so[1]}
        s_waitcnt lgkmcnt(0)
        v_mov_b32 {mm[4]}, {mm[1]}
        v_mov_b32 {mm[6]}, {mm[3]}""")
        for i in range(3):
            for mt in range(4):
                acc = s.acc1[16*i+4*mt:16*i+4*mt+4]; mo = (mt//2)*2 + 4*(mt%2); mp = mm[mo:mo+2]
                for h in (0, 2):
                    A(f"v_pk_fma_f32 {acc[h:h+2]}, {s.accc[4*i+h:4*i+h+2]}, {mp}, {acc[h:h+2]} op_sel_hi:[1,0,1]")
                for h in range(2): A(f"v_cvt_pk_bf16_f32 {P[8*i+2*mt+h]}, {acc[2*h]}, {acc[2*h+1]}")
                for h in range(2): A(f"v_pk_max_i16 {P[8*i+2*mt+h]}, {P[8*i+2*mt+h]}, 0")
            for M in range(2):
                Q = P[8*i+4*M:8*i+4*M+4]
                A(f"v_permlane16_swap_b32 {Q[0]}, {Q[2]}\n v_permlane16_swap_b32 {Q[1]}, {Q[3]}")
                A(f"buffer_store_dwordx4 {Q}, {s.l16}, {s.sws}, {so[i]} offen offset:{1024*M} {stflag} ;@h")
        s.vfree('g1m', '_ad', 'g1P', 'acc1', 'accc', 'g1wa', 'g1xa', 'g1vo'); s.afree('ones', 'xf', 'wf'); s.sfree('_so', 'sox', 'sow', 'shift')

    def b_setup(s):
        A = s.A; s.v('b_ga'); s.v('b_ua'); s.v('b_wo'); s.v('b_wa'); s.v('b_lin'); s.v('b_st'); t = s.v('_t'); u = s.v('_u')
        A(f"""v_lshrrev_b32 {t}, 4, {s.l}
        v_xor_b32 {t}, {t}, {s.l}
        v_and_b32 {t}, 1, {t}
        v_lshrrev_b32 {u}, 1, {s.l}
        v_lshlrev_b32 {s.b_ga}, 13, {u}
        v_lshl_add_u32 {s.b_ga}, {t}, 4, {s.b_ga}
        v_lshlrev_b32 {s.b_st}, 5, {u}
        v_lshl_add_u32 {s.b_st}, {t}, 4, {s.b_st}
        s_lshr_b32 {s.t0}, {s.w}, 1
        v_lshrrev_b32 {t}, 3, {s.n}
        v_xor_b32 {t}, {s.t0}, {t}
        v_lshlrev_b32 {t}, 4, {t}
        v_lshl_add_u32 {t}, {s.n}, 5, {t}
        v_lshl_add_u32 {t}, {s.q}, 11, {t}
        s_and_b32 {s.t0}, {s.w}, 1
        s_lshl_b32 {s.t0}, {s.t0}, 3
        s_add_u32 {s.t0}, {s.t0}, {L_U}
        v_add_u32 {s.b_ua}, {s.t0}, {t}
        v_mul_u32_u24 {s.b_wo}, 4112, v0
        v_lshlrev_b32 {t}, 4, {s.n}
        v_lshl_add_u32 {t}, {s.q}, 10, {t}
        s_lshl_b32 {s.t0}, {s.w}, 2
        s_add_u32 {s.t0}, {s.t0}, {L_E}
        v_add_u32 {s.b_wa}, {s.t0}, {t}
        s_lshl_b32 {s.t0}, {s.w}, 11
        s_add_u32 {s.t0}, {s.t0}, {L_U}
        v_add_u32 {s.b_lin}, {s.t0}, {s.l16}""")
        s.vfree('_t', '_u')
    def b_wload(s):
        A = s.A; W = s.v('b_wraw', 8)
        A(f"""s_mul_i32 {s.t0}, {s.xcd}, 514
        s_lshl_b32 {s.t1}, {s.j}, 4
        s_add_u32 {s.t0}, {s.t0}, {s.t1}
        s_add_u32 {s.t0}, {s.t0}, 2
        buffer_load_dwordx4 {W[0:4]}, {s.b_wo}, {s.swr}, {s.t0} offen ;@W
        buffer_load_dwordx4 {W[4:8]}, {s.b_wo}, {s.swi}, {s.t0} offen ;@W""")
    def b_wstage(s):
        A = s.A; W = s.b_wraw; t = s.v('_t')
        A(f"v_lshlrev_b32 {t}, 4, v0\n v_add_u32 {t}, {L_E}, {t}\n ds_write_b128 {t}, {W[0:4]}\n ds_write_b128 {t}, {W[4:8]} offset:4096")
        s.vfree('_t')
    def b_wread(s):
        A = s.A; W = s.b_wraw; X = s.v('b_W', 16)
        for x in range(2):
            for h in range(2): A(f"ds_read2st64_b32 {W[4*x+2*h:4*x+2*h+2]}, {s.b_wa} offset0:{16*x+2*h} offset1:{16*x+2*h+1}")
        A("s_waitcnt lgkmcnt(0)")
        for x in range(2):
            for r in range(4): A(f"v_lshlrev_b32 {X[4*x+r]}, 16, {W[4*x+r]}\n v_and_b32 {X[8+4*x+r]}, 0xffff0000, {W[4*x+r]}")
        s.vfree('b_wraw', 'b_wo', 'b_wa')
    def b_gather(s, ldflag):
        A = s.A
        A(f"""s_lshl_b32 {s.t0}, {s.w}, 11
        s_add_u32 m0, {s.t0}, {L_U}
        s_lshl_b32 {s.t0}, {s.w}, 9
        s_add_u32 {s.t0}, {s.t0}, {s.xcd}
        s_lshl_b32 {s.t0}, {s.t0}, 5
        s_add_u32 {s.t0}, {s.t0}, {s.j}
        s_lshl_b32 {s.t0}, {s.t0}, 5
        s_add_u32 {s.t1}, {s.t0}, {32*8192-1024}
        buffer_load_dwordx4 {s.b_ga}, {s.sws}, {s.t0} offen {ldflag} lds ;@gx
        buffer_load_dwordx4 {s.b_ga}, {s.sws}, {s.t1} offen offset:1024 {ldflag} lds ;@gx""")
        s.vfree('b_ga')
    def rd_pairs(s, F, addr, offs):
        A = s.A
        for pos, c in enumerate((0, 2, 1, 3)):
            ad = addr[c] if addr.n == 4 else addr
            A(f"ds_read_b64 {F[2*pos:2*pos+2]}, {ad} offset:{offs[c]}")
        A(f"s_waitcnt lgkmcnt(0)\n v_swap_b32 {F[1]}, {F[4]}\n v_swap_b32 {F[3]}, {F[6]}")
    def b_main(s):
        A = s.A; F = s.v('bF', 8); D = [[s.v(f'bD{i}{x}', 4) for x in 'ri'] for i in range(2)]; tmp = s.v('btmp', 4)
        U = [F[0:4], F[4:8]]
        s.rd_pairs(F, s.b_ua, [512*c for c in range(4)])
        stages = [(True, s.FWr, s.FWi), (False, s.FWr, s.FWi), (True, s.IVr, s.IVi), (False, s.IVr, s.IVi)]
        for k, (dataA, cr, ci) in enumerate(stages):
            for i in range(2):
                for x, cc in enumerate((cr, ci)):
                    A(f"{M16} {D[i][x]}, {U[i]}, {cc}, 0" if dataA else f"{M16} {D[i][x]}, {cc}, {U[i]}, 0")
            for i in range(2):
                if k == 0: s.cmul(D[i][0], D[i][1], D[i][0], D[i][1], s.T256c, s.T256s, tmp, False)
                if k == 1: s.cmul(D[i][0], D[i][1], D[i][0], D[i][1], s.b_W[8*i:8*i+4], s.b_W[8*i+4:8*i+8], tmp, True)
                if k == 2: s.cmul(D[i][0], D[i][1], D[i][0], D[i][1], s.T256c, s.T256s, tmp, True)
                for c in range(4):
                    dst = U[i][c] if k < 3 else F[2*c+i]
                    A(f"v_cvt_pk_bf16_f32 {dst}, {D[i][0][c]}, {D[i][1][c]}")
        for c in range(4): A(f"ds_write_b64 {s.b_ua}, {F[2*c:2*c+2]} offset:{512*c}")
        s.vfree('bD0r', 'bD0i', 'bD1r', 'bD1i', 'btmp', 'b_W', 'b_ua', 'T256c', 'T256s')
    def b_store(s, stflag):
        A = s.A; F = s.bF
        for t in range(2): A(f"ds_read_b128 {F[4*t:4*t+4]}, {s.b_lin} offset:{1024*t}")
        A(f"s_lshl_b32 {s.t0}, s2, 13\n s_lshl_b32 {s.t1}, {s.w}, 11\n s_add_u32 {s.t0}, {s.t0}, {s.t1}\n s_add_u32 {s.t0}, {s.t0}, {WS_Y1}")
        for t in range(2):
            A(f"s_waitcnt lgkmcnt({1-t})\n buffer_store_dwordx4 {F[4*t:4*t+4]}, {s.b_st}, {s.sws}, {s.t0} offen offset:{1024*t} {stflag} ;@y1")
        s.vfree('bF', 'b_lin', 'b_st')

    def g2_setup(s):
        A = s.A; vo = s.v('g2vo', 4); ra = s.v('g2ra', 4); t = s.v('_t'); u = s.v('_u'); s.sg('sw2o')
        if not hasattr(s, 'm0b'): s.sg('m0b'); A(f"s_lshl_b32 {s.m0b}, {s.w}, 13")
        A(f"""v_and_b32 {t}, 1, {s.q}
        v_lshlrev_b32 {t}, 2, {t}
        v_xor_b32 {t}, {t}, {s.l}
        v_and_b32 {t}, 7, {t}
        v_lshrrev_b32 {u}, 3, {s.l}
        v_lshlrev_b32 {u}, 10, {u}
        v_lshl_add_u32 {vo[0]}, {t}, 4, {u}""")
        for z in range(1, 4): A(f"v_add_u32 {vo[z]}, {z*(8192-1024)}, {vo[0]}")
        A(f"""s_mul_i32 {s.sw2o}, {s.w}, {352*1024}
        s_lshl_b32 {s.t0}, {s.fs}, 7
        s_add_u32 {s.sw2o}, {s.sw2o}, {s.t0}
        v_lshrrev_b32 {t}, 5, {s.l}
        v_bfe_u32 {u}, {s.l}, 2, 2
        v_lshl_add_u32 {t}, {t}, 3, {u}
        v_lshlrev_b32 {t}, 7, {t}
        v_bfe_u32 {u}, {s.l}, 3, 1
        v_lshl_add_u32 {t}, {u}, 6, {t}
        v_and_b32 {u}, 1, {s.q}
        v_lshl_add_u32 {t}, {u}, 5, {t}
        v_and_b32 {u}, 3, {s.l}
        v_lshl_add_u32 {t}, {u}, 3, {t}
        v_add_u32 {ra[0]}, {s.m0b}, {t}
        v_xor_b32 {ra[1]}, 64, {ra[0]}
        v_add_u32 {ra[2]}, 65536, {ra[0]}
        v_add_u32 {ra[3]}, 65536, {ra[1]}""")
        s.vfree('_t', '_u')
    def g2_wdma(s, g, slot):
        o = []
        for hf in range(2 if g < 5 else 1):
            o.append(f"s_add_u32 m0, {s.m0b}, {slot*32768 + hf*4096}")
            o.append(f"s_add_u32 {s.t1}, {s.sw2o}, {(g*64 + hf*32)*1024}")
            for z in range(4): o.append(f"buffer_load_dwordx4 {s.g2vo[z]}, {s.sw2}, {s.t1} offen offset:{1024*z} lds ;@wb{g}")
        return o
    def g2_wread(s, g, slot):
        o = []
        for ks in range(4 if g < 5 else 2):
            step = 4*g + ks
            for nt in range(2):
                for i in range(2):
                    o.append(f"ds_read_b64_tr_b16 {s.w2f[8*step+4*nt+2*i:8*step+4*nt+2*i+2]}, {s.g2ra[2*(slot//2)+nt]} offset:{(slot%2)*32768 + ks*2048 + i*512}")
        return o
    def g2_hsrd(s):
        A = s.A; r = s.sg('sh', 4, 4)
        A(f"""s_mul_i32 {s.t0}, {s.rb}, 86
        s_mul_i32 {s.t1}, {s.w}, 22
        s_add_u32 {s.t0}, {s.t0}, {s.t1}
        s_lshl_b32 {s.t0}, {s.t0}, 11
        s_add_u32 {s.t0}, {s.t0}, {WS_H}
        s_add_u32 {r[0]}, s20, {s.t0}
        s_addc_u32 {r[1]}, s21, 0
        s_cmp_eq_u32 {s.w}, 3
        s_cselect_b32 {r[2]}, 20, 22
        s_lshl_b32 {r[2]}, {r[2]}, 11
        s_mov_b32 {r[3]}, 0x20000""")
        so = s.sg('hso', 11)
        for i in range(11): A(f"s_mov_b32 {so[i]}, {4096*i}")
    NH = 16
    def g2_hload(s, idx, ldflag):
        mt, i = divmod(idx, 22); sl = idx % s.NH
        return f"buffer_load_dwordx4 {s.hf[4*sl:4*sl+4]}, {s.l16}, {s.sh}, {s.hso[i//2]} offen offset:{(i%2)*2048 + mt*1024} {ldflag} ;@h{idx}"
    def g2_red_setup(s):
        A = s.A; s.v('g2rw'); s.v('g2rr'); s.v('g2st'); t = s.v('_t'); u = s.v('_u')
        A(f"""v_and_b32 {t}, 31, {s.l}
        v_mul_u32_u24 {t}, 272, {t}
        v_lshrrev_b32 {u}, 5, {s.l}
        v_lshl_add_u32 {t}, {u}, 4, {t}
        s_mul_i32 {s.t0}, {s.w}, {RED_S}
        v_add_u32 {s.g2rw}, {s.t0}, {t}
        v_lshrrev_b32 {t}, 3, {s.l}
        v_and_b32 {u}, 7, {s.l}
        v_lshlrev_b32 {s.g2st}, 10, {t}
        v_lshl_add_u32 {s.g2st}, {u}, 4, {s.g2st}
        v_mul_u32_u24 {t}, 272, {t}
        v_lshl_add_u32 {t}, {u}, 5, {t}
        s_mul_i32 {s.t0}, {s.w}, {8*272}
        v_add_u32 {s.g2rr}, {s.t0}, {t}""")
        s.vfree('_t', '_u')
    def g2_red_write(s, mt):
        return [f"ds_write_b128 {s.g2rw}, {s.acc2[32*mt+4*k:32*mt+4*k+4]} offset:{mt*4*RED_S + 32*k}" for k in range(8)]
    def g2_red_read(s, mt):
        return [f"ds_read_b128 {s.acc2[32*mt+4*k:32*mt+4*k+4]}, {s.g2rr} offset:{mt*4*RED_S + (k//2)*RED_S + (k%2)*16}" for k in range(8)]
    def g2_red_fin(s, mt, stflag):
        a = s.acc2[32*mt:32*mt+32]; o = []
        for h in range(0, 8, 2): o.append(f"v_pk_add_f32 {a[h:h+2]}, {a[h:h+2]}, {a[8+h:10+h]}")
        for h in range(0, 8, 2): o.append(f"v_pk_add_f32 {a[16+h:18+h]}, {a[16+h:18+h]}, {a[24+h:26+h]}")
        for h in range(0, 8, 2): o.append(f"v_pk_add_f32 {a[h:h+2]}, {a[h:h+2]}, {a[16+h:18+h]}")
        for c in range(4): o.append(f"v_cvt_pk_bf16_f32 {a[8+c]}, {a[2*c]}, {a[2*c+1]}")
        o += [f"s_lshl_b32 {s.t0}, {s.w}, 5", f"s_add_u32 {s.t0}, {s.t0}, {s.rb}", f"s_lshl_b32 {s.t0}, {s.t0}, 6", f"s_add_u32 {s.t0}, {s.t0}, {s.fs}",
              f"s_lshl_b32 {s.t0}, {s.t0}, 7", f"s_add_u32 {s.t0}, {s.t0}, {WS_O + mt*4*262144}",
              f"buffer_store_dwordx4 {a[8:12]}, {s.g2st}, {s.sws}, {s.t0} offen {stflag} ;@o{mt}"]
        return o

    def c_setup(s):
        A = s.A; s.v('c_ga'); s.v('c_ua'); s.v('c_ew'); s.v('c_xo'); t = s.v('_t'); u = s.v('_u')
        if not hasattr(s, 'mq0'): s.sg('mq0', 2); A(f"s_mov_b64 {s.mq0}, 0xffff")
        A(f"""v_lshrrev_b32 {t}, 1, {s.l}
        v_lshlrev_b32 {t}, 16, {t}
        v_and_b32 {u}, 1, {s.l}
        v_lshl_add_u32 {s.c_ga}, {u}, 4, {t}
        v_and_b32 {t}, 31, {s.l}
        v_lshrrev_b32 {u}, 5, {s.l}
        v_lshlrev_b32 {t}, 3, {t}
        v_lshl_add_u32 {t}, {u}, 12, {t}
        s_lshl_b32 {s.t0}, {s.w}, 8
        s_add_u32 {s.t0}, {s.t0}, {L_U}
        v_add_u32 {s.c_ua}, {s.t0}, {t}
        v_mul_u32_u24 {u}, {EH}, {u}
        v_lshl_add_u32 {u}, {s.n}, 5, {u}
        v_and_b32 {t}, 1, {s.q}
        v_mul_u32_u24 {t}, {33*16}, {t}
        s_mul_i32 {s.t0}, {s.w}, {66*16}
        s_add_u32 {s.t0}, {s.t0}, {L_E}
        v_add3_u32 {s.c_ew}, {s.t0}, {t}, {u}
        v_lshlrev_b32 {t}, 3, {s.q}
        v_lshl_add_u32 {s.c_xo}, {s.n}, 5, {t}""")
        s.vfree('_t', '_u')
        s.e_addr('c_er', True)
    def c_gather(s, ldflag):
        A = s.A
        A(f"""s_lshl_b32 {s.t0}, {s.w}, 11
        s_add_u32 m0, {s.t0}, {L_U}
        s_lshl_b32 {s.t0}, {s.w}, 14
        s_lshl_b32 {s.t1}, {s.p}, 5
        s_add_u32 {s.t0}, {s.t0}, {s.t1}
        s_add_u32 {s.t0}, {s.t0}, {WS_Y1}
        s_add_u32 {s.t1}, {s.t0}, {8192-1024}
        buffer_load_dwordx4 {s.c_ga}, {s.sws}, {s.t0} offen {ldflag} lds ;@gy
        buffer_load_dwordx4 {s.c_ga}, {s.sws}, {s.t1} offen offset:1024 {ldflag} lds ;@gy""")
        s.vfree('c_ga')
    def c_part1(s):
        A = s.A; F = s.v('cF', 8); D = [[s.v(f'cD{i}{x}', 4) for x in 'ri'] for i in range(2)]
        s.rd_pairs(F, s.c_ua, [1024*c for c in range(4)])
        for i in range(2): A(f"{M16} {D[i][0]}, {s.C3r}, {F[4*i:4*i+4]}, 0\n {M16} {D[i][1]}, {s.C3i}, {F[4*i:4*i+4]}, 0")
        for i in range(2):
            for c in range(4): A(f"v_cvt_pk_bf16_f32 {F[4*i+c]}, {D[i][0][c]}, {D[i][1][c]}")
            A(f"ds_write_b128 {s.c_ew}, {F[4*i:4*i+4]} offset:{16*i}")
        s.vfree('c_ua', 'c_ew', 'C3r', 'C3i')
    def c_part2(s):
        A = s.A; F = s.cF; D = [[s.cD0r, s.cD0i], [s.cD1r, s.cD1i]]
        Sp = [[s.v(f'cS{i}{x}', 4) for x in 'ri'] for i in range(2)]; tmp = s.v('ctmp', 4)
        s.rd_pairs(F, s.c_er, [0]*4)
        for i in range(2):
            U = F[4*i:4*i+4]
            A(f"{M16} {D[i][0]}, {U}, {s.CGr}, 0\n {M16} {D[i][1]}, {U}, {s.CGi}, 0\n {M16} {Sp[i][0]}, {U}, {s.SCr}, 0\n {M16} {Sp[i][1]}, {U}, {s.SCi}, 0")
        for i in range(2):
            for x in range(2): A(f"v_cndmask_b32 {D[i][x][0]}, {D[i][x][0]}, {Sp[i][x][0]}, {s.mq0}")
            s.cmul(D[i][0], D[i][1], D[i][0], D[i][1], s.T512c, s.T512s, tmp, True)
            for c in range(4): A(f"v_cvt_pk_bf16_f32 {F[4*i+c]}, {D[i][0][c]}, {D[i][1][c]}")
        for i in range(2):
            U = F[4*i:4*i+4]
            A(f"{M16} {D[i][0]}, {U}, {s.C1x}, 0\n {M16} {D[i][1]}, {U}, {s.C1y}, 0")
        s.vfree('cS0r', 'cS0i', 'cS1r', 'cS1i', 'ctmp', 'c_er', 'CGr', 'CGi', 'SCr', 'SCi', 'cF')
    def rowoff(s, dst, extra):
        s.A(f"""s_lshl_b32 {dst[0]}, {s.w}, 9
        s_add_u32 {dst[0]}, {dst[0]}, {s.p}
        s_lshl_b32 {dst[0]}, {dst[0]}, 10""")
        if extra: s.A(f"s_add_u32 {dst[0]}, {dst[0]}, {extra}")
        s.A(f"s_add_u32 {dst[1]}, {dst[0]}, 262144")
    def f_oload(s, ldflag):
        A = s.A; O = s.v('fO', 8); so = s.sg('_so2', 2); s.rowoff(so, WS_O)
        for i in range(2):
            for y in range(2): A(f"buffer_load_dwordx2 {O[4*i+2*y:4*i+2*y+2]}, {s.c_xo}, {s.sws}, {so[i]} offen offset:{512*y} {ldflag} ;@old")
    def f_xread(s):
        A = s.A; X = s.v('fX', 8); t = s.v('_t')
        A(f"s_lshl_b32 {s.t0}, {s.w}, 11\n s_add_u32 {s.t0}, {s.t0}, {L_XR}\n v_add_u32 {t}, {s.t0}, {s.c_xo}")
        for i in range(2):
            for y in range(2): A(f"ds_read_b64 {X[4*i+2*y:4*i+2*y+2]}, {t} offset:{1024*i+512*y}")
        s.vfree('_t')
    def f_final(s, waito):
        A = s.A; D = [[s.cD0r, s.cD0i], [s.cD1r, s.cD1i]]; O = s.fO; X = s.fX
        xf = s.v('fxf', 16); of = s.v('fof', 16); e = s.v('fe', 16); so = s.sg('_so', 2); nr = s.v('fnr', 2)
        s.rowoff(so, 0)
        A("s_waitcnt lgkmcnt(0)")
        for k in range(8): A(f"v_lshlrev_b32 {xf[2*k]}, 16, {X[k]}\n v_and_b32 {xf[2*k+1]}, 0xffff0000, {X[k]}")
        for i in range(2):
            A(f"v_mov_b32 {nr[i]}, {fl(-1.4426950408889634)}\n v_mul_f32 {nr[i]}, {s.r01[i]}, {nr[i]}")
            for y in range(2):
                for h in (0, 2): A(f"v_pk_mul_f32 {D[i][y][h:h+2]}, {D[i][y][h:h+2]}, {s.r01} op_sel:[0,{i}] op_sel_hi:[1,{i}]")
        A(waito)
        for g in range(4):
            i, y = divmod(g, 2); b = 4*g
            for k in range(2): A(f"v_lshlrev_b32 {of[b+2*k]}, 16, {O[2*g+k]}\n v_and_b32 {of[b+2*k+1]}, 0xffff0000, {O[2*g+k]}")
            for h in (0, 2): A(f"v_pk_mul_f32 {e[b+h:b+h+2]}, {of[b+h:b+h+2]}, {nr} op_sel:[0,{i}] op_sel_hi:[1,{i}]")
            for c in range(4): A(f"v_exp_f32 {e[b+c]}, {e[b+c]}")
            for h in (0, 2): A(f"v_pk_mul_f32 {of[b+h:b+h+2]}, {of[b+h:b+h+2]}, {D[i][y][h:h+2]}")
            for h in (0, 2): A(f"v_pk_add_f32 {e[b+h:b+h+2]}, {e[b+h:b+h+2]}, 1.0 op_sel_hi:[1,0]")
            for c in range(4): A(f"v_rcp_f32 {e[b+c]}, {e[b+c]}")
            for h in (0, 2): A(f"v_pk_fma_f32 {of[b+h:b+h+2]}, {of[b+h:b+h+2]}, {e[b+h:b+h+2]}, {xf[b+h:b+h+2]}")
            for k in range(2): A(f"v_cvt_pk_bf16_f32 {O[2*g+k]}, {of[b+2*k]}, {of[b+2*k+1]}")
            A(f"buffer_store_dwordx2 {O[2*g:2*g+2]}, {s.c_xo}, {s.sout}, {so[i]} offen offset:{512*y}")
        s.sfree('_so')
    def text(s):
        body = s.A.finish()
        head = f".globl {s.name}\n.p2align 8\n.type {s.name},@function\n{s.name}:\n"
        nv = 256 + s.AC.hw if s.AC.hw else s.V.hw
        acc = 256 if s.AC.hw else -(-s.V.hw // 4) * 4
        desc = f""".amdhsa_kernel {s.name}
  .amdhsa_next_free_vgpr {nv}
  .amdhsa_next_free_sgpr 102
  .amdhsa_accum_offset {acc}
  .amdhsa_group_segment_fixed_size 0
  .amdhsa_kernarg_size 72
  .amdhsa_user_sgpr_count 2
  .amdhsa_user_sgpr_kernarg_segment_ptr 1
  .amdhsa_system_sgpr_workgroup_id_x 1
.end_amdhsa_kernel
"""
        return head + body, desc
```

```python
import sys
import numpy as np
import comp
from comp import K, M16, M32, fl, EH, RED_S
from asmlib import *
import tables as TB
KN = "recurrent_scan__spectral_gfnet__dense_activation_relu__prompt_kernel"
OPT = dict(a.split('=') for a in sys.argv[2:] if '=' in a)
def opt(k, d): return type(d)(OPT.get(k, d))
STAMPS = 'stamps' in sys.argv[2:]
WS_X1 = 0; WS_Y1 = 4 << 20; WS_H = 6 << 20; WS_S = 12 << 20; WS_FLAG = 14 << 20; WS_SIZE = 15 << 20
F1 = WS_FLAG; F3 = F1 + 4096; F2 = F1 + 8192; F4 = F1 + 12288; EP = F1 + 16384; WS_R = F1 + 32768
comp.WS_H = WS_H; comp.WS_SIZE = WS_SIZE; comp.WS_Y1 = WS_Y1
LB = 131072
comp.L_E = L_E = LB; L_UO = LB; comp.L_XR = L_XR = L_XO = L_U16 = comp.L_U = LB + 8704; XOS = 544
L_TB = 98304; comp.L_MEAN = L_MEAN = LB + 26112; LDS = L_MEAN + 256
ST = "sc1"; LD = "sc1"
def sprinkle(base, ins, first, every):
    out = []; ins = list(ins); due = 0
    for i, x in enumerate(base):
        out.append(x)
        if i >= first and (i - first) % every == 0: due += 1
        nxt = base[i+1] if i + 1 < len(base) else ''
        if due and ins and not nxt.startswith(('s_cselect', 's_addc', 's_subb', 's_cbranch')):
            out.append(ins.pop(0)); due -= 1
    return out + ins
def glue(lst):
    out = []; pend = []
    for x in lst:
        pend.append(x)
        if not x.startswith('s_'): out.append("\n".join(pend)); pend = []
    if pend: out.append("\n".join(pend))
    return out

class V(K):
    def __init__(s):
        super().__init__(KN); s.S = Regs('s', 3, 102); s.AC = Regs('a', 0, 240); s.tail = []; s.tb = TB.Table()
    def lab(s, x): return f"L_{x}"
    def cap(s, fn, *a):
        out = []
        class C:
            def __call__(c, t):
                if isinstance(t, (list, tuple)):
                    for x in t: c(x)
                elif 'exec' in t: out.append(t)
                else: out.extend(l.strip() for l in t.split('\n') if l.strip())
        old = s.A; s.A = C(); fn(*a); s.A = old; return out
    def stamp(s, tag=''):
        if not STAMPS: return
        fine = opt('fine', '')
        if tag.startswith('.'):
            if not tag.startswith('.' + fine) or not fine: return
        elif fine and tag not in ('start', 'end', 'in0', 'g1main', 'g1epi', 'b', 'f2', 'h0', 'g2main', 'xin', 'karg'): return
        if not hasattr(s, 'tags'): s.tags = []; s.sg('_sp', 4, 2); s.v('_sv')
        if tag not in s.tags: s.tags.append(tag)
        i = s.tags.index(tag)
        s.A(f"{'s_memtime' if opt('cyc', 0) else 's_memrealtime'} {s._sp[2*(i%2):2*(i%2)+2]}")
        if i > 0: s.A(f"v_writelane_b32 {s._sv}, {s._sp[2*((i-1)%2)]}, {i-1}")
    def end(s):
        A = s.A
        if STAMPS:
            A("s_waitcnt vmcnt(0)"); s.stamp('end'); n = len(s.tags)
            A(f"""s_waitcnt lgkmcnt(0)
            v_writelane_b32 {s._sv}, {s._sp[2*((n-1)%2)]}, {n-1}
            v_writelane_b32 {s._sv}, {s.spin}, 31
            s_lshl_b32 {s.t0}, s2, 2
            s_add_u32 {s.t0}, {s.t0}, {s.w}
            s_lshl_b32 {s.t0}, {s.t0}, 7
            s_add_u32 {s.t0}, {s.t0}, {32<<20}
            v_lshl_add_u32 v0, {s.l}, 2, {s.t0}
            s_mov_b64 exec, 0xffffffff
            global_store_dword v0, {s._sv}, {s.sws[0:2]}""")
        A("L_end:\n s_endpgm"); A(s.tail); A("L_codeend:")
    def vfree(s, *names): super().vfree(*[x for x in names if x in s.V.names])
    SRDS = [('sx', 0, 2097152 + 2048), ('sw1', 32, 1409024), ('sws', 64, WS_SIZE), ('swr', 8, 2048*514), ('swi', 16, 2048*514), ('sw2', 40, 1409024), ('sout', 48, 2097152)]
    def prologue(s):
        A = s.A; s.stamp('start')
        for nm, off, sz in s.SRDS: s.sg(nm, 4, 4); A(f"s_load_dwordx2 {getattr(s, nm)[0:2]}, s[0:1], {off}")
        s.sg('stb', 2); s.sg('spc', 2)
        s.v('l'); s.v('n'); s.v('q'); s.v('l16')
        for nm in ('w', 'rb', 'fs', 'p', 't0', 't1', 't2', 'xcd', 'j', 'rb1', 'fs1', 'spin', 'spin2'): s.sg(nm)
        t = s.v('_t'); u = s.v('cpf')
        A(f"""v_lshrrev_b32 {s.q}, 6, v0
        s_cmp_ge_u32 s2, 256
        s_cbranch_scc1 L_end
        s_getpc_b64 {s.spc}
        L_pc:
        s_add_u32 {s.stb[0]}, {s.spc[0]}, tbl@rel32@lo+4
        s_addc_u32 {s.stb[1]}, {s.spc[1]}, tbl@rel32@hi+12
        v_readfirstlane_b32 {s.w}, {s.q}
        v_and_b32 {s.l}, 63, v0
        v_lshlrev_b32 {s.l16}, 4, {s.l}
        s_mul_i32 {s.t0}, {s.w}, 5120
        s_add_u32 m0, {s.t0}, {L_TB}
        v_add_u32 {t}, {s.t0}, {s.l16}""")
        for z in range(4): A(f"global_load_lds_dwordx4 {t}, {s.stb} offset:{1024*z} ;@tb")
        A(f"""s_add_u32 m0, {s.t0}, {L_TB + 4096}
        v_add_u32 {t}, 4096, {t}
        global_load_lds_dwordx4 {t}, {s.stb} ;@tb
        s_lshr_b32 {s.j}, s2, 3
        s_and_b32 {s.t0}, {s.j}, 7
        s_lshl_b32 {s.t0}, {s.t0}, 12
        v_lshrrev_b32 {t}, 3, v0
        v_lshl_add_u32 {t}, {t}, 7, {s.t0}
        v_min_u32 {t}, L_codeend-L_pc-4, {t}
        global_load_dword {u}, {t}, {s.spc} ;@cpf""")
        s.vfree('_t'); s.sfree('stb', 'spc')
    def tables(s):
        l, n, q = TB.l, TB.n, TB.q
        b1 = TB.B1(); t5 = TB.T(512); f = TB.F16(); sa = TB.SA(); t2 = TB.T(256); c1 = TB.C1(); sc = TB.SC()
        ka8, jj = l >> 3, l & 7; i5 = l & 31
        ast = lambda t: L_XO + XOS*(n >> 1) + 64*(4*t + q) + 16*((n & 1) ^ (2*t + (q >> 1)))
        tl = [('m1', [514*ka8 + 16*jj, L_XO + XOS*ka8 + 64*jj + 16*(2 ^ (jj >> 1)), 2048*(l >> 5) + 64*(i5 >> 2) + 16*((i5 & 3) ^ (i5 >> 3)), L_XO + XOS*(l >> 5) + 16*i5], 'wlo wso xost xord'),
              ('B1r', b1[0], ''), ('B1i', b1[1], ''),
              ('m2', [0x3f80 + 0*l, TB.u32(1.0 + 0*l), TB.u32(np.where(n == 0, 1.0, 0.0)), TB.u32(np.where(n < 8, 1.0, -1.0))], 'sel0 sel1 mn0 sgn'),
              ('T512c', t5[0], ''), ('T512s', t5[1], ''), ('FWr', f['FWr'], ''), ('FWi', f['FWi'], ''), ('SAr', sa[0], ''), ('SAi', sa[1], ''),
              ('a_wr', [L_E + 16 * TB.sig_unit(k, n) for k in TB.kk], ''),
              ('m3', [L_E + 16 * (8*(n >> 2) + 4*(q >> 1) + (n & 3)) + EH * (q & 1), ast(0), ast(1), 16384*(l >> 2) + 16*((l ^ q) & 3)], 'a_rd a_st0 a_st1 b_ga'),
              ('m4', [4096*q + 64*n + 16*(n >> 2), 2048*q + 32*n + 16*(n >> 3), 32*(l >> 1) + 16*((l ^ q) & 1), 32*i5 + 16*(l >> 5)], 'b_ua b_uo b_st s_st'),
              ('c_er', [L_E + 16 * TB.sig_unit(n, k) for k in TB.kk], ''),
              ('T256c', t2[0], ''), ('T256s', t2[1], ''),
              ('C1x', c1[0], 'A'), ('C1y', c1[1], 'A'), ('SCr', sc[0], 'A'), ('SCi', sc[1], 'A')]
        assert len(tl) == 20
        ad = s.v('_tad'); s.A(f"v_add_u32 {ad}, {L_TB}, {s.l16}"); na = 0; out = []
        for nm, quad, sub in tl:
            i = s.tb.add(quad)
            if sub == 'A': r = R('a', 240 + 4*na, 4); na += 1; setattr(s, nm, r)
            else:
                r = s.v(nm, 4)
                if sub:
                    b, _ = s.V.names.pop(nm)
                    for k, x in enumerate(sub.split()): s.V.names[x] = (b + k, 1); setattr(s, x, r[k])
            out.append(f"ds_read_b128 {r}, {ad} offset:{1024*i}")
        return out
    def ids(s):
        A = s.A
        A(f"""v_and_b32 {s.n}, 15, v0
        v_lshrrev_b32 {s.q}, 4, {s.l}
        s_and_b32 {s.xcd}, s2, 7
        s_and_b32 {s.t0}, {s.j}, 3
        s_lshl2_add_u32 {s.rb}, {s.xcd}, {s.t0}
        s_lshr_b32 {s.fs}, s2, 5
        s_lshl3_add_u32 {s.p}, {s.rb}, {s.fs}""")
        if opt('g1map', 1):
            A(f"""s_lshr_b32 {s.t0}, {s.xcd}, 1
            s_and_b32 {s.t1}, {s.j}, 7
            s_lshl3_add_u32 {s.rb1}, {s.t0}, {s.t1}
            s_and_b32 {s.t0}, {s.xcd}, 1
            s_lshr_b32 {s.t1}, s2, 6
            s_lshl2_add_u32 {s.fs1}, {s.t0}, {s.t1}""")
        else: A(f"s_mov_b32 {s.rb1}, {s.rb}\n s_mov_b32 {s.fs1}, {s.fs}")
        for nm, off, sz in s.SRDS:
            r = getattr(s, nm); A(f"s_mov_b32 {r[2]}, {sz}\n s_mov_b32 {r[3]}, 0x20000")
    def xr_prep(s):
        s.sg('xo', 2)
        s.A(f"""s_lshl_b32 {s.t0}, {s.w}, 11
        s_add_u32 m0, {s.t0}, {L_XR}
        s_lshl_b32 {s.xo[0]}, {s.w}, 9
        s_add_u32 {s.xo[0]}, {s.xo[0]}, {s.p}
        s_lshl_b32 {s.xo[0]}, {s.xo[0]}, 10
        s_add_u32 {s.xo[0]}, {s.xo[0]}, 2048
        s_add_u32 {s.xo[1]}, {s.xo[0]}, {262144-1024}""")
    def xr_issue(s):
        s.A(f"""buffer_load_dwordx4 {s.l16}, {s.sx}, {s.xo[0]} offen lds ;@xr
        buffer_load_dwordx4 {s.l16}, {s.sx}, {s.xo[1]} offen offset:1024 lds ;@xr""")
    def w_prep(s):
        s.sg('wl'); s.sg('x1o', 4, 1)
        s.A(f"""s_mul_i32 {s.wl}, {s.p}, 4112
        s_lshl_b32 {s.t0}, {s.w}, 7
        s_add_u32 {s.wl}, {s.wl}, {s.t0}
        s_add_u32 {s.wl}, {s.wl}, 2
        s_lshl_b32 {s.x1o[0]}, {s.p}, 14
        s_lshl_b32 {s.t0}, {s.w}, 9
        s_add_u32 {s.x1o[0]}, {s.x1o[0]}, {s.t0}
        s_add_u32 {s.x1o[1]}, {s.x1o[0]}, 4096
        s_add_u32 {s.x1o[2]}, {s.x1o[0]}, 8192
        s_add_u32 {s.x1o[3]}, {s.x1o[0]}, 12288""")
    def pf_prep(s):
        s.v('vtag'); s.v('pfo'); s.v('pfd'); s.v('wlo2'); t = s.v('_t')
        s.A(f"""s_mul_i32 {s.t0}, s2, 43
        s_mul_i32 {s.t1}, {s.w}, 11
        s_add_u32 {s.t0}, {s.t0}, {s.t1}
        v_min_u32 {s.pfo}, 10, {s.n}
        v_add_lshl_u32 {s.pfo}, {s.t0}, {s.pfo}, 7
        v_lshrrev_b32 {t}, 3, {s.l}
        v_mul_u32_u24 {t}, {514-128}, {t}
        v_add_u32 {s.wlo2}, {t}, {s.l16}""")
        s.vfree('_t')
    def pf_issue(s, srd):
        s.A(f"s_mov_b64 exec, 0xffff\n buffer_load_dword {s.pfd}, {s.pfo}, {srd}, 0 offen ;@pf\n s_mov_b64 exec, -1")
    def tag_load(s): s.A(f"s_mov_b32 {s.t0}, {EP}\n buffer_load_dword {s.vtag}, off, {s.sws}, {s.t0} sc1 ;@tag")
    def w_load(s):
        W = s.v('wraw', 8)
        return [f"buffer_load_dwordx4 {W[0:4]}, {s.wlo2}, {s.swr}, {s.wl} offen ;@W", f"buffer_load_dwordx4 {W[4:8]}, {s.wlo2}, {s.swi}, {s.wl} offen ;@W"]
    def a_setup(s):
        A = s.A; s.v('a_trad'); s.sg('mq0', 2); b = s.sg('_ab', 3, 1)
        A(f"""s_lshl_b32 {s.t0}, {s.w}, 11
        s_add_u32 {s.t0}, {s.t0}, {L_XR}
        v_lshl_add_u32 {s.a_trad}, {s.l}, 3, {s.t0}
        s_mov_b64 {s.mq0}, 0xffff
        s_lshr_b32 {s.t0}, {s.w}, 1
        s_mul_i32 {s.t0}, {s.t0}, {EH}
        s_and_b32 {s.t1}, {s.w}, 1
        s_lshl3_add_u32 {b[0]}, {s.t1}, {s.t0}
        s_mul_i32 {b[1]}, {s.w}, {66*16}
        s_mul_i32 {b[2]}, {s.w}, {8*XOS}""")
    def a_setup2(s):
        A = s.A; b = s._ab; s.v('wso2'); s.v('b_wa', 2)
        for c in range(4): A(f"v_add_u32 {s.a_wr[c]}, {b[0]}, {s.a_wr[c]}\n v_add_u32 {s.c_er[c]}, {b[0]}, {s.c_er[c]}")
        A(f"v_add_u32 {s.a_rd}, {b[1]}, {s.a_rd}\n v_xor_b32 {s.wso2}, 16, {s.wso}")
        for r in (s.a_st0, s.a_st1, s.wso, s.wso2, s.xord): A(f"v_add_u32 {r}, {b[2]}, {r}")
        A(f"""s_lshl_b32 {s.t0}, {s.w}, 3
        s_lshl2_add_u32 {s.t1}, {s.w}, 32
        v_xor_b32 {s.b_wa[0]}, {s.t1}, {s.b_ua}
        v_xor_b32 {s.b_ua}, {s.t0}, {s.b_ua}
        v_xor_b32 {s.b_uo}, {s.t0}, {s.b_uo}
        v_xor_b32 {s.b_wa[1]}, 16, {s.b_wa[0]}
        v_add_u32 {s.b_ua}, {L_U16}, {s.b_ua}
        v_add_u32 {s.b_wa[0]}, {L_U16}, {s.b_wa[0]}
        v_add_u32 {s.b_wa[1]}, {L_U16}, {s.b_wa[1]}
        v_add_u32 {s.b_uo}, {L_UO}, {s.b_uo}""")
        s.vfree('cpf', '_tad'); s.sfree('_ab')
    def a_part2(s):
        A = s.A; Fr = [s.aF0, s.aF1]; D = [[s.aD0r, s.aD0i], [s.aD1r, s.aD1i]]
        for t in range(2): A(f"ds_read_b128 {Fr[t]}, {s.a_rd} offset:{t*33*16}")
        rr = s.v('rr', 2)
        A(f"""v_mov_b32 {rr[0]}, {s.r01[0]}
        v_mov_b32 {rr[1]}, {s.r01[2]}
        s_lshl_b32 {s.t0}, {s.p}, 5
        s_lshl3_add_u32 {s.t0}, {s.w}, {s.t0}
        s_add_u32 {s.t0}, {s.t0}, {WS_R}""")
        for t in range(2):
            A(f"s_waitcnt lgkmcnt({1-t})")
            A(f"{M16} {D[t][0]}, {Fr[t]}, {s.A3r}, 0\n {M16} {D[t][1]}, {Fr[t]}, {s.A3i}, 0")
        A(f"@wait W\n ds_write_b128 {s.wso}, {s.wraw[0:4]}\n ds_write_b128 {s.wso2}, {s.wraw[4:8]}")
        for t in range(2):
            for c in range(4): A(f"v_cvt_pk_bf16_f32 {Fr[t][c]}, {D[t][0][c]}, {D[t][1][c]}")
            A(f"ds_write_b128 {(s.a_st0, s.a_st1)[t]}, {Fr[t]}")
        Q = [D[0][0], D[0][1], D[1][0], D[1][1]]
        for z in range(4): A(f"ds_read_b128 {Q[z]}, {s.xord} offset:{2*XOS*z}")
        A(f"s_mov_b64 exec, 1\n buffer_store_dwordx2 {rr}, off, {s.sws}, {s.t0} {ST} ;@x1\n s_mov_b64 exec, -1")
        for z in range(4): A(f"s_waitcnt lgkmcnt({3-z})\n buffer_store_dwordx4 {Q[z]}, {s.xost}, {s.sws}, {s.x1o[z]} offen {ST} ;@x1")
    def a_free(s):
        s.vfree('aF0', 'aF1', 'aD0r', 'aD0i', 'aD1r', 'aD1i', 'a_trad', 'sel0', 'sel1', 'a_wr', 'B1r', 'B1i', 'SAr', 'SAi', 'A3r', 'A3i', 'rr', 'mn0', 'sgn', 'a_rd', 'a_st0', 'a_st1', 'wlo', 'wlo2', 'wso', 'wso2', 'xost', 'xord', 'wraw'); s.sfree('r01', 'x1o')
    def flags_setup(s):
        A = s.A; s.v('pa'); s.v('pg'); s.v('pv'); s.sg('fo'); s.sg('fo2'); s.sg('k4096'); s.sg('tag')
        A(f"""v_lshlrev_b32 {s.pa}, 4, v0
        v_and_b32 {s.pg}, 0x70, {s.pa}
        v_add_u32 {s.pa}, {F1}, {s.pa}
        s_lshl_b32 {s.t0}, {s.rb}, 7
        s_add_u32 {s.t0}, {s.t0}, {F2}
        v_add_u32 {s.pg}, {s.t0}, {s.pg}
        s_lshl_b32 {s.fo}, {s.p}, 4
        s_add_u32 {s.fo}, {s.fo}, {F1}
        s_lshl3_add_u32 {s.fo2}, {s.rb1}, {s.fs1}
        s_lshl_b32 {s.fo2}, {s.fo2}, 4
        s_add_u32 {s.fo2}, {s.fo2}, {F2}
        s_cmp_eq_u32 {s.w}, 0
        s_cselect_b32 {s.fo}, {s.fo}, {WS_SIZE}
        s_cselect_b32 {s.fo2}, {s.fo2}, {WS_SIZE}
        s_mov_b32 {s.spin}, 0
        s_mov_b32 {s.spin2}, 0
        s_mov_b32 {s.k4096}, 4096""")
    def tag_fix(s):
        return [f"v_readfirstlane_b32 {s.tag}, {s.vtag}", f"s_mul_i32 {s.tag}, {s.tag}, 1664525", f"s_add_u32 {s.tag}, {s.tag}, 1013904223", f"v_mov_b32 {s.vtag}, {s.tag}"]
    def flag(s, nm, so, add=0):
        pre = f"s_add_u32 {s.t0}, {so}, {add}\n " if add else ""
        return [pre + f"s_mov_b64 exec, 1\n buffer_store_dword {s.vtag}, off, {s.sws}, {s.t0 if add else so} sc1 ;@{nm}\n s_mov_b64 exec, -1"]
    def poll(s, nm, ad, so, sfx='', pv=None):
        pv = pv or s.pv
        ins = f"buffer_load_dword {pv}, {ad}, {s.sws}, {so} offen sc1"
        L = nm + sfx
        s.tail += f"""L_retry{L}:
        s_add_u32 {s.spin}, {s.spin}, {1 << (8*(int(nm[1])-1)) if STAMPS else 1}
        s_add_u32 {s.spin2}, {s.spin2}, 1
        s_cmp_ge_u32 {s.spin2}, 40000
        s_cbranch_scc1 L_back{L}
        s_sleep {opt('ps', 3)}
        {ins}
        s_waitcnt vmcnt(0)
        v_cmp_ne_u32 vcc, {s.tag}, {pv}
        s_cbranch_vccnz L_retry{L}
        s_branch L_back{L}""".split('\n')
        return [ins + f" ;@{nm}"], [f"@wait {nm}\n v_cmp_ne_u32 vcc, {s.tag}, {pv}\n s_cbranch_vccnz L_retry{L}\n L_back{L}:"]
    def g1_setup_dma(s):
        A = s.A; vo = s.v('g1vo', 8); t = s.v('_t'); u = s.v('_u'); k = s.v('_k')
        s.sg('sox', 8, 1); s.sg('sow', 8, 1); s.sg('m0b'); s.sg('shift'); s.sg('tile0'); s.sg('rot')
        imm = [0, 1024, 2048, 3072, 0, 1024]
        for z in range(3):
            A(f"""v_add_u32 {t}, {64*z}, {s.l}
            v_mul_u32_u24 {u}, 2731, {t}
            v_lshrrev_b32 {u}, 16, {u}
            v_mul_u32_u24 {k}, 24, {u}
            v_sub_u32 {t}, {t}, {k}
            v_and_b32 {k}, 6, {u}
            v_xor_b32 {t}, {t}, {k}
            v_and_b32 {k}, 4, {u}
            v_add_u32 {u}, {u}, {k}
            v_mul_u32_u24 {u}, 2752, {u}
            v_lshl_add_u32 {t}, {t}, 4, {u}
            v_subrev_u32 {vo[z]}, {imm[z]}, {t}
            v_add_u32 {vo[3+z]}, {16*2752 - imm[3+z]}, {t}""")
        bx = s.sg('_bx'); bw = s.sg('_bw')
        A(f"""v_lshrrev_b32 {u}, 3, {s.l}
        v_and_b32 {t}, 7, {s.l}
        v_xor_b32 {t}, {t}, {s.q}
        v_lshlrev_b32 {u}, 10, {u}
        v_lshl_add_u32 {vo[6]}, {t}, 4, {u}
        v_xor_b32 {vo[7]}, 64, {vo[6]}
        v_add_u32 {vo[7]}, {262144-1024}, {vo[7]}
        s_mul_i32 {s.tile0}, {s.fs1}, 11
        s_min_u32 {s.tile0}, {s.tile0}, 76
        s_and_b32 {s.shift}, {s.tile0}, 1
        s_lshl_b32 {s.m0b}, {s.w}, 13
        s_lshl_b32 {bx}, {s.w}, 6
        s_add_u32 {bx}, {bx}, {s.rb1}
        s_lshl_b32 {bx}, {bx}, 13
        s_lshr_b32 {bw}, {s.w}, 1
        s_and_b32 {s.t1}, {s.w}, 1
        s_lshl3_add_u32 {bw}, {bw}, {s.t1}
        s_mul_i32 {bw}, {bw}, {4*2752}
        s_lshr_b32 {s.t1}, {s.tile0}, 1
        s_lshl_b32 {s.t1}, {s.t1}, 6
        s_add_u32 {bw}, {bw}, {s.t1}""")
        r1 = opt('rot1', 'x')
        if r1 == 'x': A(f"s_mov_b32 {s.rot}, {s.xcd}")
        elif r1 == '0': A(f"s_mov_b32 {s.rot}, 0")
        elif r1 == 'xh': A(f"s_and_b32 {s.t0}, {s.j}, 1\n s_lshl2_add_u32 {s.rot}, {s.t0}, {s.xcd}")
        elif r1 == 'xq': A(f"s_and_b32 {s.t0}, {s.j}, 3\n s_lshl1_add_u32 {s.rot}, {s.t0}, {s.xcd}")
        s.vfree('_t', '_u', '_k')
    def so_calc(s, c0, c1):
        for st in range(c0, c1):
            s.A(f"""s_and_b32 {s.rot}, {s.rot}, 7
            s_lshl_b32 {s.t1}, {s.rot}, 7
            s_add_u32 {s.sox[st]}, {s._bx}, {s.t1}
            s_mul_i32 {s.t1}, {s.rot}, {64*2752}
            s_add_u32 {s.sow[st]}, {s._bw}, {s.t1}
            s_add_u32 {s.rot}, {s.rot}, 1""")
        if c1 == 8: s.sfree('_bx', '_bw', 'rot')
    def g1_main(s, w3, extra, also, head):
        A = s.A
        A("@wait st0\n s_barrier"); s.stamp('in0')
        A(s.g1_reads(0, w3))
        for step in range(16):
            A([x.replace('@V', 'b' if w3 else 'a') for x in head.get(step, [])])
            if step % 2 == 1:
                nx = step // 2 + 1
                A("@wait lgkm=0 " + (f"st{nx} " if nx < 8 else "") + also.get(step, "")); A("s_barrier")
            else: A("@wait lgkm=0 " + also.get(step, ""))
            if step in (4, 8, 12): s.stamp(f's{step}')
            s.stamp(f'.g{step}')
            fill = (s.g1_reads(step + 1, w3) if step < 15 else []) + extra.get(step, [])
            mf = s.g1_mfmas(step, w3)
            for i, m in enumerate(mf):
                A(m)
                left = len(mf) - i
                k = 1 if len(fill) <= left else 2
                if left == 1: k = len(fill)
                A(fill[:k]); fill = fill[k:]
        if w3:
            t = s.v('_t', 4); ad = s.v('_ad')
            A(f"v_lshlrev_b32 {ad}, 4, {s.n}\n v_add_u32 {ad}, {L_MEAN}, {ad}")
            for mt in range(4): A(f"v_mul_f32 {t[mt]}, {fl(-1/512)}, {s.acc1[32+4*mt]}")
            for mt in range(4): A(f"v_cvt_pk_bf16_f32 {t[mt]}, {t[mt]}, {t[mt]}")
            for mt in range(4): A(f"v_lshlrev_b32 {t[mt]}, 16, {t[mt]}")
            A(f"ds_write_b128 {ad}, {t}\n s_waitcnt lgkmcnt(0)")
            s.vfree('_t', '_ad')
    def b_setup(s):
        A = s.A; s.v('b_lin'); s.sg('go', 4, 1); s.sg('gm0')
        A(f"""s_lshl_b32 {s.go[0]}, {s.w}, 9
        s_add_u32 {s.go[0]}, {s.go[0]}, {s.xcd}
        s_lshl_b32 {s.go[0]}, {s.go[0]}, 5
        s_add_u32 {s.go[0]}, {s.go[0]}, {s.j}
        s_lshl_b32 {s.go[0]}, {s.go[0]}, 6""")
        for z in range(1, 4): A(f"s_add_u32 {s.go[z]}, {s.go[0]}, {z*(16*16384-1024)}")
        A(f"""s_lshl_b32 {s.t0}, {s.w}, 11
        s_add_u32 {s.t0}, {s.t0}, {L_UO}
        v_add_u32 {s.b_lin}, {s.t0}, {s.l16}
        s_lshl_b32 {s.t0}, {s.w}, 12
        s_add_u32 {s.gm0}, {s.t0}, {L_U16}""")
    def e_addr(s, *a): pass
    def b_gather(s):
        return [f"s_mov_b32 m0, {s.gm0}"] + [f"buffer_load_dwordx4 {s.b_ga}, {s.sws}, {s.go[z]} offen offset:{1024*z} {LD} lds ;@gx" for z in range(4)]
    def b_main(s):
        A = s.A; Fr = s.v('bF', 8); D = [[s.v(f'bD{i}{x}', 4) for x in 'ri'] for i in range(2)]; tmp = s.v('btmp', 4)
        W = s.v('bWraw', 8); X = s.v('b_W', 16); U = [Fr[0:4], Fr[4:8]]; O = s.v('bO', 8)
        for pos, c in enumerate((0, 2, 1, 3)): A(f"ds_read_b64 {Fr[2*pos:2*pos+2]}, {s.b_ua} offset:{1024*c}")
        for x in range(2):
            for h in range(2): A(f"ds_read2st64_b32 {W[4*x+2*h:4*x+2*h+2]}, {s.b_wa[x]} offset0:{8*h} offset1:{8*h+4}")
        s.const_IV()
        A(f"s_waitcnt lgkmcnt(4)\n v_swap_b32 {Fr[1]}, {Fr[4]}\n v_swap_b32 {Fr[3]}, {Fr[6]}")
        stages = [(True, s.FWr, s.FWi), (False, s.FWr, s.FWi), (True, s.IVr, s.IVi), (False, s.IVr, s.IVi)]
        def mm(k, i):
            dataA, cr, ci = stages[k]
            for x, cc in enumerate((cr, ci)): A(f"{M16} {D[i][x]}, {U[i]}, {cc}, 0" if dataA else f"{M16} {D[i][x]}, {cc}, {U[i]}, 0")
        def vv(k, i):
            if k == 0: s.cmul(D[i][0], D[i][1], D[i][0], D[i][1], s.T256c, s.T256s, tmp, False)
            if k == 1: s.cmul(D[i][0], D[i][1], D[i][0], D[i][1], X[8*i:8*i+4], X[8*i+4:8*i+8], tmp, True)
            if k == 2: s.cmul(D[i][0], D[i][1], D[i][0], D[i][1], s.T256c, s.T256s, tmp, True)
            for c in range(4): A(f"v_cvt_pk_bf16_f32 {U[i][c] if k < 3 else O[2*c+i]}, {D[i][0][c]}, {D[i][1][c]}")
        mm(0, 0); mm(0, 1)
        A("s_waitcnt lgkmcnt(0)")
        for x in range(2):
            for r in range(4): A(f"v_lshlrev_b32 {X[4*x+r]}, 16, {W[4*x+r]}")
        vv(0, 0)
        un = [f"v_and_b32 {X[8+4*x+r]}, 0xffff0000, {W[4*x+r]}" for x in range(2) for r in range(4)]
        for k in range(1, 4):
            A(un[:2]); un = un[2:]
            mm(k, 0); vv(k-1, 1)
            if k == 1: A(un); un = []
            mm(k, 1); vv(k, 0)
        vv(3, 1)
        for c in range(4): A(f"ds_write_b64 {s.b_uo}, {O[2*c:2*c+2]} offset:{512*c}")
    def b_store(s):
        A = s.A; Fr = s.bF
        for t in range(2): A(f"ds_read_b128 {Fr[4*t:4*t+4]}, {s.b_lin} offset:{1024*t}")
        A(f"s_lshl_b32 {s.t0}, s2, 13\n s_lshl_b32 {s.t1}, {s.w}, 11\n s_add_u32 {s.t0}, {s.t0}, {s.t1}\n s_add_u32 {s.t0}, {s.t0}, {WS_Y1}")
        for t in range(2):
            A(f"s_waitcnt lgkmcnt({1-t})\n buffer_store_dwordx4 {Fr[4*t:4*t+4]}, {s.b_st}, {s.sws}, {s.t0} offen offset:{1024*t} {ST} ;@y1")
        s.vfree('bD0r', 'bD0i', 'bD1r', 'bD1i', 'btmp', 'b_W', 'bWraw', 'b_ua', 'b_wa', 'b_uo', 'T256c', 'T256s', 'bO', 'b_lin', 'b_ga', 'FWr', 'FWi'); s.sfree('go', 'gm0')
    def const_IV(s):
        s.v('IVr', 4); s.v('IVi', 4)
        for c in range(4): s.A(f"v_xor_b32 {s.IVr[c]}, 0x80000000, {s.FWr[c]}\n v_xor_b32 {s.IVi[c]}, 0x8000, {s.FWi[c]}")
    def const_CG(s):
        m = s.v('_m'); s.v('CGr', 4); s.v('CGi', 4)
        s.A(f"v_lshlrev_b32 {m}, 30, {s.q}\n v_and_b32 {m}, 0x80000000, {m}")
        for c in range(4): s.A(f"v_xor_b32 {s.CGr[c]}, {s.IVr[c]}, {m}\n v_xor_b32 {s.CGi[c]}, {s.IVi[c]}, {m}")
        s.vfree('_m', 'IVr', 'IVi')
    def g2_rot(s):
        A = s.A; so = s.sg('hso', 11, 1); r2 = opt('rot2', 'x')
        if r2 == '0': A(f"s_mov_b32 {so[0]}, 0")
        elif r2 == 'x': A(f"s_lshl_b32 {so[0]}, {s.xcd}, 12")
        elif r2 == 'xf':
            A(f"""s_lshl2_add_u32 {s.t0}, {s.fs}, {s.xcd}
            s_mul_i32 {s.t1}, {s.t0}, 5958
            s_lshr_b32 {s.t1}, {s.t1}, 16
            s_mul_i32 {s.t1}, {s.t1}, 11
            s_sub_u32 {s.t0}, {s.t0}, {s.t1}
            s_lshl_b32 {so[0]}, {s.t0}, 12""")
        for i in range(1, 11):
            A(f"s_add_u32 {so[i]}, {so[i-1]}, 4096\n s_cmp_eq_u32 {so[i]}, {11*4096}\n s_cselect_b32 {so[i]}, 0, {so[i]}")
    def g2_hsrd(s):
        A = s.A; r = s.sg('sh', 4, 4)
        A(f"""s_mul_i32 {s.t0}, {s.rb}, 86
        s_mul_i32 {s.t1}, {s.w}, 22
        s_add_u32 {s.t0}, {s.t0}, {s.t1}
        s_lshl_b32 {s.t0}, {s.t0}, 11
        s_add_u32 {s.t0}, {s.t0}, {WS_H}
        s_add_u32 {r[0]}, {s.sws[0]}, {s.t0}
        s_addc_u32 {r[1]}, {s.sws[1]}, 0
        s_cmp_eq_u32 {s.w}, 3
        s_cselect_b32 {r[2]}, 20, 22
        s_lshl_b32 {r[2]}, {r[2]}, 11
        s_mov_b32 {r[3]}, 0x20000""")
    def w2dma(s, hb):
        pos = hb % 8
        return [f"s_add_u32 m0, {s.m0b}, {(pos//2)*32768 + (pos%2)*4096}", f"s_lshl3_add_u32 {s.t2}, {s.hso[hb]}, {s.sw2o}"] + \
               [f"buffer_load_dwordx4 {s.g2vo[z]}, {s.sw2}, {s.t2} offen offset:{1024*z} lds ;@wb{hb}" for z in range(4)]
    def w2read(s, hb):
        pos = hb % 8; slot = pos // 2; dst = s.w2f[16*hb:16*hb+16]
        return [f"ds_read_b64_tr_b16 {dst[8*ks+4*nt+2*i:8*ks+4*nt+2*i+2]}, {s.g2ra[2*(slot//2)+nt]} offset:{(slot%2)*32768 + (pos%2)*4096 + ks*2048 + i*512}"
                for ks in range(2) for nt in range(2) for i in range(2)]
    def red_setup(s):
        s.g2_red_setup(); s.v('rv', 4); s.v('rn', 4); s.sg('rowo', 2); t = s.v('_t')
        s.A(f"""v_lshrrev_b32 {t}, 3, {s.l}
        s_lshl_b32 {s.t0}, {s.rb}, 8
        s_lshl2_add_u32 {s.t0}, {s.w}, {s.t0}
        s_add_u32 {s.t0}, {s.t0}, {WS_R}
        v_lshl_add_u32 {s.rn[0]}, {t}, 5, {s.t0}
        s_lshl_b32 {s.t0}, {s.w}, 5
        s_add_u32 {s.t0}, {s.t0}, {s.rb}
        s_lshl_b32 {s.t0}, {s.t0}, 6
        s_add_u32 {s.t0}, {s.t0}, {s.fs}
        s_lshl_b32 {s.rowo[0]}, {s.t0}, 7
        s_add_u32 {s.rowo[1]}, {s.rowo[0]}, {4*262144}""")
        s.vfree('_t')
    def red_silu(s, mt):
        a = s.acc2[32*mt:32*mt+32]; o = []
        for h in range(0, 8, 2): o.append(f"v_pk_add_f32 {a[h:h+2]}, {a[h:h+2]}, {a[8+h:10+h]}")
        for h in range(0, 8, 2): o.append(f"v_pk_add_f32 {a[16+h:18+h]}, {a[16+h:18+h]}, {a[24+h:26+h]}")
        for h in range(0, 8, 2): o.append(f"v_pk_add_f32 {a[h:h+2]}, {a[h:h+2]}, {a[16+h:18+h]}")
        for h in range(0, 8, 2): o.append(f"v_pk_mul_f32 {a[8+h:10+h]}, {a[h:h+2]}, {s.rn[2*mt:2*mt+2]} op_sel_hi:[1,0]")
        for c in range(8): o.append(f"v_exp_f32 {a[8+c]}, {a[8+c]}")
        for h in range(0, 8, 2): o.append(f"v_pk_mul_f32 {a[h:h+2]}, {a[h:h+2]}, {s.rv[2*mt:2*mt+2]} op_sel_hi:[1,0]")
        for h in range(0, 8, 2): o.append(f"v_pk_add_f32 {a[8+h:10+h]}, {a[8+h:10+h]}, 1.0 op_sel_hi:[1,0]")
        for c in range(8): o.append(f"v_rcp_f32 {a[8+c]}, {a[8+c]}")
        for h in range(0, 8, 2): o.append(f"v_pk_mul_f32 {a[h:h+2]}, {a[h:h+2]}, {a[8+h:10+h]}")
        return o
    def fin(s, mt, X, S):
        a = s.acc2[32*mt:32*mt+32]; o = []
        for c in range(4): o += [f"v_lshlrev_b32 {a[8+2*c]}, 16, {X[c]}", f"v_and_b32 {a[9+2*c]}, 0xffff0000, {X[c]}"]
        for c in range(4): o += [f"v_lshlrev_b32 {a[16+2*c]}, 16, {S[c]}", f"v_and_b32 {a[17+2*c]}, 0xffff0000, {S[c]}"]
        for h in range(0, 8, 2): o.append(f"v_pk_fma_f32 {a[h:h+2]}, {a[h:h+2]}, {a[16+h:18+h]}, {a[8+h:10+h]}")
        for c in range(4): o.append(f"v_cvt_pk_bf16_f32 {a[24+c]}, {a[2*c]}, {a[2*c+1]}")
        o.append(f"buffer_store_dwordx4 {a[24:28]}, {s.g2st}, {s.sout}, {s.rowo[mt]} offen {opt('outf', '').replace('+', ' ')} ;@out")
        return o
    def s_prep(s):
        s.A(f"s_add_u32 {s.xo[0]}, {s.xo[0]}, {WS_S - 2048}\n s_add_u32 {s.xo[1]}, {s.xo[0]}, 262144")
    def red_silu_scalar(s, mt):
        a = s.acc2[32*mt:32*mt+32]; o = []
        for c in range(8): o += [f"v_add_f32 {a[c]}, {a[c]}, {a[8+c]}", f"v_add_f32 {a[16+c]}, {a[16+c]}, {a[24+c]}"]
        for c in range(8): o.append(f"v_add_f32 {a[c]}, {a[c]}, {a[16+c]}")
        for c in range(8): o.append(f"v_mul_f32 {a[8+c]}, {a[c]}, {s.rn[2*mt]}")
        for c in range(8): o += [f"v_exp_f32 {a[8+c]}, {a[8+c]}", f"v_mul_f32 {a[c]}, {a[c]}, {s.rv[2*mt]}"]
        for c in range(8): o.append(f"v_add_f32 {a[8+c]}, 1.0, {a[8+c]}")
        for c in range(8): o.append(f"v_rcp_f32 {a[8+c]}, {a[8+c]}")
        for c in range(8): o.append(f"v_mul_f32 {a[c]}, {a[c]}, {a[8+c]}")
        return o
    def s_store(s):
        A = s.A; D = [[s.cD0r, s.cD0i], [s.cD1r, s.cD1i]]; Q = s.v('sQ', 8)
        for i in range(2):
            for y in range(2):
                for h in range(2): A(f"v_cvt_pk_bf16_f32 {Q[4*i+2*y+h]}, {D[i][y][2*h]}, {D[i][y][2*h+1]}")
        for i in range(2):
            A(f"v_permlane16_swap_b32 {Q[4*i]}, {Q[4*i+2]}\n v_permlane16_swap_b32 {Q[4*i+1]}, {Q[4*i+3]}")
            A(f"buffer_store_dwordx4 {Q[4*i:4*i+4]}, {s.s_st}, {s.sws}, {s.xo[i]} offen {ST} ;@s")

    def build(s):
        A = s.A
        s.prologue(); s.ids(); s.xr_prep(); s.g1_setup_dma(); s.so_calc(0, 2); s.a_setup(); s.w_prep(); s.pf_prep()
        A(f"s_waitcnt lgkmcnt(0)\n s_sub_u32 {s.sx[0]}, {s.sx[0]}, 2048\n s_subb_u32 {s.sx[1]}, {s.sx[1]}, 0")
        s.stamp('karg'); s.xr_issue()
        if opt('pf1', 1): s.pf_issue(s.sw1)
        if opt('wearly', 1): A(s.w_load()); s.sfree('swr', 'swi', 'wl')
        if opt('pf2', 1) == 1: s.pf_issue(s.sw2)
        d = [glue(s.g1_dma(st)) for st in range(8)]
        q = d[0] + d[1] + d[2]
        n0 = opt('n0', 3); A(q[:n0]); q = q[n0:]
        tr = s.tables()
        s.const_A3(); s.so_calc(2, 8); s.g1_setup_rd()
        A("@wait tb\n s_barrier"); s.stamp('tb'); A(tr[:10])
        if not opt('wearly', 1): A(s.w_load()); s.sfree('swr', 'swi', 'wl')
        mid = s.cap(s.flags_setup) + tr[10:] + s.cap(s.b_setup) + s.cap(s.g2_setup) + s.cap(s.g2_rot)
        n1 = opt('n1', 7); A(sprinkle(mid, q[:n1], 2, opt('e0', 14))); q = q[n1:]
        s.tag_load()
        if opt('pf2', 1) == 2: s.pf_issue(s.sw2)
        A("s_waitcnt lgkmcnt(0)"); s.a_setup2()
        A("@wait xr"); s.stamp('xin')
        na = opt('na', 10)
        A(sprinkle(s.cap(s.a_part1, ""), q[:na], opt('f1a', 10), opt('e1', 15))); q = q[na:]
        A("s_waitcnt lgkmcnt(0)\n s_barrier"); s.stamp('a1')
        nb2 = opt('na2', 99); A(sprinkle(s.cap(s.a_part2), q[:nb2], 1, 5)); q = q[nb2:]
        s.a_free(); s.stamp('a2')
        extra = {t: [] for t in range(16)}; also = {}; head = {}
        dd = [s.g1_dma(st) for st in range(8)]; o3 = opt('o3', 1)
        for st in range(3, 8): extra[2*(st-3)+o3] += dd[st][:5]; extra[2*(st-3)+1+o3] += dd[st][5:]
        also[0] = 'tag'; extra[0] = s.tag_fix() + q + extra[0]
        f1 = opt('f1', 5); also[f1] = 'x1'; extra[f1] = s.flag('f1', s.fo) + extra[f1]
        p1 = opt('p1', 11); c1s = opt('c1', 13)
        i1, c1 = s.poll('p1', s.pa, 0, 'a'); s.poll('p1', s.pa, 0, 'b')
        wst = [int(x) for x in opt('wst', '11,12,14,15').split(',')]
        head[c1s] = [c1[0].replace('p1a', 'p1@V')]; extra[c1s] += s.b_gather()
        for hb, st in enumerate(wst): extra[st] += s.w2dma(hb)
        extra[p1] = i1 + extra[p1]
        A(f"s_cmp_eq_u32 {s.w}, 3\n s_cbranch_scc1 L_w3")
        log = list(A.vmlog)
        s.g1_main(False, extra, also, head)
        A("s_branch L_g1done\n L_w3:")
        log2 = A.vmlog; A.vmlog = log
        s.g1_main(True, extra, also, head)
        assert log2 == A.vmlog
        A("L_g1done:\n s_nop 7")
        s.vfree('pfo', 'pfd'); s.stamp('g1main')
        rb, fs = s.rb, s.fs; s.rb, s.fs = s.rb1, s.fs1; s.g1_epilogue(ST); s.rb, s.fs = rb, fs
        s.stamp('g1epi')
        s.v('acc2', 64); s.a('w2f', 176); NH = s.NH = opt('nh', 16); s.a('hf', 4*NH); s.AC.hw = 256
        nb = len(wst)
        A("@wait gx\n s_barrier")
        A(sprinkle(s.cap(s.b_main), glue(s.w2dma(nb)), 8, 3))
        A("s_waitcnt lgkmcnt(0)\n s_barrier"); s.b_store(); s.stamp('b')
        cc = s.cap(s.red_setup) + s.cap(s.g2_hsrd) + s.cap(s.const_CG) + s.cap(s.const_C3) + s.cap(s.c_setup) + s.cap(s.s_prep); s.vfree('c_xo')
        A(f"@wait wb{nb-1}"); A(sprinkle(cc, sum((s.w2read(h) for h in range(nb)), []), 0, 3))
        A(s.w2dma(nb+1)); s.stamp('pre')
        A("@wait y1 lgkm=0\n s_barrier"); A(s.flag('f2', s.fo2)); A(s.flag('f3', s.fo, F3 - F1)); s.stamp('ack')
        s.vfree('bF', 'b_st')
        X = s.v('fX', 8); S = s.v('fS', 8); pv2 = s.v('pv2')
        xl = [f"buffer_load_dword {s.rv[0]}, {s.rn[0]}, {s.sws}, 0 offen {LD} ;@r", f"buffer_load_dword {s.rv[2]}, {s.rn[0]}, {s.sws}, 0 offen offset:16 {LD} ;@r"] + \
             [f"buffer_load_dwordx4 {X[4*m:4*m+4]}, {s.g2st}, {s.sx}, {s.rowo[m]} offen offset:2048 ;@xt" for m in range(2)]
        nw = opt('nw', 9)
        A(s.w2read(nb))
        for h in range(nb+2, nw): A(s.w2dma(h))
        A(xl); A(f"@wait wb{nb+1}"); A(s.w2read(nb+1))
        if opt('d2', 0): A(f"s_sleep {opt('d2', 0)}")
        i2, c2 = s.poll('p2', s.pg, 0, pv=pv2); i3, c3 = s.poll('p3', s.pa, s.k4096); i4, c4 = s.poll('p4', s.pg, s.k4096)
        s.stamp('pre2'); A(i3); A(i2); A(c3); A("s_barrier"); s.c_gather(LD); s.stamp('f3')
        for h in range(nw, 11): A(s.w2dma(h))
        A(c2); s.stamp('f2')
        for h in range(nb+2, nw): A(s.w2read(h))
        hq = [s.g2_hload(i, LD) for i in range(NH)]; nh0 = opt('nh0', 4)
        A(hq[:nh0]); hq = hq[nh0:]
        A(f"v_mul_f32 {s.rn[0]}, {fl(-1.4426950408889634)}, {s.rv[0]}\n v_mul_f32 {s.rn[2]}, {fl(-1.4426950408889634)}, {s.rv[2]}")
        A("@wait gy\n s_barrier"); s.stamp('gy')
        cs = s.cap(s.c_part1) + ["s_waitcnt lgkmcnt(0)", "s_barrier"] + s.cap(s.c_part2)
        A(sprinkle(cs, hq, 2, opt('e3', 6)))
        if nw < 11:
            A("@wait wb10")
            for h in range(nw, 11): A(s.w2read(h))
        s.s_store(); s.stamp('c')
        ev = {i: [] for i in range(44)}
        f4 = opt('f4', NH); p4 = opt('p4', 30); c4i = opt('c4', 38)
        ev[f4] = ["@wait s\n s_barrier"] + s.flag('f4', s.fo, F4 - F1)
        ev[p4] = i4
        ev[c4i] = [f"s_add_u32 {s.t0}, {s.rowo[0]}, {WS_S}", f"s_add_u32 {s.t1}, {s.rowo[1]}, {WS_S}"] + c4 + \
                  [f"buffer_load_dwordx4 {S[0:4]}, {s.g2st}, {s.sws}, {s.t0} offen {LD} ;@s0", f"buffer_load_dwordx4 {S[4:8]}, {s.g2st}, {s.sws}, {s.t1} offen {LD} ;@s1"]
        for k in range(4): ev[24+k] += s.g2_red_write(0)[2*k:2*k+2]
        ev[29] += ["s_waitcnt lgkmcnt(0)\n s_barrier"] + s.g2_red_read(0)
        stream = s.red_silu_scalar(0) + s.fin(0, X[0:4], S[0:4])[:8]; per = opt('per', 7)
        for idx in range(44):
            mt, i = divmod(idx, 22); sl = idx % NH
            A(f"@wait h{idx}" + (" lgkm=0" if idx in (0, 32) else ""))
            if idx == 0: s.stamp('h0')
            if idx == 22: s.stamp('ph1')
            if idx and idx % 3 == 0: s.stamp(f'.h{idx}')
            fill = list(ev[idx])
            if idx >= 32:
                k = max(0, per - len(fill)); fill += stream[:k]; stream = stream[k:]
            hl = [s.g2_hload(idx + NH, LD)] if idx + NH < 44 else []
            h = (len(fill) + 1) // 2
            for nt in range(2):
                acc = s.acc2[32*mt+16*nt:32*mt+16*nt+16]
                A(f"{M32} {acc}, {s.w2f[8*i+4*nt:8*i+4*nt+4]}, {s.hf[4*sl:4*sl+4]}, {acc if i else 0}")
                A(fill[:h] if nt == 0 else hl + fill[h:])
        s.stamp('g2main')
        A(stream)
        A(f"""s_cmp_eq_u32 {s.p}, 0
        s_cselect_b32 {s.t2}, {s.fo}, {WS_SIZE}
        s_add_u32 {s.t2}, {s.t2}, {EP - F1}""")
        A(s.g2_red_write(1))
        A("s_waitcnt lgkmcnt(0)\n s_barrier"); A(s.g2_red_read(1))
        A("@wait s0"); A(s.fin(0, X[0:4], S[0:4])[8:])
        A("s_waitcnt lgkmcnt(0)"); A(s.red_silu(1)); s.stamp('red')
        A("@wait s1"); A(s.fin(1, X[4:8], S[4:8]))
        A(s.flag('ep', s.t2)); s.stamp('fin')
        s.end()
k = V(); k.build()
o = open("recurrent_scan__spectral_gfnet__dense_activation_relu__prompt.s.ref").read().split("; Override launch")[0]
o += f"; @launch grid=(256,1,1) block=(256,1,1) lds={LDS}\n"
o += '.amdgcn_target "amdgcn-amd-amdhsa--gfx950"\n.text\n'
b, d = k.text()
o += b + '.section .rodata,"a"\n.p2align 6\n' + d + k.tb.text("tbl")
open(sys.argv[1], "w").write(o)
print("v", k.V.hw, "a", k.AC.hw, "s", k.S.hw, "instrs", len(k.A.lines), "nops", k.A.nops)
if STAMPS: open(sys.argv[1] + ".tags", "w").write(" ".join(k.tags))
```

```python
import sys
import numpy as np
import comp
from comp import K, M16, M32, fl, EH, RED_S
from asmlib import *
import tables as TB
KN = "recurrent_scan__spectral_gfnet__dense_activation_relu__prompt_kernel"
OPT = dict(a.split('=') for a in sys.argv[2:] if '=' in a)
def opt(k, d): return type(d)(OPT.get(k, d))
STAMPS = 'stamps' in sys.argv[2:]
WS_X1 = 0; WS_Y1 = 4 << 20; WS_H = 6 << 20; WS_S = 12 << 20; WS_FLAG = 14 << 20; WS_SIZE = 15 << 20
F1 = WS_FLAG; F3 = F1 + 4096; REPS = 8192; F2 = F1 + 65536; F4 = F2 + 4096; EP = F2 + 8192; WS_R = F2 + 16384
comp.WS_H = WS_H; comp.WS_SIZE = WS_SIZE; comp.WS_Y1 = WS_Y1
LB = 131072
comp.L_E = L_E = LB; L_UO = LB; comp.L_XR = L_XR = L_XO = L_U16 = comp.L_U = LB + 8704; XOS = 544
L_TB = 98304; comp.L_MEAN = L_MEAN = LB + 26112; LDS = L_MEAN + 256
ST = "sc1"; LD = "sc1"; comp.SWZ_BITS = 1 if opt('swz', 1) else 2
def sprinkle(base, ins, first, every):
    out = []; ins = list(ins); due = 0
    for i, x in enumerate(base):
        out.append(x)
        if i >= first and (i - first) % every == 0: due += 1
        nxt = base[i+1] if i + 1 < len(base) else ''
        if due and ins and not nxt.startswith(('s_cselect', 's_addc', 's_subb', 's_cbranch')):
            out.append(ins.pop(0)); due -= 1
    return out + ins
def glue(lst):
    out = []; pend = []
    for x in lst:
        pend.append(x)
        if not x.startswith('s_'): out.append("\n".join(pend)); pend = []
    if pend: out.append("\n".join(pend))
    return out

class V(K):
    def __init__(s):
        super().__init__(KN); s.S = Regs('s', 3, 102); s.AC = Regs('a', 0, 240); s.tail = []; s.tb = TB.Table()
    def lab(s, x): return f"L_{x}"
    def cap(s, fn, *a):
        out = []
        class C:
            def __call__(c, t):
                if isinstance(t, (list, tuple)):
                    for x in t: c(x)
                elif 'exec' in t: out.append(t)
                else: out.extend(l.strip() for l in t.split('\n') if l.strip())
        old = s.A; s.A = C(); fn(*a); s.A = old; return out
    def stamp(s, tag=''):
        if not STAMPS: return
        fine = opt('fine', '')
        if tag.startswith('.'):
            if not tag.startswith('.' + fine) or not fine: return
        elif fine and tag not in ('start', 'end', 'in0', 'g1main', 'g1epi', 'b', 'f2', 'h0', 'g2main', 'xin', 'karg'): return
        if not hasattr(s, 'tags'): s.tags = []; s.sg('_sp', 4, 2); s.v('_sv')
        if tag not in s.tags: s.tags.append(tag)
        i = s.tags.index(tag)
        s.A(f"{'s_memtime' if opt('cyc', 0) else 's_memrealtime'} {s._sp[2*(i%2):2*(i%2)+2]}")
        if i > 0: s.A(f"v_writelane_b32 {s._sv}, {s._sp[2*((i-1)%2)]}, {i-1}")
    def end(s):
        A = s.A
        if STAMPS:
            A("s_waitcnt vmcnt(0)"); s.stamp('end'); n = len(s.tags)
            A(f"""s_waitcnt lgkmcnt(0)
            v_writelane_b32 {s._sv}, {s._sp[2*((n-1)%2)]}, {n-1}
            v_writelane_b32 {s._sv}, {s.spin}, 31
            s_lshl_b32 {s.t0}, s2, 2
            s_add_u32 {s.t0}, {s.t0}, {s.w}
            s_lshl_b32 {s.t0}, {s.t0}, 7
            s_add_u32 {s.t0}, {s.t0}, {32<<20}
            v_lshl_add_u32 v0, {s.l}, 2, {s.t0}
            s_mov_b64 exec, 0xffffffff
            global_store_dword v0, {s._sv}, {s.sws[0:2]}""")
        A("L_end:\n s_endpgm"); A(s.tail); A("L_codeend:")
    def vfree(s, *names): super().vfree(*[x for x in names if x in s.V.names])
    SRDS = [('sx', 0, 2097152 + 2048), ('sw1', 32, 1409024), ('sws', 64, WS_SIZE), ('swr', 8, 2048*514), ('swi', 16, 2048*514), ('sw2', 40, 1409024), ('sout', 48, 2097152)]
    def prologue(s):
        A = s.A; s.stamp('start')
        for nm, off, sz in s.SRDS: s.sg(nm, 4, 4); A(f"s_load_dwordx2 {getattr(s, nm)[0:2]}, s[0:1], {off}")
        s.sg('stb', 2); s.sg('spc', 2)
        s.v('l'); s.v('n'); s.v('q'); s.v('l16')
        for nm in ('w', 'rb', 'fs', 'p', 't0', 't1', 't2', 'xcd', 'j', 'rb1', 'fs1', 'spin', 'spin2'): s.sg(nm)
        t = s.v('_t'); u = s.v('cpf')
        A(f"""v_lshrrev_b32 {s.q}, 6, v0
        s_cmp_ge_u32 s2, 256
        s_cbranch_scc1 L_end
        s_getpc_b64 {s.spc}
        L_pc:
        s_add_u32 {s.stb[0]}, {s.spc[0]}, tbl@rel32@lo+4
        s_addc_u32 {s.stb[1]}, {s.spc[1]}, tbl@rel32@hi+12
        v_readfirstlane_b32 {s.w}, {s.q}
        v_and_b32 {s.l}, 63, v0
        v_lshlrev_b32 {s.l16}, 4, {s.l}
        s_mul_i32 {s.t0}, {s.w}, 5120
        s_add_u32 m0, {s.t0}, {L_TB}
        v_add_u32 {t}, {s.t0}, {s.l16}""")
        for z in range(4): A(f"global_load_lds_dwordx4 {t}, {s.stb} offset:{1024*z} ;@tb")
        A(f"""s_add_u32 m0, {s.t0}, {L_TB + 4096}
        v_add_u32 {t}, 4096, {t}
        global_load_lds_dwordx4 {t}, {s.stb} ;@tb
        s_lshr_b32 {s.j}, s2, 3
        s_and_b32 {s.t0}, {s.j}, 7
        s_lshl_b32 {s.t0}, {s.t0}, 12
        v_lshrrev_b32 {t}, 3, v0
        v_lshl_add_u32 {t}, {t}, 7, {s.t0}
        v_min_u32 {t}, L_codeend-L_pc-4, {t}
        global_load_dword {u}, {t}, {s.spc} ;@cpf""")
        s.vfree('_t'); s.sfree('stb', 'spc')
    def tables(s):
        l, n, q = TB.l, TB.n, TB.q
        b1 = TB.B1(); t5 = TB.T(512); f = TB.F16(); sa = TB.SA(); t2 = TB.T(256); c1 = TB.C1(); sc = TB.SC()
        ka8, jj = l >> 3, l & 7; i5 = l & 31
        ast = lambda t: L_XO + XOS*(n >> 1) + 64*(4*t + q) + 16*((n & 1) ^ (2*t + (q >> 1)))
        tl = [('m1', [514*ka8 + 16*jj, L_XO + XOS*ka8 + 64*jj + 16*(2 ^ (jj >> 1)), 2048*(l >> 5) + 64*(i5 >> 2) + 16*((i5 & 3) ^ (i5 >> 3)), L_XO + XOS*(l >> 5) + 16*i5], 'wlo wso xost xord'),
              ('B1r', b1[0], ''), ('B1i', b1[1], ''),
              ('m2', [0x3f80 + 0*l, TB.u32(1.0 + 0*l), TB.u32(np.where(n == 0, 1.0, 0.0)), TB.u32(np.where(n < 8, 1.0, -1.0))], 'sel0 sel1 mn0 sgn'),
              ('T512c', t5[0], ''), ('T512s', t5[1], ''), ('FWr', f['FWr'], ''), ('FWi', f['FWi'], ''), ('SAr', sa[0], ''), ('SAi', sa[1], ''),
              ('a_wr', [L_E + 16 * TB.sig_unit(k, n) for k in TB.kk], ''),
              ('m3', [L_E + 16 * (8*(n >> 2) + 4*(q >> 1) + (n & 3)) + EH * (q & 1), ast(0), ast(1), 16384*(l >> 2) + 16*((l ^ q) & 3)], 'a_rd a_st0 a_st1 b_ga'),
              ('m4', [4096*q + 64*n + 16*(n >> 2), 2048*q + 32*n + 16*(n >> 3), 32*(l >> 1) + 16*((l ^ q) & 1), 32*i5 + 16*(l >> 5)], 'b_ua b_uo b_st s_st'),
              ('c_er', [L_E + 16 * TB.sig_unit(n, k) for k in TB.kk], ''),
              ('T256c', t2[0], ''), ('T256s', t2[1], ''),
              ('C1x', c1[0], 'A'), ('C1y', c1[1], 'A'), ('SCr', sc[0], 'A'), ('SCi', sc[1], 'A')]
        assert len(tl) == 20
        ad = s.v('_tad'); s.A(f"v_add_u32 {ad}, {L_TB}, {s.l16}"); na = 0; out = []
        for nm, quad, sub in tl:
            i = s.tb.add(quad)
            if sub == 'A': r = R('a', 240 + 4*na, 4); na += 1; setattr(s, nm, r)
            else:
                r = s.v(nm, 4)
                if sub:
                    b, _ = s.V.names.pop(nm)
                    for k, x in enumerate(sub.split()): s.V.names[x] = (b + k, 1); setattr(s, x, r[k])
            out.append(f"ds_read_b128 {r}, {ad} offset:{1024*i}")
        return out
    def ids(s):
        A = s.A
        A(f"""v_and_b32 {s.n}, 15, v0
        v_lshrrev_b32 {s.q}, 4, {s.l}
        s_and_b32 {s.xcd}, s2, 7
        s_and_b32 {s.t0}, {s.j}, 3
        s_lshl2_add_u32 {s.rb}, {s.xcd}, {s.t0}
        s_lshr_b32 {s.fs}, s2, 5
        s_lshl3_add_u32 {s.p}, {s.rb}, {s.fs}""")
        if opt('g1map', 1):
            A(f"""s_lshr_b32 {s.t0}, {s.xcd}, 1
            s_and_b32 {s.t1}, {s.j}, 7
            s_lshl3_add_u32 {s.rb1}, {s.t0}, {s.t1}
            s_and_b32 {s.t0}, {s.xcd}, 1
            s_lshr_b32 {s.t1}, s2, 6
            s_lshl2_add_u32 {s.fs1}, {s.t0}, {s.t1}""")
        else: A(f"s_mov_b32 {s.rb1}, {s.rb}\n s_mov_b32 {s.fs1}, {s.fs}")
        for nm, off, sz in s.SRDS:
            r = getattr(s, nm); A(f"s_mov_b32 {r[2]}, {sz}\n s_mov_b32 {r[3]}, 0x20000")
    def xr_prep(s):
        s.sg('xo', 2)
        s.A(f"""s_lshl_b32 {s.t0}, {s.w}, 11
        s_add_u32 m0, {s.t0}, {L_XR}
        s_lshl_b32 {s.xo[0]}, {s.w}, 9
        s_add_u32 {s.xo[0]}, {s.xo[0]}, {s.p}
        s_lshl_b32 {s.xo[0]}, {s.xo[0]}, 10
        s_add_u32 {s.xo[0]}, {s.xo[0]}, 2048
        s_add_u32 {s.xo[1]}, {s.xo[0]}, {262144-1024}""")
    def xr_issue(s):
        s.A(f"""buffer_load_dwordx4 {s.l16}, {s.sx}, {s.xo[0]} offen lds ;@xr
        buffer_load_dwordx4 {s.l16}, {s.sx}, {s.xo[1]} offen offset:1024 lds ;@xr""")
    def w_prep(s):
        s.sg('wl'); s.sg('x1o', 4, 1)
        s.A(f"""s_mul_i32 {s.wl}, {s.p}, 4112
        s_lshl_b32 {s.t0}, {s.w}, 7
        s_add_u32 {s.wl}, {s.wl}, {s.t0}
        s_add_u32 {s.wl}, {s.wl}, 2
        s_lshl_b32 {s.x1o[0]}, {s.p}, 14
        s_lshl_b32 {s.t0}, {s.w}, 9
        s_add_u32 {s.x1o[0]}, {s.x1o[0]}, {s.t0}
        s_add_u32 {s.x1o[1]}, {s.x1o[0]}, 4096
        s_add_u32 {s.x1o[2]}, {s.x1o[0]}, 8192
        s_add_u32 {s.x1o[3]}, {s.x1o[0]}, 12288""")
    def pf_prep(s):
        s.v('vtag'); s.v('pfo'); s.v('pfd'); s.v('wlo2'); t = s.v('_t')
        s.A(f"""s_mul_i32 {s.t0}, s2, 43
        s_mul_i32 {s.t1}, {s.w}, 11
        s_add_u32 {s.t0}, {s.t0}, {s.t1}
        v_min_u32 {s.pfo}, 10, {s.n}
        v_add_lshl_u32 {s.pfo}, {s.t0}, {s.pfo}, 7
        v_lshrrev_b32 {t}, 3, {s.l}
        v_mul_u32_u24 {t}, {514-128}, {t}
        v_add_u32 {s.wlo2}, {t}, {s.l16}""")
        s.vfree('_t')
    def pf_issue(s, srd):
        s.A(f"s_mov_b64 exec, 0xffff\n buffer_load_dword {s.pfd}, {s.pfo}, {srd}, 0 offen ;@pf\n s_mov_b64 exec, -1")
    def tag_load(s): s.A(f"s_mov_b32 {s.t0}, {EP}\n buffer_load_dword {s.vtag}, off, {s.sws}, {s.t0} sc1 ;@tag")
    def w_load(s):
        W = s.v('wraw', 8)
        return [f"buffer_load_dwordx4 {W[0:4]}, {s.wlo2}, {s.swr}, {s.wl} offen ;@W", f"buffer_load_dwordx4 {W[4:8]}, {s.wlo2}, {s.swi}, {s.wl} offen ;@W"]
    def a_setup(s):
        A = s.A; s.v('a_trad'); s.sg('mq0', 2); b = s.sg('_ab', 3, 1)
        A(f"""s_lshl_b32 {s.t0}, {s.w}, 11
        s_add_u32 {s.t0}, {s.t0}, {L_XR}
        v_lshl_add_u32 {s.a_trad}, {s.l}, 3, {s.t0}
        s_mov_b64 {s.mq0}, 0xffff
        s_lshr_b32 {s.t0}, {s.w}, 1
        s_mul_i32 {s.t0}, {s.t0}, {EH}
        s_and_b32 {s.t1}, {s.w}, 1
        s_lshl3_add_u32 {b[0]}, {s.t1}, {s.t0}
        s_mul_i32 {b[1]}, {s.w}, {66*16}
        s_mul_i32 {b[2]}, {s.w}, {8*XOS}""")
    def a_setup2(s):
        A = s.A; b = s._ab; s.v('wso2'); s.v('b_wa', 2)
        for c in range(4): A(f"v_add_u32 {s.a_wr[c]}, {b[0]}, {s.a_wr[c]}\n v_add_u32 {s.c_er[c]}, {b[0]}, {s.c_er[c]}")
        A(f"v_add_u32 {s.a_rd}, {b[1]}, {s.a_rd}\n v_xor_b32 {s.wso2}, 16, {s.wso}")
        for r in (s.a_st0, s.a_st1, s.wso, s.wso2, s.xord): A(f"v_add_u32 {r}, {b[2]}, {r}")
        A(f"""s_lshl_b32 {s.t0}, {s.w}, 3
        s_lshl2_add_u32 {s.t1}, {s.w}, 32
        v_xor_b32 {s.b_wa[0]}, {s.t1}, {s.b_ua}
        v_xor_b32 {s.b_ua}, {s.t0}, {s.b_ua}
        v_xor_b32 {s.b_uo}, {s.t0}, {s.b_uo}
        v_xor_b32 {s.b_wa[1]}, 16, {s.b_wa[0]}
        v_add_u32 {s.b_ua}, {L_U16}, {s.b_ua}
        v_add_u32 {s.b_wa[0]}, {L_U16}, {s.b_wa[0]}
        v_add_u32 {s.b_wa[1]}, {L_U16}, {s.b_wa[1]}
        v_add_u32 {s.b_uo}, {L_UO}, {s.b_uo}""")
        s.vfree('cpf', '_tad'); s.sfree('_ab')
    def a_part2(s):
        A = s.A; Fr = [s.aF0, s.aF1]; D = [[s.aD0r, s.aD0i], [s.aD1r, s.aD1i]]
        for t in range(2): A(f"ds_read_b128 {Fr[t]}, {s.a_rd} offset:{t*33*16}")
        rr = s.v('rr', 2)
        A(f"""v_mov_b32 {rr[0]}, {s.r01[0]}
        v_mov_b32 {rr[1]}, {s.r01[2]}
        s_lshl_b32 {s.t0}, {s.p}, 5
        s_lshl3_add_u32 {s.t0}, {s.w}, {s.t0}
        s_add_u32 {s.t0}, {s.t0}, {WS_R}""")
        for t in range(2):
            A(f"s_waitcnt lgkmcnt({1-t})")
            A(f"{M16} {D[t][0]}, {Fr[t]}, {s.A3r}, 0\n {M16} {D[t][1]}, {Fr[t]}, {s.A3i}, 0")
        A(f"@wait W\n ds_write_b128 {s.wso}, {s.wraw[0:4]}\n ds_write_b128 {s.wso2}, {s.wraw[4:8]}")
        for t in range(2):
            for c in range(4): A(f"v_cvt_pk_bf16_f32 {Fr[t][c]}, {D[t][0][c]}, {D[t][1][c]}")
            A(f"ds_write_b128 {(s.a_st0, s.a_st1)[t]}, {Fr[t]}")
        Q = [D[0][0], D[0][1], D[1][0], D[1][1]]
        for z in range(4): A(f"ds_read_b128 {Q[z]}, {s.xord} offset:{2*XOS*z}")
        A(f"s_mov_b64 exec, 1\n buffer_store_dwordx2 {rr}, off, {s.sws}, {s.t0} {ST} ;@x1\n s_mov_b64 exec, -1")
        for z in range(4): A(f"s_waitcnt lgkmcnt({3-z})\n buffer_store_dwordx4 {Q[z]}, {s.xost}, {s.sws}, {s.x1o[z]} offen {ST} ;@x1")
    def a_free(s):
        s.vfree('aF0', 'aF1', 'aD0r', 'aD0i', 'aD1r', 'aD1i', 'a_trad', 'sel0', 'sel1', 'a_wr', 'B1r', 'B1i', 'SAr', 'SAi', 'A3r', 'A3i', 'rr', 'mn0', 'sgn', 'a_rd', 'a_st0', 'a_st1', 'wlo', 'wlo2', 'wso', 'wso2', 'xost', 'xord', 'wraw'); s.sfree('r01', 'x1o')
    def flags_setup(s):
        A = s.A; s.v('pa'); s.v('pg'); s.v('pv'); s.v('fra'); s.sg('fo'); s.sg('fo2'); s.sg('k4096'); s.sg('tag')
        A(f"""v_lshlrev_b32 {s.pa}, 4, v0
        v_and_b32 {s.pg}, 0x70, {s.pa}
        s_mul_i32 {s.t0}, {s.xcd}, {REPS if opt('rep', 1) else 0}
        s_add_u32 {s.t0}, {s.t0}, {F1}
        v_add_u32 {s.pa}, {s.t0}, {s.pa}
        v_mul_u32_u24 {s.fra}, {REPS}, {s.l}
        s_lshl_b32 {s.t0}, {s.rb}, 7
        s_add_u32 {s.t0}, {s.t0}, {F2}
        v_add_u32 {s.pg}, {s.t0}, {s.pg}
        s_lshl_b32 {s.fo}, {s.p}, 4
        s_add_u32 {s.fo}, {s.fo}, {F1}
        s_lshl3_add_u32 {s.fo2}, {s.rb1}, {s.fs1}
        s_lshl_b32 {s.fo2}, {s.fo2}, 4
        s_add_u32 {s.fo2}, {s.fo2}, {F2}
        s_cmp_eq_u32 {s.w}, 0
        s_cselect_b32 {s.fo}, {s.fo}, {WS_SIZE}
        s_cselect_b32 {s.fo2}, {s.fo2}, {WS_SIZE}
        s_mov_b32 {s.spin}, 0
        s_mov_b32 {s.spin2}, 0
        s_mov_b32 {s.k4096}, 4096""")
    def tag_fix(s):
        return [f"v_readfirstlane_b32 {s.tag}, {s.vtag}", f"s_mul_i32 {s.tag}, {s.tag}, 1664525", f"s_add_u32 {s.tag}, {s.tag}, 1013904223", f"v_mov_b32 {s.vtag}, {s.tag}"]
    def flag(s, nm, so, add=0):
        pre = f"s_add_u32 {s.t0}, {so}, {add}\n " if add else ""
        if nm in ('f1', 'f3') and opt('rep', 1):
            return [pre + f"s_mov_b64 exec, 255\n buffer_store_dword {s.vtag}, {s.fra}, {s.sws}, {s.t0 if add else so} offen sc1 ;@{nm}\n s_mov_b64 exec, -1"]
        return [pre + f"s_mov_b64 exec, 1\n buffer_store_dword {s.vtag}, off, {s.sws}, {s.t0 if add else so} sc1 ;@{nm}\n s_mov_b64 exec, -1"]
    def poll(s, nm, ad, so, sfx='', pv=None):
        pv = pv or s.pv
        ins = f"buffer_load_dword {pv}, {ad}, {s.sws}, {so} offen sc1"
        L = nm + sfx
        s.tail += f"""L_retry{L}:
        s_add_u32 {s.spin}, {s.spin}, {1 << (8*(int(nm[1])-1)) if STAMPS else 1}
        s_add_u32 {s.spin2}, {s.spin2}, 1
        s_cmp_ge_u32 {s.spin2}, 40000
        s_cbranch_scc1 L_out{L}
        s_mov_b64 exec, vcc
        s_sleep {opt('ps', 3)}
        {ins}
        s_waitcnt vmcnt(0)
        v_cmp_ne_u32 vcc, {s.tag}, {pv}
        s_cbranch_vccnz L_retry{L}
        L_out{L}:
        s_mov_b64 exec, -1
        s_branch L_back{L}""".split('\n')
        return [ins + f" ;@{nm}"], [f"@wait {nm}\n v_cmp_ne_u32 vcc, {s.tag}, {pv}\n s_cbranch_vccnz L_retry{L}\n L_back{L}:"]
    def g1_setup_dma(s):
        A = s.A; vo = s.v('g1vo', 8); t = s.v('_t'); u = s.v('_u'); k = s.v('_k')
        s.sg('sox', 8, 1); s.sg('sow', 8, 1); s.sg('m0b'); s.sg('shift'); s.sg('tile0'); s.sg('rot')
        imm = [0, 1024, 2048, 3072, 0, 1024]
        for z in range(3):
            A(f"""v_add_u32 {t}, {64*z}, {s.l}
            v_mul_u32_u24 {u}, 2731, {t}
            v_lshrrev_b32 {u}, 16, {u}
            v_mul_u32_u24 {k}, 24, {u}
            v_sub_u32 {t}, {t}, {k}
            v_and_b32 {k}, {2 if opt('swz', 1) else 6}, {u}
            v_xor_b32 {t}, {t}, {k}
            v_and_b32 {k}, 4, {u}
            v_add_u32 {u}, {u}, {k}
            v_mul_u32_u24 {u}, 2752, {u}
            v_lshl_add_u32 {t}, {t}, 4, {u}
            v_subrev_u32 {vo[z]}, {imm[z]}, {t}
            v_add_u32 {vo[3+z]}, {16*2752 - imm[3+z]}, {t}""")
        bx = s.sg('_bx'); bw = s.sg('_bw')
        A(f"""v_lshrrev_b32 {u}, 3, {s.l}
        v_and_b32 {t}, 7, {s.l}
        v_xor_b32 {t}, {t}, {s.q}
        v_lshlrev_b32 {u}, 10, {u}
        v_lshl_add_u32 {vo[6]}, {t}, 4, {u}
        v_xor_b32 {vo[7]}, 64, {vo[6]}
        v_add_u32 {vo[7]}, {262144-1024}, {vo[7]}
        s_mul_i32 {s.tile0}, {s.fs1}, 11
        s_min_u32 {s.tile0}, {s.tile0}, 76
        s_and_b32 {s.shift}, {s.tile0}, 1
        s_lshl_b32 {s.m0b}, {s.w}, 13
        s_lshl_b32 {bx}, {s.w}, 6
        s_add_u32 {bx}, {bx}, {s.rb1}
        s_lshl_b32 {bx}, {bx}, 13
        s_lshr_b32 {bw}, {s.w}, 1
        s_and_b32 {s.t1}, {s.w}, 1
        s_lshl3_add_u32 {bw}, {bw}, {s.t1}
        s_mul_i32 {bw}, {bw}, {4*2752}
        s_lshr_b32 {s.t1}, {s.tile0}, 1
        s_lshl_b32 {s.t1}, {s.t1}, 6
        s_add_u32 {bw}, {bw}, {s.t1}""")
        r1 = opt('rot1', 'x')
        if r1 == 'x': A(f"s_mov_b32 {s.rot}, {s.xcd}")
        elif r1 == '0': A(f"s_mov_b32 {s.rot}, 0")
        elif r1 == 'xh': A(f"s_and_b32 {s.t0}, {s.j}, 1\n s_lshl2_add_u32 {s.rot}, {s.t0}, {s.xcd}")
        elif r1 == 'xq': A(f"s_and_b32 {s.t0}, {s.j}, 3\n s_lshl1_add_u32 {s.rot}, {s.t0}, {s.xcd}")
        s.vfree('_t', '_u', '_k')
    def so_calc(s, c0, c1):
        for st in range(c0, c1):
            s.A(f"""s_and_b32 {s.rot}, {s.rot}, 7
            s_lshl_b32 {s.t1}, {s.rot}, 7
            s_add_u32 {s.sox[st]}, {s._bx}, {s.t1}
            s_mul_i32 {s.t1}, {s.rot}, {64*2752}
            s_add_u32 {s.sow[st]}, {s._bw}, {s.t1}
            s_add_u32 {s.rot}, {s.rot}, 1""")
        if c1 == 8: s.sfree('_bx', '_bw', 'rot')
    def g1_main(s, w3, extra, also, head):
        A = s.A
        A("@wait st0\n s_barrier"); s.stamp('in0')
        A(s.g1_reads(0, w3))
        for step in range(16):
            A([x.replace('@V', 'b' if w3 else 'a') for x in head.get(step, [])])
            if step % 2 == 1:
                nx = step // 2 + 1
                A("@wait lgkm=0 " + (f"st{nx} " if nx < 8 else "") + also.get(step, "")); A("s_barrier")
            else: A("@wait lgkm=0 " + also.get(step, ""))
            if step in (4, 8, 12): s.stamp(f's{step}')
            s.stamp(f'.g{step}')
            fill = (s.g1_reads(step + 1, w3) if step < 15 else []) + extra.get(step, [])
            mf = s.g1_mfmas(step, w3)
            for i, m in enumerate(mf):
                A(m)
                left = len(mf) - i
                k = 1 if len(fill) <= left else 2
                if left == 1: k = len(fill)
                A(fill[:k]); fill = fill[k:]
        if w3:
            t = s.v('_t', 4); ad = s.v('_ad')
            A(f"v_lshlrev_b32 {ad}, 4, {s.n}\n v_add_u32 {ad}, {L_MEAN}, {ad}")
            for mt in range(4): A(f"v_mul_f32 {t[mt]}, {fl(-1/512)}, {s.acc1[32+4*mt]}")
            for mt in range(4): A(f"v_cvt_pk_bf16_f32 {t[mt]}, {t[mt]}, {t[mt]}")
            for mt in range(4): A(f"v_lshlrev_b32 {t[mt]}, 16, {t[mt]}")
            A(f"ds_write_b128 {ad}, {t}\n s_waitcnt lgkmcnt(0)")
            s.vfree('_t', '_ad')
    def b_setup(s):
        A = s.A; s.v('b_lin'); s.sg('go', 4, 1); s.sg('gm0')
        A(f"""s_lshl_b32 {s.go[0]}, {s.w}, 9
        s_add_u32 {s.go[0]}, {s.go[0]}, {s.xcd}
        s_lshl_b32 {s.go[0]}, {s.go[0]}, 5
        s_add_u32 {s.go[0]}, {s.go[0]}, {s.j}
        s_lshl_b32 {s.go[0]}, {s.go[0]}, 6""")
        for z in range(1, 4): A(f"s_add_u32 {s.go[z]}, {s.go[0]}, {z*(16*16384-1024)}")
        A(f"""s_lshl_b32 {s.t0}, {s.w}, 11
        s_add_u32 {s.t0}, {s.t0}, {L_UO}
        v_add_u32 {s.b_lin}, {s.t0}, {s.l16}
        s_lshl_b32 {s.t0}, {s.w}, 12
        s_add_u32 {s.gm0}, {s.t0}, {L_U16}""")
    def e_addr(s, *a): pass
    def b_gather(s):
        return [f"s_mov_b32 m0, {s.gm0}"] + [f"buffer_load_dwordx4 {s.b_ga}, {s.sws}, {s.go[z]} offen offset:{1024*z} {LD} lds ;@gx" for z in range(4)]
    def b_main(s):
        A = s.A; Fr = s.v('bF', 8); D = [[s.v(f'bD{i}{x}', 4) for x in 'ri'] for i in range(2)]; tmp = s.v('btmp', 4)
        W = s.v('bWraw', 8); X = s.v('b_W', 16); U = [Fr[0:4], Fr[4:8]]; O = s.v('bO', 8)
        for pos, c in enumerate((0, 2, 1, 3)): A(f"ds_read_b64 {Fr[2*pos:2*pos+2]}, {s.b_ua} offset:{1024*c}")
        for x in range(2):
            for h in range(2): A(f"ds_read2st64_b32 {W[4*x+2*h:4*x+2*h+2]}, {s.b_wa[x]} offset0:{8*h} offset1:{8*h+4}")
        s.const_IV()
        A(f"s_waitcnt lgkmcnt(4)\n v_swap_b32 {Fr[1]}, {Fr[4]}\n v_swap_b32 {Fr[3]}, {Fr[6]}")
        stages = [(True, s.FWr, s.FWi), (False, s.FWr, s.FWi), (True, s.IVr, s.IVi), (False, s.IVr, s.IVi)]
        def mm(k, i):
            dataA, cr, ci = stages[k]
            for x, cc in enumerate((cr, ci)): A(f"{M16} {D[i][x]}, {U[i]}, {cc}, 0" if dataA else f"{M16} {D[i][x]}, {cc}, {U[i]}, 0")
        def vv(k, i):
            if k == 0: s.cmul(D[i][0], D[i][1], D[i][0], D[i][1], s.T256c, s.T256s, tmp, False)
            if k == 1: s.cmul(D[i][0], D[i][1], D[i][0], D[i][1], X[8*i:8*i+4], X[8*i+4:8*i+8], tmp, True)
            if k == 2: s.cmul(D[i][0], D[i][1], D[i][0], D[i][1], s.T256c, s.T256s, tmp, True)
            for c in range(4): A(f"v_cvt_pk_bf16_f32 {U[i][c] if k < 3 else O[2*c+i]}, {D[i][0][c]}, {D[i][1][c]}")
        mm(0, 0); mm(0, 1)
        A("s_waitcnt lgkmcnt(0)")
        for x in range(2):
            for r in range(4): A(f"v_lshlrev_b32 {X[4*x+r]}, 16, {W[4*x+r]}")
        vv(0, 0)
        un = [f"v_and_b32 {X[8+4*x+r]}, 0xffff0000, {W[4*x+r]}" for x in range(2) for r in range(4)]
        for k in range(1, 4):
            A(un[:2]); un = un[2:]
            mm(k, 0); vv(k-1, 1)
            if k == 1: A(un); un = []
            mm(k, 1); vv(k, 0)
        vv(3, 1)
        for c in range(4): A(f"ds_write_b64 {s.b_uo}, {O[2*c:2*c+2]} offset:{512*c}")
    def b_store(s):
        A = s.A; Fr = s.bF
        for t in range(2): A(f"ds_read_b128 {Fr[4*t:4*t+4]}, {s.b_lin} offset:{1024*t}")
        A(f"s_lshl_b32 {s.t0}, s2, 13\n s_lshl_b32 {s.t1}, {s.w}, 11\n s_add_u32 {s.t0}, {s.t0}, {s.t1}\n s_add_u32 {s.t0}, {s.t0}, {WS_Y1}")
        for t in range(2):
            A(f"s_waitcnt lgkmcnt({1-t})\n buffer_store_dwordx4 {Fr[4*t:4*t+4]}, {s.b_st}, {s.sws}, {s.t0} offen offset:{1024*t} {ST} ;@y1")
        s.vfree('bD0r', 'bD0i', 'bD1r', 'bD1i', 'btmp', 'b_W', 'bWraw', 'b_ua', 'b_wa', 'b_uo', 'T256c', 'T256s', 'bO', 'b_lin', 'b_ga', 'FWr', 'FWi'); s.sfree('go', 'gm0')
    def const_IV(s):
        s.v('IVr', 4); s.v('IVi', 4)
        for c in range(4): s.A(f"v_xor_b32 {s.IVr[c]}, 0x80000000, {s.FWr[c]}\n v_xor_b32 {s.IVi[c]}, 0x8000, {s.FWi[c]}")
    def const_CG(s):
        m = s.v('_m'); s.v('CGr', 4); s.v('CGi', 4)
        s.A(f"v_lshlrev_b32 {m}, 30, {s.q}\n v_and_b32 {m}, 0x80000000, {m}")
        for c in range(4): s.A(f"v_xor_b32 {s.CGr[c]}, {s.IVr[c]}, {m}\n v_xor_b32 {s.CGi[c]}, {s.IVi[c]}, {m}")
        s.vfree('_m', 'IVr', 'IVi')
    def g2_rot(s):
        A = s.A; so = s.sg('hso', 11, 1); r2 = opt('rot2', 'x')
        if r2 == '0': A(f"s_mov_b32 {so[0]}, 0")
        elif r2 == 'x': A(f"s_lshl_b32 {so[0]}, {s.xcd}, 12")
        elif r2 == 'xf':
            A(f"""s_lshl2_add_u32 {s.t0}, {s.fs}, {s.xcd}
            s_mul_i32 {s.t1}, {s.t0}, 5958
            s_lshr_b32 {s.t1}, {s.t1}, 16
            s_mul_i32 {s.t1}, {s.t1}, 11
            s_sub_u32 {s.t0}, {s.t0}, {s.t1}
            s_lshl_b32 {so[0]}, {s.t0}, 12""")
        for i in range(1, 11):
            A(f"s_add_u32 {so[i]}, {so[i-1]}, 4096\n s_cmp_eq_u32 {so[i]}, {11*4096}\n s_cselect_b32 {so[i]}, 0, {so[i]}")
    def g2_hsrd(s):
        A = s.A; r = s.sg('sh', 4, 4)
        A(f"""s_mul_i32 {s.t0}, {s.rb}, 86
        s_mul_i32 {s.t1}, {s.w}, 22
        s_add_u32 {s.t0}, {s.t0}, {s.t1}
        s_lshl_b32 {s.t0}, {s.t0}, 11
        s_add_u32 {s.t0}, {s.t0}, {WS_H}
        s_add_u32 {r[0]}, {s.sws[0]}, {s.t0}
        s_addc_u32 {r[1]}, {s.sws[1]}, 0
        s_cmp_eq_u32 {s.w}, 3
        s_cselect_b32 {r[2]}, 20, 22
        s_lshl_b32 {r[2]}, {r[2]}, 11
        s_mov_b32 {r[3]}, 0x20000""")
    def w2dma(s, hb):
        pos = hb % 8
        return [f"s_add_u32 m0, {s.m0b}, {(pos//2)*32768 + (pos%2)*4096}", f"s_lshl3_add_u32 {s.t2}, {s.hso[hb]}, {s.sw2o}"] + \
               [f"buffer_load_dwordx4 {s.g2vo[z]}, {s.sw2}, {s.t2} offen offset:{1024*z} lds ;@wb{hb}" for z in range(4)]
    def w2read(s, hb):
        pos = hb % 8; slot = pos // 2; dst = s.w2f[16*hb:16*hb+16]
        return [f"ds_read_b64_tr_b16 {dst[8*ks+4*nt+2*i:8*ks+4*nt+2*i+2]}, {s.g2ra[2*(slot//2)+nt]} offset:{(slot%2)*32768 + (pos%2)*4096 + ks*2048 + i*512}"
                for ks in range(2) for nt in range(2) for i in range(2)]
    def red_setup(s):
        s.g2_red_setup(); s.v('rv', 4); s.v('rn', 4); s.sg('rowo', 2); t = s.v('_t')
        s.A(f"""v_lshrrev_b32 {t}, 3, {s.l}
        s_lshl_b32 {s.t0}, {s.rb}, 8
        s_lshl2_add_u32 {s.t0}, {s.w}, {s.t0}
        s_add_u32 {s.t0}, {s.t0}, {WS_R}
        v_lshl_add_u32 {s.rn[0]}, {t}, 5, {s.t0}
        s_lshl_b32 {s.t0}, {s.w}, 5
        s_add_u32 {s.t0}, {s.t0}, {s.rb}
        s_lshl_b32 {s.t0}, {s.t0}, 6
        s_add_u32 {s.t0}, {s.t0}, {s.fs}
        s_lshl_b32 {s.rowo[0]}, {s.t0}, 7
        s_add_u32 {s.rowo[1]}, {s.rowo[0]}, {4*262144}""")
        s.vfree('_t')
    def red_silu(s, mt):
        a = s.acc2[32*mt:32*mt+32]; o = []
        for h in range(0, 8, 2): o.append(f"v_pk_add_f32 {a[h:h+2]}, {a[h:h+2]}, {a[8+h:10+h]}")
        for h in range(0, 8, 2): o.append(f"v_pk_add_f32 {a[16+h:18+h]}, {a[16+h:18+h]}, {a[24+h:26+h]}")
        for h in range(0, 8, 2): o.append(f"v_pk_add_f32 {a[h:h+2]}, {a[h:h+2]}, {a[16+h:18+h]}")
        for h in range(0, 8, 2): o.append(f"v_pk_mul_f32 {a[8+h:10+h]}, {a[h:h+2]}, {s.rn[2*mt:2*mt+2]} op_sel_hi:[1,0]")
        for c in range(8): o.append(f"v_exp_f32 {a[8+c]}, {a[8+c]}")
        for h in range(0, 8, 2): o.append(f"v_pk_mul_f32 {a[h:h+2]}, {a[h:h+2]}, {s.rv[2*mt:2*mt+2]} op_sel_hi:[1,0]")
        for h in range(0, 8, 2): o.append(f"v_pk_add_f32 {a[8+h:10+h]}, {a[8+h:10+h]}, 1.0 op_sel_hi:[1,0]")
        for c in range(8): o.append(f"v_rcp_f32 {a[8+c]}, {a[8+c]}")
        for h in range(0, 8, 2): o.append(f"v_pk_mul_f32 {a[h:h+2]}, {a[h:h+2]}, {a[8+h:10+h]}")
        return o
    def fin(s, mt, X, S):
        a = s.acc2[32*mt:32*mt+32]; o = []
        for c in range(4): o += [f"v_lshlrev_b32 {a[8+2*c]}, 16, {X[c]}", f"v_and_b32 {a[9+2*c]}, 0xffff0000, {X[c]}"]
        for c in range(4): o += [f"v_lshlrev_b32 {a[16+2*c]}, 16, {S[c]}", f"v_and_b32 {a[17+2*c]}, 0xffff0000, {S[c]}"]
        for h in range(0, 8, 2): o.append(f"v_pk_fma_f32 {a[h:h+2]}, {a[h:h+2]}, {a[16+h:18+h]}, {a[8+h:10+h]}")
        for c in range(4): o.append(f"v_cvt_pk_bf16_f32 {a[24+c]}, {a[2*c]}, {a[2*c+1]}")
        o.append(f"buffer_store_dwordx4 {a[24:28]}, {s.g2st}, {s.sout}, {s.rowo[mt]} offen {opt('outf', 'sc1').replace('+', ' ')} ;@out")
        return o
    def s_prep(s):
        s.A(f"s_add_u32 {s.xo[0]}, {s.xo[0]}, {WS_S - 2048}\n s_add_u32 {s.xo[1]}, {s.xo[0]}, 262144")
    def red_silu_scalar(s, mt):
        a = s.acc2[32*mt:32*mt+32]; o = []
        for c in range(8): o += [f"v_add_f32 {a[c]}, {a[c]}, {a[8+c]}", f"v_add_f32 {a[16+c]}, {a[16+c]}, {a[24+c]}"]
        for c in range(8): o.append(f"v_add_f32 {a[c]}, {a[c]}, {a[16+c]}")
        for c in range(8): o.append(f"v_mul_f32 {a[8+c]}, {a[c]}, {s.rn[2*mt]}")
        for c in range(8): o += [f"v_exp_f32 {a[8+c]}, {a[8+c]}", f"v_mul_f32 {a[c]}, {a[c]}, {s.rv[2*mt]}"]
        for c in range(8): o.append(f"v_add_f32 {a[8+c]}, 1.0, {a[8+c]}")
        for c in range(8): o.append(f"v_rcp_f32 {a[8+c]}, {a[8+c]}")
        for c in range(8): o.append(f"v_mul_f32 {a[c]}, {a[c]}, {a[8+c]}")
        return o
    def s_store(s):
        A = s.A; D = [[s.cD0r, s.cD0i], [s.cD1r, s.cD1i]]; Q = s.v('sQ', 8)
        for i in range(2):
            for y in range(2):
                for h in range(2): A(f"v_cvt_pk_bf16_f32 {Q[4*i+2*y+h]}, {D[i][y][2*h]}, {D[i][y][2*h+1]}")
        for i in range(2):
            A(f"v_permlane16_swap_b32 {Q[4*i]}, {Q[4*i+2]}\n v_permlane16_swap_b32 {Q[4*i+1]}, {Q[4*i+3]}")
            A(f"buffer_store_dwordx4 {Q[4*i:4*i+4]}, {s.s_st}, {s.sws}, {s.xo[i]} offen {ST} ;@s")

    def build(s):
        A = s.A
        s.prologue(); s.ids(); s.xr_prep(); s.g1_setup_dma(); s.so_calc(0, 2); s.a_setup(); s.w_prep(); s.pf_prep()
        A(f"s_waitcnt lgkmcnt(0)\n s_sub_u32 {s.sx[0]}, {s.sx[0]}, 2048\n s_subb_u32 {s.sx[1]}, {s.sx[1]}, 0")
        s.stamp('karg'); s.xr_issue()
        if opt('pf1', 1): s.pf_issue(s.sw1)
        if opt('wearly', 1): A(s.w_load()); s.sfree('swr', 'swi', 'wl')
        if opt('pf2', 1) == 1: s.pf_issue(s.sw2)
        d = [glue(s.g1_dma(st)) for st in range(8)]
        q = d[0] + d[1] + d[2]
        n0 = opt('n0', 3); A(q[:n0]); q = q[n0:]
        tr = s.tables()
        s.const_A3(); s.so_calc(2, 8); s.g1_setup_rd()
        A("@wait tb\n s_barrier"); s.stamp('tb'); A(tr[:10])
        if not opt('wearly', 1): A(s.w_load()); s.sfree('swr', 'swi', 'wl')
        mid = s.cap(s.flags_setup) + tr[10:] + s.cap(s.b_setup) + s.cap(s.g2_setup) + s.cap(s.g2_rot)
        n1 = opt('n1', 7); A(sprinkle(mid, q[:n1], 2, opt('e0', 14))); q = q[n1:]
        s.tag_load()
        if opt('pf2', 1) == 2: s.pf_issue(s.sw2)
        A("s_waitcnt lgkmcnt(0)"); s.a_setup2()
        A("@wait xr"); s.stamp('xin')
        na = opt('na', 10)
        A(sprinkle(s.cap(s.a_part1, ""), q[:na], opt('f1a', 10), opt('e1', 15))); q = q[na:]
        A("s_waitcnt lgkmcnt(0)\n s_barrier"); s.stamp('a1')
        nb2 = opt('na2', 99); A(sprinkle(s.cap(s.a_part2), q[:nb2], 1, 5)); q = q[nb2:]
        s.a_free(); s.stamp('a2')
        extra = {t: [] for t in range(16)}; also = {}; head = {}
        dd = [s.g1_dma(st) for st in range(8)]; o3 = opt('o3', 1)
        for st in range(3, 8): extra[2*(st-3)+o3] += dd[st][:5]; extra[2*(st-3)+1+o3] += dd[st][5:]
        also[0] = 'tag'; extra[0] = s.tag_fix() + q + extra[0]
        f1 = opt('f1', 5); also[f1] = 'x1'; extra[f1] = s.flag('f1', s.fo) + extra[f1]
        p1 = opt('p1', 11); c1s = opt('c1', 13)
        i1, c1 = s.poll('p1', s.pa, 0, 'a'); s.poll('p1', s.pa, 0, 'b')
        wst = [int(x) for x in opt('wst', '11,12,14,15').split(',')]
        head[c1s] = [c1[0].replace('p1a', 'p1@V')]; extra[c1s] += s.b_gather()
        for hb, st in enumerate(wst): extra[st] += s.w2dma(hb)
        extra[p1] = i1 + extra[p1]
        A(f"s_cmp_eq_u32 {s.w}, 3\n s_cbranch_scc1 L_w3")
        log = list(A.vmlog)
        s.g1_main(False, extra, also, head)
        A("s_branch L_g1done\n L_w3:")
        log2 = A.vmlog; A.vmlog = log
        s.g1_main(True, extra, also, head)
        assert log2 == A.vmlog
        A("L_g1done:\n s_nop 7")
        s.vfree('pfo', 'pfd'); s.stamp('g1main')
        rb, fs = s.rb, s.fs; s.rb, s.fs = s.rb1, s.fs1; s.g1_epilogue(ST); s.rb, s.fs = rb, fs
        s.stamp('g1epi')
        s.v('acc2', 64); s.a('w2f', 176); NH = s.NH = opt('nh', 16); s.a('hf', 4*NH); s.AC.hw = 256
        nb = len(wst)
        A("@wait gx\n s_barrier")
        A(sprinkle(s.cap(s.b_main), glue(s.w2dma(nb)), 8, 3))
        A("s_waitcnt lgkmcnt(0)\n s_barrier"); s.b_store(); s.stamp('b')
        cc = s.cap(s.red_setup) + s.cap(s.g2_hsrd) + s.cap(s.const_CG) + s.cap(s.const_C3) + s.cap(s.c_setup) + s.cap(s.s_prep); s.vfree('c_xo')
        A(f"@wait wb{nb-1}"); A(sprinkle(cc, sum((s.w2read(h) for h in range(nb)), []), 0, 3))
        A(s.w2dma(nb+1)); s.stamp('pre')
        A("@wait y1 lgkm=0\n s_barrier"); A(s.flag('f2', s.fo2)); A(s.flag('f3', s.fo, F3 - F1)); s.stamp('ack')
        s.vfree('bF', 'b_st')
        X = s.v('fX', 8); S = s.v('fS', 8); pv2 = s.v('pv2')
        xl = [f"buffer_load_dword {s.rv[0]}, {s.rn[0]}, {s.sws}, 0 offen {LD} ;@r", f"buffer_load_dword {s.rv[2]}, {s.rn[0]}, {s.sws}, 0 offen offset:16 {LD} ;@r"] + \
             [f"buffer_load_dwordx4 {X[4*m:4*m+4]}, {s.g2st}, {s.sx}, {s.rowo[m]} offen offset:2048 ;@xt" for m in range(2)]
        nw = opt('nw', 9)
        A(s.w2read(nb))
        for h in range(nb+2, nw): A(s.w2dma(h))
        A(xl); A(f"@wait wb{nb+1}"); A(s.w2read(nb+1))
        if opt('d2', 0): A(f"s_sleep {opt('d2', 0)}")
        i2, c2 = s.poll('p2', s.pg, 0, pv=pv2); i3, c3 = s.poll('p3', s.pa, s.k4096); i4, c4 = s.poll('p4', s.pg, s.k4096)
        s.stamp('pre2'); A(i3); A(i2); A(c3); A("s_barrier"); s.c_gather(LD); s.stamp('f3')
        for h in range(nw, 11): A(s.w2dma(h))
        A(c2); s.stamp('f2')
        for h in range(nb+2, nw): A(s.w2read(h))
        hq = [s.g2_hload(i, LD) for i in range(NH)]; nh0 = opt('nh0', 4)
        A(hq[:nh0]); hq = hq[nh0:]
        A(f"v_mul_f32 {s.rn[0]}, {fl(-1.4426950408889634)}, {s.rv[0]}\n v_mul_f32 {s.rn[2]}, {fl(-1.4426950408889634)}, {s.rv[2]}")
        A("@wait gy\n s_barrier"); s.stamp('gy')
        cs = s.cap(s.c_part1) + ["s_waitcnt lgkmcnt(0)", "s_barrier"] + s.cap(s.c_part2)
        A(sprinkle(cs, hq, 2, opt('e3', 6)))
        if nw < 11:
            A("@wait wb10")
            for h in range(nw, 11): A(s.w2read(h))
        s.s_store(); s.stamp('c')
        ev = {i: [] for i in range(44)}
        f4 = opt('f4', NH); p4 = opt('p4', 30); c4i = opt('c4', 38)
        ev[f4] = ["@wait s\n s_barrier"] + s.flag('f4', s.fo, F4 - F1)
        ev[p4] = i4
        ev[c4i] = [f"s_add_u32 {s.t0}, {s.rowo[0]}, {WS_S}", f"s_add_u32 {s.t1}, {s.rowo[1]}, {WS_S}"] + c4 + \
                  [f"buffer_load_dwordx4 {S[0:4]}, {s.g2st}, {s.sws}, {s.t0} offen {LD} ;@s0", f"buffer_load_dwordx4 {S[4:8]}, {s.g2st}, {s.sws}, {s.t1} offen {LD} ;@s1"]
        for k in range(4): ev[24+k] += s.g2_red_write(0)[2*k:2*k+2]
        ev[29] += ["s_waitcnt lgkmcnt(0)\n s_barrier"] + s.g2_red_read(0)
        stream = s.red_silu_scalar(0) + s.fin(0, X[0:4], S[0:4])[:8]; per = opt('per', 7)
        for idx in range(44):
            mt, i = divmod(idx, 22); sl = idx % NH
            A(f"@wait h{idx}" + (" lgkm=0" if idx in (0, 32) else ""))
            if idx == 0: s.stamp('h0')
            if idx == 22: s.stamp('ph1')
            if idx and idx % 3 == 0: s.stamp(f'.h{idx}')
            fill = list(ev[idx])
            if idx >= 32:
                k = max(0, per - len(fill)); fill += stream[:k]; stream = stream[k:]
            hl = [s.g2_hload(idx + NH, LD)] if idx + NH < 44 else []
            h = (len(fill) + 1) // 2
            for nt in range(2):
                acc = s.acc2[32*mt+16*nt:32*mt+16*nt+16]
                A(f"{M32} {acc}, {s.w2f[8*i+4*nt:8*i+4*nt+4]}, {s.hf[4*sl:4*sl+4]}, {acc if i else 0}")
                A(fill[:h] if nt == 0 else hl + fill[h:])
        s.stamp('g2main')
        A(stream)
        A(f"""s_cmp_eq_u32 {s.p}, 0
        s_cselect_b32 {s.t2}, {s.fo}, {WS_SIZE}
        s_add_u32 {s.t2}, {s.t2}, {EP - F1}""")
        A(s.g2_red_write(1))
        A("s_waitcnt lgkmcnt(0)\n s_barrier"); A(s.g2_red_read(1))
        A("@wait s0"); A(s.fin(0, X[0:4], S[0:4])[8:])
        A("s_waitcnt lgkmcnt(0)"); A(s.red_silu(1)); s.stamp('red')
        A("@wait s1"); A(s.fin(1, X[4:8], S[4:8]))
        A(s.flag('ep', s.t2)); s.stamp('fin')
        s.end()

def main(cls):
    k = cls(); k.build()
    o = open("recurrent_scan__spectral_gfnet__dense_activation_relu__prompt.s.ref").read().split("; Override launch")[0]
    o += f"; @launch grid=(256,1,1) block=(256,1,1) lds={LDS}\n"
    o += '.amdgcn_target "amdgcn-amd-amdhsa--gfx950"\n.text\n'
    b, d = k.text()
    o += b + '.section .rodata,"a"\n.p2align 6\n' + d + k.tb.text("tbl")
    open(sys.argv[1], "w").write(o)
    print("v", k.V.hw, "a", k.AC.hw, "s", k.S.hw, "instrs", len(k.A.lines), "nops", k.A.nops)
    if STAMPS: open(sys.argv[1] + ".tags", "w").write(" ".join(k.tags))
if __name__ == "__main__": main(V)
```

```python
from lib5 import *
class V8(V):
    def g1_seg(s, lo, hi, extra, also, head, name):
        A = s.A
        A(f"s_cmp_eq_u32 {s.w}, 3\n s_cbranch_scc1 L_w3{name}")
        log = list(A.vmlog)
        for w3 in (False, True):
            if w3:
                A(f"s_branch L_g1done{name}\n L_w3{name}:"); log2 = A.vmlog; A.vmlog = log
            if lo == 0:
                A("@wait st0\n s_barrier"); s.stamp('in0'); A(s.g1_reads(0, w3))
            for step in range(lo, hi):
                A([x.replace('@V', 'b' if w3 else 'a') for x in head.get(step, [])])
                if step % 2 == 1:
                    nx = step // 2 + 1
                    A("@wait lgkm=0 " + (f"st{nx} " if nx < 8 else "") + also.get(step, "")); A("s_barrier")
                else: A("@wait lgkm=0 " + also.get(step, ""))
                if step in (4, 8): s.stamp(f's{step}')
                s.stamp(f'.g{step}')
                rd = s.g1_reads(step + 1, w3) if step < 15 else []; ex = glue(extra.get(step, []))
                mf = s.g1_mfmas(step, w3)
                if opt('spread', 1):
                    fill = []; r = list(rd); e = list(ex); k = 0
                    while r or e:
                        if e and (k % 3 == 2 or not r): fill.append(e.pop(0))
                        else: fill.append(r.pop(0))
                        k += 1
                else: fill = rd + ex
                for i, m in enumerate(mf):
                    A(m)
                    left = len(mf) - i
                    k = 1 if len(fill) <= left else 2
                    if left == 1: k = len(fill)
                    A(fill[:k]); fill = fill[k:]
            if w3 and hi == 16:
                t = s.v('_t', 4); ad = s.v('_ad')
                A(f"v_lshlrev_b32 {ad}, 4, {s.n}\n v_add_u32 {ad}, {L_MEAN}, {ad}")
                for mt in range(4): A(f"v_mul_f32 {t[mt]}, {fl(-1/512)}, {s.acc1[32+4*mt]}")
                for mt in range(4): A(f"v_cvt_pk_bf16_f32 {t[mt]}, {t[mt]}, {t[mt]}")
                for mt in range(4): A(f"v_lshlrev_b32 {t[mt]}, 16, {t[mt]}")
                A(f"ds_write_b128 {ad}, {t}\n s_waitcnt lgkmcnt(0)")
                s.vfree('_t', '_ad')
        assert log2 == A.vmlog
        A(f"L_g1done{name}:")
    def pf3(s):
        s.A(f"""s_mul_i32 {s.t0}, {s.j}, 43
        s_mul_i32 {s.t1}, {s.w}, 11
        s_add_u32 {s.t0}, {s.t0}, {s.t1}
        v_min_u32 {s.pfo}, 10, {s.n}
        v_add_lshl_u32 {s.pfo}, {s.t0}, {s.pfo}, 10
        v_add_u32 {s.pfo}, 384, {s.pfo}""")
    def build(s):
        A = s.A
        s.prologue(); s.ids(); s.xr_prep(); s.w_prep(); s.pf_prep(); s.g1_setup_dma(); s.so_calc(0, 1)
        A(f"s_waitcnt lgkmcnt(0)\n s_sub_u32 {s.sx[0]}, {s.sx[0]}, 2048\n s_subb_u32 {s.sx[1]}, {s.sx[1]}, 0")
        s.stamp('karg'); s.xr_issue()
        dd = [s.g1_dma(st) for st in range(8)]
        halves = [dd[h//2][5*(h%2):5*(h%2)+5] for h in range(16)]
        npre = opt('npre', 5)
        q = glue(sum(halves[:npre], []))
        wpos = opt('wpos', 0); q = q[:wpos] + s.w_load() + q[wpos:]
        n0 = opt('n0', 4); A(q[:n0]); q = q[n0:]
        s.a_setup(); tr = s.tables()
        s.const_A3(); s.so_calc(1, 8); s.g1_setup_rd()
        A("@wait tb\n s_barrier"); s.stamp('tb')
        n1 = opt('n1', 4); assert n0 + n1 >= wpos + 2
        A(sprinkle(tr, q[:n1], 11, 2)); q = q[n1:]
        s.sfree('swr', 'swi', 'wl')
        su2 = s.cap(s.a_setup2)
        A("@wait xr lgkm=0"); s.stamp('xin')
        na = opt('na', 6)
        p1c = s.cap(s.a_part1, ""); p1c = p1c[:4] + [x for x in su2 if 'c_er' in x or True][:15] + p1c[4:]
        A(sprinkle(p1c, q[:na], opt('f1a', 50), opt('e1', 18))); q = q[na:]
        A("s_waitcnt lgkmcnt(0)\n s_barrier"); s.stamp('a1')
        na2 = opt('na2', 2); A(sprinkle(s.cap(s.a_part2), q[:na2], 1, 5)); A(q[na2:])
        s.tag_load()
        if opt('pf2', 1): s.pf_issue(s.sw2)
        s.a_free(); s.stamp('a2')
        extra = {t: [] for t in range(16)}; also = {t: '' for t in range(16)}; head = {t: [] for t in range(16)}
        head[1] = s.cap(s.flags_setup) + s.cap(s.pf3) + su2[15:]
        head[3] = s.cap(s.b_setup) + s.cap(s.g2_setup)
        head[5] = s.cap(s.g2_rot)
        s.v('_keep', 4)
        t = opt('o3', 0); p1 = opt('p1', 8); c1s = opt('c1', 9); BS = opt('bs', 12)
        for h in range(npre, 16):
            t = max(t, 2*(h//2 - 4) + 1)
            if t == c1s and opt('gfirst', 1): t += 1
            assert t <= 2*(h//2) - 2, (h, t)
            extra[t] += halves[h]; t += 1
        tg = opt('f1', 3); head[tg] += ['@wait tag'] + s.tag_fix()
        f1 = opt('f1', 3); also[f1] += ' x1'; extra[f1] = s.flag('f1', s.fo) + extra[f1]
        if opt('pf3', 4): extra[opt('pf3', 4)] += s.cap(s.pf_issue, s.sw2)
        i1, c1 = s.poll('p1', s.pa, 0, 'a'); s.poll('p1', s.pa, 0, 'b')
        head[c1s] += [c1[0].replace('p1a', 'p1@V')]; extra[c1s] = s.b_gather() + extra[c1s]
        extra[p1] = i1 + extra[p1]
        if not opt('gxsep', 0): also[BS-1] += ' gx'
        nbb = opt('nbb', 2); wst = [int(x) for x in opt('wst', '12,13,14').split(',') if x]
        npb = len([x for x in wst if x < BS]); assert npb + nbb <= BS - 8
        for k, st in enumerate(wst):
            hb = k if st < BS else nbb + k
            assert st >= 9 + 2*(hb//2); extra[st] += s.w2dma(hb)
        f3 = opt('f3', 15)
        if f3 < 16: also[f3] += ' y1'; extra[f3] = s.flag('f3', s.fo, F3 - F1) + extra[f3]
        s.g1_seg(0, BS, extra, also, head, 'a')
        if opt('gxsep', 0): A("@wait gx\n s_barrier")
        s.stamp('g1a')
        A(sprinkle(s.cap(s.b_main), glue(sum((s.w2dma(h) for h in range(npb, npb + nbb)), [])), opt('bf', 4), opt('e2', 9)))
        A("s_waitcnt lgkmcnt(0)\n s_barrier"); s.b_store()
        if BS < 16: s.stamp('b')
        if BS < 16: s.g1_seg(BS, 16, extra, also, head, 'b'); A("s_nop 7")
        s.vfree('pfo', 'pfd'); s.stamp('g1main')
        nb = nbb + len(wst); e0 = opt('ne', 8 - nb); assert nb + e0 <= 8
        rb, fs = s.rb, s.fs; s.rb, s.fs = s.rb1, s.fs1; epi = s.cap(s.g1_epilogue, ST); s.rb, s.fs = rb, fs
        if f3 == 16:
            k = epi.index('s_barrier'); epi[k:k+2] = ["@wait y1", "s_barrier", epi[k+1]] + s.flag('f3', s.fo, F3 - F1)
        if BS == 16: epi.remove('s_barrier')
        A(sprinkle(epi, glue(sum((s.w2dma(h) for h in range(nb, nb + e0)), [])), opt('ef', 40), opt('ee', 8)))
        if f3 == 17: A("@wait y1\n s_barrier"); A(s.flag('f3', s.fo, F3 - F1))
        s.stamp('g1epi')
        s.vfree('bF', 'b_st'); s.v('acc2', 64); s.a('w2f', 176); NH = s.NH = opt('nh', 16); s.a('hf', 4*NH); s.AC.hw = 256
        X = s.v('fX', 8); S = s.v('fS', 8); pv2 = s.v('pv2')
        i2, c2 = s.poll('p2', s.pg, 0, pv=pv2); i3, c3 = s.poll('p3', s.pa, s.k4096); i4, c4 = s.poll('p4', s.pg, s.k4096)
        cc = s.cap(s.red_setup) + s.cap(s.g2_hsrd) + s.cap(s.const_CG) + s.cap(s.const_C3) + s.cap(s.c_setup) + s.cap(s.s_prep); s.vfree('c_xo')
        A(f"@wait wb{nb-1}"); A(sprinkle(cc, sum((s.w2read(h) for h in range(nb)), []), 0, 2))
        if opt('sepack', 0) == 2: A("@wait h\n s_barrier"); A(s.flag('f2', s.fo2))
        if opt('d3', 0): A(f"s_sleep {opt('d3', 0)}")
        A(i3)
        nd = opt('nd', 0); rest = list(range(nb + e0, 11))
        A("s_waitcnt lgkmcnt(0)")
        for h in rest[:nd]: A(s.w2dma(h))
        s.stamp('pre')
        if opt('sepack', 0) == 2: A(c3); A("s_barrier"); s.c_gather(LD)
        elif opt('sepack', 0): A("@wait h\n s_barrier"); A(s.flag('f2', s.fo2)); A(c3); A("s_barrier"); s.c_gather(LD)
        else: A(c3); A("s_barrier"); A(s.flag('f2', s.fo2)); s.c_gather(LD)
        s.stamp('ack')
        xl = [f"buffer_load_dword {s.rv[0]}, {s.rn[0]}, {s.sws}, 0 offen {LD} ;@r", f"buffer_load_dword {s.rv[2]}, {s.rn[0]}, {s.sws}, 0 offen offset:16 {LD} ;@r"] + \
             [f"buffer_load_dwordx4 {X[4*m:4*m+4]}, {s.g2st}, {s.sx}, {s.rowo[m]} offen offset:2048 ;@xt" for m in range(2)]
        for h in range(nb, nb + e0): A(s.w2read(h))
        for h in rest[nd:]: A(s.w2dma(h))
        A(xl)
        A("@wait gy\n s_barrier"); s.stamp('gy')
        cs = s.cap(s.c_part1) + ["s_waitcnt lgkmcnt(0)", "s_barrier"] + s.cap(s.c_part2); ss = s.cap(s.s_store)
        hq = [s.g2_hload(i, LD) for i in range(NH)]
        pp = opt('p2', 4); pc = opt('c2', 60); nh0 = opt('nh0', 8)
        A(cs[:pp]); A(i2); A(cs[pp:pc]); A(c2); s.stamp('f2')
        A(sprinkle(cs[pc:] + ss[:8], hq[:nh0], 0, opt('e3', 3))); A(ss[8:]); s.stamp('c')
        for h in rest: A(s.w2read(h))
        A(hq[nh0:])
        A(f"v_mul_f32 {s.rn[0]}, {fl(-1.4426950408889634)}, {s.rv[0]}\n v_mul_f32 {s.rn[2]}, {fl(-1.4426950408889634)}, {s.rv[2]}")
        ev = {i: [] for i in range(44)}
        f4 = opt('f4', 10); p4 = opt('p4', 28); c4i = opt('c4', 38)
        ev[f4] = ["@wait s\n s_barrier"] + s.flag('f4', s.fo, F4 - F1)
        ev[p4] = i4
        ev[c4i] = [f"s_add_u32 {s.t0}, {s.rowo[0]}, {WS_S}", f"s_add_u32 {s.t1}, {s.rowo[1]}, {WS_S}"] + c4 + \
                  [f"buffer_load_dwordx4 {S[0:4]}, {s.g2st}, {s.sws}, {s.t0} offen {LD} ;@s0", f"buffer_load_dwordx4 {S[4:8]}, {s.g2st}, {s.sws}, {s.t1} offen {LD} ;@s1"]
        for k in range(4): ev[24+k] += s.g2_red_write(0)[2*k:2*k+2]
        ev[29] += ["s_waitcnt lgkmcnt(0)\n s_barrier"] + s.g2_red_read(0)
        stream = s.red_silu_scalar(0) + s.fin(0, X[0:4], S[0:4])[:8]; per = opt('per', 7)
        for idx in range(44):
            mt, i = divmod(idx, 22); sl = idx % NH
            A(f"@wait h{idx}" + (" lgkm=0" if idx in (0, 32) else ""))
            if idx == 0: s.stamp('h0')
            if idx == 22: s.stamp('ph1')
            if idx and idx % 3 == 0: s.stamp(f'.h{idx}')
            fill = list(ev[idx])
            if idx >= 32:
                k = max(0, per - len(fill)); fill += stream[:k]; stream = stream[k:]
            hl = [s.g2_hload(idx + NH, LD)] if idx + NH < 44 else []
            h = (len(fill) + 1) // 2
            for nt in range(2):
                acc = s.acc2[32*mt+16*nt:32*mt+16*nt+16]
                A(f"{M32} {acc}, {s.w2f[8*i+4*nt:8*i+4*nt+4]}, {s.hf[4*sl:4*sl+4]}, {acc if i else 0}")
                A(fill[:h] if nt == 0 else hl + fill[h:])
        s.stamp('g2main')
        A(stream)
        A(f"""s_cmp_eq_u32 {s.p}, 0
        s_cselect_b32 {s.t2}, {s.fo}, {WS_SIZE}
        s_add_u32 {s.t2}, {s.t2}, {EP - F1}""")
        A(s.g2_red_write(1))
        A("s_waitcnt lgkmcnt(0)\n s_barrier"); A(s.g2_red_read(1))
        A("@wait s0"); A(s.fin(0, X[0:4], S[0:4])[8:])
        A("s_waitcnt lgkmcnt(0)"); A(s.red_silu(1)); s.stamp('red')
        A("@wait s1"); A(s.fin(1, X[4:8], S[4:8]))
        A(s.flag('ep', s.t2)); s.stamp('fin')
        s.end()
if __name__ == "__main__":
    k = V8(); k.build()
    o = open("recurrent_scan__spectral_gfnet__dense_activation_relu__prompt.s.ref").read().split("; Override launch")[0]
    o += f"; @launch grid=(256,1,1) block=(256,1,1) lds={LDS}\n"
    o += '.amdgcn_target "amdgcn-amd-amdhsa--gfx950"\n.text\n'
    b, d = k.text()
    o += b + '.section .rodata,"a"\n.p2align 6\n' + d + k.tb.text("tbl")
    open(sys.argv[1], "w").write(o)
    print("v", k.V.hw, "a", k.AC.hw, "s", k.S.hw, "instrs", len(k.A.lines), "nops", k.A.nops)
    if STAMPS: open(sys.argv[1] + ".tags", "w").write(" ".join(k.tags))
```

```python
from lib5 import *
class V8(V):
    def g1_seg(s, lo, hi, extra, also, head, name):
        A = s.A
        A(f"s_cmp_eq_u32 {s.w}, 3\n s_cbranch_scc1 L_w3{name}")
        log = list(A.vmlog)
        for w3 in (False, True):
            if w3:
                A(f"s_branch L_g1done{name}\n L_w3{name}:"); log2 = A.vmlog; A.vmlog = log
            if lo == 0:
                A("@wait st0\n s_barrier"); s.stamp('in0'); A(s.g1_reads(0, w3))
            for step in range(lo, hi):
                A([x.replace('@V', 'b' if w3 else 'a') for x in head.get(step, [])])
                if step % 2 == 1:
                    nx = step // 2 + 1
                    A("@wait lgkm=0 " + (f"st{nx} " if nx < 8 else "") + also.get(step, "")); A("s_barrier")
                else: A("@wait lgkm=0 " + also.get(step, ""))
                if step in (4, 8): s.stamp(f's{step}')
                s.stamp(f'.g{step}')
                rd = s.g1_reads(step + 1, w3) if step < 15 else []; ex = glue(extra.get(step, []))
                mf = s.g1_mfmas(step, w3)
                if opt('spread', 1):
                    fill = []; r = list(rd); e = list(ex); k = 0
                    while r or e:
                        if e and (k % 3 == 2 or not r): fill.append(e.pop(0))
                        else: fill.append(r.pop(0))
                        k += 1
                else: fill = rd + ex
                for i, m in enumerate(mf):
                    A(m)
                    left = len(mf) - i
                    k = 1 if len(fill) <= left else 2
                    if left == 1: k = len(fill)
                    A(fill[:k]); fill = fill[k:]
            if w3 and hi == 16:
                t = s.v('_t', 4); ad = s.v('_ad')
                A(f"v_lshlrev_b32 {ad}, 4, {s.n}\n v_add_u32 {ad}, {L_MEAN}, {ad}")
                for mt in range(4): A(f"v_mul_f32 {t[mt]}, {fl(-1/512)}, {s.acc1[32+4*mt]}")
                for mt in range(4): A(f"v_cvt_pk_bf16_f32 {t[mt]}, {t[mt]}, {t[mt]}")
                for mt in range(4): A(f"v_lshlrev_b32 {t[mt]}, 16, {t[mt]}")
                A(f"ds_write_b128 {ad}, {t}\n s_waitcnt lgkmcnt(0)")
                s.vfree('_t', '_ad')
        assert log2 == A.vmlog
        A(f"L_g1done{name}:")
    def pf3(s):
        s.A(f"""s_mul_i32 {s.t0}, {s.j}, 43
        s_mul_i32 {s.t1}, {s.w}, 11
        s_add_u32 {s.t0}, {s.t0}, {s.t1}
        v_min_u32 {s.pfo}, 10, {s.n}
        v_add_lshl_u32 {s.pfo}, {s.t0}, {s.pfo}, 10
        v_add_u32 {s.pfo}, 384, {s.pfo}""")
    def build(s):
        A = s.A
        s.prologue(); s.ids(); s.xr_prep(); s.w_prep(); s.pf_prep(); s.g1_setup_dma(); s.so_calc(0, 1)
        A(f"s_waitcnt lgkmcnt(0)\n s_sub_u32 {s.sx[0]}, {s.sx[0]}, 2048\n s_subb_u32 {s.sx[1]}, {s.sx[1]}, 0")
        s.stamp('karg'); s.xr_issue()
        def tlb():
            t = s.v('tlbd', 2)
            A(f"v_lshlrev_b32 {t[0]}, {opt('tlbs', 21)}, {s.l}\n s_mov_b64 exec, {hex((1 << (15 << 20 >> opt('tlbs', 21))) * 2 - 1 & 0xffffffff)}")
            A(f"buffer_load_dword {t[0]}, {t[0]}, {s.sws}, 0 offen offset:3968\n s_mov_b64 exec, 1\n buffer_load_dword {t[1]}, off, {s.sout}, 0 offset:3968\n buffer_load_dword {t[1]}, off, {s.sw2}, 0 offset:3968\n s_mov_b64 exec, -1")
        if opt('tlb', 0) == 1: tlb()
        dd = [s.g1_dma(st) for st in range(8)]
        halves = [dd[h//2][5*(h%2):5*(h%2)+5] for h in range(16)]
        npre = opt('npre', 5)
        q = glue(sum(halves[:npre], []))
        wpos = opt('wpos', 0); q = q[:wpos] + s.w_load() + q[wpos:]
        n0 = opt('n0', 4); A(q[:n0]); q = q[n0:]
        s.a_setup(); tr = s.tables()
        s.const_A3(); s.so_calc(1, 8); s.g1_setup_rd()
        A("@wait tb\n s_barrier"); s.stamp('tb')
        n1 = opt('n1', 4); assert n0 + n1 >= wpos + 2
        A(sprinkle(tr, q[:n1], 11, 2)); q = q[n1:]
        s.sfree('swr', 'swi', 'wl')
        if opt('tlb', 0) == 2: tlb()
        if opt('pf2', 1) == 2: s.pf_issue(s.sw2)
        su2 = s.cap(s.a_setup2)
        A("@wait xr lgkm=0"); s.stamp('xin')
        na = opt('na', 6)
        p1c = s.cap(s.a_part1, ""); p1c = p1c[:4] + [x for x in su2 if 'c_er' in x or True][:15] + p1c[4:]
        A(sprinkle(p1c, q[:na], opt('f1a', 50), opt('e1', 18))); q = q[na:]
        A("s_waitcnt lgkmcnt(0)\n s_barrier"); s.stamp('a1')
        na2 = opt('na2', 2); A(sprinkle(s.cap(s.a_part2), q[:na2], 1, 5)); A(q[na2:])
        s.tag_load()
        if opt('pf2', 1) == 1: s.pf_issue(s.sw2)
        s.a_free(); s.stamp('a2')
        extra = {t: [] for t in range(16)}; also = {t: '' for t in range(16)}; head = {t: [] for t in range(16)}
        head[1] = s.cap(s.flags_setup) + s.cap(s.pf3) + su2[15:]
        head[3] = s.cap(s.b_setup) + s.cap(s.g2_setup)
        head[5] = s.cap(s.g2_rot)
        s.v('_keep', 4)
        t = opt('o3', 0); p1 = opt('p1', 8); c1s = opt('c1', 9); BS = opt('bs', 12)
        for h in range(npre, 16):
            t = max(t, 2*(h//2 - 4) + 1)
            if t == c1s and opt('gfirst', 1): t += 1
            assert t <= 2*(h//2) - 2, (h, t)
            extra[t] += halves[h]; t += 1
        tg = opt('f1', 3); head[tg] += ['@wait tag'] + s.tag_fix()
        f1 = opt('f1', 3); also[f1] += ' x1'; extra[f1] = s.flag('f1', s.fo) + extra[f1]
        if opt('pf3', 4): extra[opt('pf3', 4)] += s.cap(s.pf_issue, s.sw2)
        i1, c1 = s.poll('p1', s.pa, 0, 'a'); s.poll('p1', s.pa, 0, 'b')
        head[c1s] += [c1[0].replace('p1a', 'p1@V')]; extra[c1s] = s.b_gather() + extra[c1s]
        extra[p1] = i1 + extra[p1]
        if not opt('gxsep', 0): also[BS-1] += ' gx'
        nbb = opt('nbb', 2); wst = [int(x) for x in opt('wst', '12,13,14').split(',') if x]
        npb = len([x for x in wst if x < BS]); assert npb + nbb <= BS - 8
        for k, st in enumerate(wst):
            hb = k if st < BS else nbb + k
            assert st >= 9 + 2*(hb//2); extra[st] += s.w2dma(hb)
        f3 = opt('f3', 15)
        if f3 < 16: also[f3] += ' y1'; extra[f3] = s.flag('f3', s.fo, F3 - F1) + extra[f3]
        s.g1_seg(0, BS, extra, also, head, 'a')
        if opt('gxsep', 0): A("@wait gx\n s_barrier")
        s.stamp('g1a')
        A(sprinkle(s.cap(s.b_main), glue(sum((s.w2dma(h) for h in range(npb, npb + nbb)), [])), opt('bf', 4), opt('e2', 9)))
        A("s_waitcnt lgkmcnt(0)\n s_barrier"); s.b_store()
        if BS < 16: s.stamp('b')
        if BS < 16: s.g1_seg(BS, 16, extra, also, head, 'b'); A("s_nop 7")
        s.vfree('pfo', 'pfd'); s.stamp('g1main')
        nb = nbb + len(wst); e0 = opt('ne', 8 - nb); assert nb + e0 <= 8
        rb, fs = s.rb, s.fs; s.rb, s.fs = s.rb1, s.fs1; epi = s.cap(s.g1_epilogue, ST); s.rb, s.fs = rb, fs
        if f3 == 16:
            k = epi.index('s_barrier'); epi[k:k+2] = ["@wait y1", "s_barrier", epi[k+1]] + s.flag('f3', s.fo, F3 - F1)
        if BS == 16: epi.remove('s_barrier')
        A(sprinkle(epi, glue(sum((s.w2dma(h) for h in range(nb, nb + e0)), [])), opt('ef', 40), opt('ee', 8)))
        if f3 == 17: A("@wait y1\n s_barrier"); A(s.flag('f3', s.fo, F3 - F1))
        s.stamp('g1epi')
        s.vfree('bF', 'b_st'); s.v('acc2', 64); s.a('w2f', 176); NH = s.NH = opt('nh', 16); s.a('hf', 4*NH); s.AC.hw = 256
        X = s.v('fX', 8); S = s.v('fS', 8); pv2 = s.v('pv2')
        i2, c2 = s.poll('p2', s.pg, 0, pv=pv2); i3, c3 = s.poll('p3', s.pa, s.k4096); i4, c4 = s.poll('p4', s.pg, s.k4096)
        cc = s.cap(s.red_setup) + s.cap(s.g2_hsrd) + s.cap(s.const_CG) + s.cap(s.const_C3) + s.cap(s.c_setup) + s.cap(s.s_prep); s.vfree('c_xo')
        A(f"@wait wb{nb-1}"); A(sprinkle(cc, sum((s.w2read(h) for h in range(nb)), []), 0, 2))
        if opt('sepack', 0) == 2: A("@wait h\n s_barrier"); A(s.flag('f2', s.fo2))
        if opt('d3', 0): A(f"s_sleep {opt('d3', 0)}")
        A(i3)
        nd = opt('nd', 0); rest = list(range(nb + e0, 11))
        A("s_waitcnt lgkmcnt(0)")
        for h in rest[:nd]: A(s.w2dma(h))
        s.stamp('pre')
        if opt('sepack', 0) == 2: A(c3); A("s_barrier"); s.c_gather(LD)
        elif opt('sepack', 0): A("@wait h\n s_barrier"); A(s.flag('f2', s.fo2)); A(c3); A("s_barrier"); s.c_gather(LD)
        else: A(c3); A("s_barrier"); A(s.flag('f2', s.fo2)); s.c_gather(LD)
        s.stamp('ack')
        xl = [f"buffer_load_dword {s.rv[0]}, {s.rn[0]}, {s.sws}, 0 offen {LD} ;@r", f"buffer_load_dword {s.rv[2]}, {s.rn[0]}, {s.sws}, 0 offen offset:16 {LD} ;@r"] + \
             [f"buffer_load_dwordx4 {X[4*m:4*m+4]}, {s.g2st}, {s.sx}, {s.rowo[m]} offen offset:2048 ;@xt" for m in range(2)]
        for h in range(nb, nb + e0): A(s.w2read(h))
        for h in rest[nd:]: A(s.w2dma(h))
        A(xl)
        A("@wait gy\n s_barrier"); s.stamp('gy')
        cs = s.cap(s.c_part1) + ["s_waitcnt lgkmcnt(0)", "s_barrier"] + s.cap(s.c_part2); ss = s.cap(s.s_store)
        hq = [s.g2_hload(i, LD) for i in range(NH)]
        pp = opt('p2', 4); pc = opt('c2', 60); nh0 = opt('nh0', 8)
        A(cs[:pp]); A(i2); A(cs[pp:pc]); A(c2); s.stamp('f2')
        A(sprinkle(cs[pc:] + ss[:8], hq[:nh0], 0, opt('e3', 3))); A(ss[8:]); s.stamp('c')
        for h in rest: A(s.w2read(h))
        A(hq[nh0:])
        A(f"v_mul_f32 {s.rn[0]}, {fl(-1.4426950408889634)}, {s.rv[0]}\n v_mul_f32 {s.rn[2]}, {fl(-1.4426950408889634)}, {s.rv[2]}")
        ev = {i: [] for i in range(44)}
        f4 = opt('f4', 10); p4 = opt('p4', 28); c4i = opt('c4', 38)
        ev[f4] = ["@wait s\n s_barrier"] + s.flag('f4', s.fo, F4 - F1)
        ev[p4] = i4
        ev[c4i] = [f"s_add_u32 {s.t0}, {s.rowo[0]}, {WS_S}", f"s_add_u32 {s.t1}, {s.rowo[1]}, {WS_S}"] + c4 + \
                  [f"buffer_load_dwordx4 {S[0:4]}, {s.g2st}, {s.sws}, {s.t0} offen {LD} ;@s0", f"buffer_load_dwordx4 {S[4:8]}, {s.g2st}, {s.sws}, {s.t1} offen {LD} ;@s1"]
        for k in range(4): ev[24+k] += s.g2_red_write(0)[2*k:2*k+2]
        ev[29] += ["s_waitcnt lgkmcnt(0)\n s_barrier"] + s.g2_red_read(0)
        stream = s.red_silu_scalar(0) + s.fin(0, X[0:4], S[0:4])[:8]; per = opt('per', 7)
        for idx in range(44):
            mt, i = divmod(idx, 22); sl = idx % NH
            A(f"@wait h{idx}" + (" lgkm=0" if idx in (0, 32) else ""))
            if idx == 0: s.stamp('h0')
            if idx == 22: s.stamp('ph1')
            if idx and idx % 3 == 0: s.stamp(f'.h{idx}')
            fill = list(ev[idx])
            if idx >= 32:
                k = max(0, per - len(fill)); fill += stream[:k]; stream = stream[k:]
            hl = [s.g2_hload(idx + NH, LD)] if idx + NH < 44 else []
            h = (len(fill) + 1) // 2
            for nt in range(2):
                acc = s.acc2[32*mt+16*nt:32*mt+16*nt+16]
                A(f"{M32} {acc}, {s.w2f[8*i+4*nt:8*i+4*nt+4]}, {s.hf[4*sl:4*sl+4]}, {acc if i else 0}")
                A(fill[:h] if nt == 0 else hl + fill[h:])
        s.stamp('g2main')
        A(stream)
        A(f"""s_cmp_eq_u32 {s.p}, 0
        s_cselect_b32 {s.t2}, {s.fo}, {WS_SIZE}
        s_add_u32 {s.t2}, {s.t2}, {EP - F1}""")
        A(s.g2_red_write(1))
        A("s_waitcnt lgkmcnt(0)\n s_barrier"); A(s.g2_red_read(1))
        A("@wait s0"); A(s.fin(0, X[0:4], S[0:4])[8:])
        A("s_waitcnt lgkmcnt(0)"); A(s.red_silu(1)); s.stamp('red')
        A("@wait s1"); A(s.fin(1, X[4:8], S[4:8]))
        A(s.flag('ep', s.t2)); s.stamp('fin')
        s.end()
if __name__ == "__main__":
    k = V8(); k.build()
    o = open("recurrent_scan__spectral_gfnet__dense_activation_relu__prompt.s.ref").read().split("; Override launch")[0]
    o += f"; @launch grid=(256,1,1) block=(256,1,1) lds={LDS}\n"
    o += '.amdgcn_target "amdgcn-amd-amdhsa--gfx950"\n.text\n'
    b, d = k.text()
    o += b + '.section .rodata,"a"\n.p2align 6\n' + d + k.tb.text("tbl")
    open(sys.argv[1], "w").write(o)
    print("v", k.V.hw, "a", k.AC.hw, "s", k.S.hw, "instrs", len(k.A.lines), "nops", k.A.nops)
    if STAMPS: open(sys.argv[1] + ".tags", "w").write(" ".join(k.tags))
```

```python
import sys, re
import numpy as np
from asmlib import *
import tables as TB
from comp import fl, M16, M32
KN = "recurrent_scan__spectral_gfnet__dense_activation_relu__prompt_kernel"
OPT = dict(a.split('=') for a in sys.argv[2:] if '=' in a)
def opt(k, d): return type(d)(OPT.get(k, d))
STAMPS = 'stamps' in sys.argv[2:]
WS_X1 = 0; WS_Y1 = 4 << 20; WS_H = 6 << 20; WS_S = 12 << 20; F1 = 14 << 20; WS_SIZE = 31 << 20; BIG = 16 << 20
F3 = F1 + 4096; REPS = 8192; WS_R = F1 + 65536; F2 = F1 + 98304; F4 = F2 + 4096; EP = F2 + 8192
LB = 131072; EH = 4288; XOS = 544; RED_S = 8704
L_TB = 98304; L_E = L_UO = LB; L_XR = L_XO = L_U = LB + 8704; L_XCH = LB + 26112; LDS = L_XCH + 4096
SWZ = opt('swz', 0)
LOG2E = 1.4426950408889634
def sprinkle(base, ins, first, every):
    out = []; ins = list(ins); due = 0
    for i, x in enumerate(base):
        out.append(x)
        if i >= first and (i - first) % every == 0: due += 1
        nxt = base[i+1] if i + 1 < len(base) else ''
        if due and ins and not nxt.startswith(('s_cselect', 's_addc', 's_subb', 's_cbranch')):
            out.append(ins.pop(0)); due -= 1
    return out + ins
def glue(lst):
    out = []; pend = []
    for x in lst:
        pend.append(x)
        if not x.startswith('s_') or 'buffer_' in x: out.append("\n".join(pend)); pend = []
    if pend: out.append("\n".join(pend))
    return out
def L(text): return [x.strip() for x in text.split('\n') if x.strip()]
def cat(it): return sum(it, [])

class Kern:
    def __init__(s):
        s.A = Asm(); s.V = Regs('v', 1, 256); s.AC = Regs('a', 0, 240); s.S = Regs('s', 3, 96 if opt('kill', '') else 102); s.tail = []; s.tb = TB.Table()
    def v(s, name, n=1): r = s.V.alloc(name, n); setattr(s, name, r); return r
    def a(s, name, n=1): r = s.AC.alloc(name, n); setattr(s, name, r); return r
    def sg(s, name, n=1, align=None): r = s.S.alloc(name, n, align); setattr(s, name, r); return r
    def vs(s, names): return [s.v(x) for x in names.split()]
    def ss(s, names): return [s.sg(x) for x in names.split()]
    def vfree(s, names): s.V.release(*names.split())
    def afree(s, names): s.AC.release(*names.split())
    def sfree(s, names): s.S.release(*names.split())
    def stamp(s, tag):
        if not STAMPS: return
        fine = opt('fine', '')
        if fine == 'none' and tag not in ('start', 'end'): return
        if tag.startswith('.'):
            if not fine or not tag.startswith('.' + fine): return
        elif fine and tag not in ('start', 'end', 'in0', 'g1main', 'g1epi', 'b', 'f2', 'h0', 'g2main', 'xin'): return
        if not hasattr(s, 'tags'): s.tags = []; s.sg('_sp', 4, 2); s.v('_sv')
        s.tags.append(tag); i = len(s.tags) - 1
        s.A(f"{'s_memtime' if opt('cyc', 0) else 's_memrealtime'} {s._sp[2*(i%2):2*(i%2)+2]}")
        if i > 0: s.A(f"v_writelane_b32 {s._sv}, {s._sp[2*((i-1)%2)]}, {i-1}")
    SRDS = [('sx', 0, 2097152), ('sw1', 32, 1409024), ('sw2', 40, 1409024), ('sws', 64, WS_SIZE), ('swr', 8, 2048*514), ('swi', 16, 2048*514), ('sout', 48, 2097152)]
    NT = 6
    def entry(s):
        A = s.A; s.stamp('start')
        for nm, off, sz in s.SRDS: s.sg(nm, 4, 4); A(f"s_load_dwordx2 {getattr(s, nm)[0:2]}, s[0:1], {off}")
        s.sg('sx1', 4, 4); s.sg('stb', 2); s.sg('spc', 2); s.vs('l n q l16 cpf'); s.ss('w rb fs p t0 t1 t2 xcd j rb1 fs1 spin spin2 m0b')
        t = s.v('_t')
        A(f"""v_lshrrev_b32 {s.q}, 6, v0
        s_cmp_ge_u32 s2, 256
        s_cbranch_scc1 L_end
        s_getpc_b64 {s.spc}
        L_pc:
        s_add_u32 {s.stb[0]}, {s.spc[0]}, tbl@rel32@lo+4
        s_addc_u32 {s.stb[1]}, {s.spc[1]}, tbl@rel32@hi+12
        v_readfirstlane_b32 {s.w}, {s.q}
        v_and_b32 {s.l}, 63, v0
        v_lshlrev_b32 {s.l16}, 4, {s.l}
        s_mul_i32 {s.t0}, {s.w}, {1024*s.NT}
        s_add_u32 m0, {s.t0}, {L_TB}
        v_add_u32 {t}, {s.t0}, {s.l16}""")
        for z in range(4): A(f"global_load_lds_dwordx4 {t}, {s.stb} offset:{1024*z} ;@tb")
        A(f"s_add_u32 m0, {s.t0}, {L_TB + 4096}\n v_add_u32 {t}, 4096, {t}\n s_lshr_b32 {s.j}, s2, 3\n s_and_b32 {s.t0}, {s.j}, 3\n s_lshl_b32 {s.t1}, {s.t0}, 12")
        for z in range(s.NT - 4): A(f"global_load_lds_dwordx4 {t}, {s.stb} offset:{1024*z} ;@tb")
        A(f"""v_lshrrev_b32 {t}, 3, v0
        v_lshl_add_u32 {t}, {t}, 7, {s.t1}
        v_min_u32 {t}, L_codeend-L_pc-4, {t}
        global_load_dword {s.cpf}, {t}, {s.spc} ;@cpf
        v_and_b32 {s.n}, 15, v0
        v_lshrrev_b32 {s.q}, 4, {s.l}
        s_and_b32 {s.xcd}, s2, 7
        s_lshl2_add_u32 {s.rb}, {s.xcd}, {s.t0}
        s_lshr_b32 {s.fs}, s2, 5
        s_lshl3_add_u32 {s.p}, {s.rb}, {s.fs}
        s_lshr_b32 {s.t1}, {s.xcd}, 1
        s_lshl2_add_u32 {s.rb1}, {s.t1}, {s.t0}
        s_xor_b32 {s.t0}, {s.t0}, {s.xcd}
        s_and_b32 {s.t0}, {s.t0}, 1
        s_sub_u32 {s.t0}, 15, {s.t0}
        s_and_b32 {s.t1}, {s.xcd}, 1
        s_mul_i32 {s.t1}, {s.t1}, 7
        s_add_u32 {s.fs1}, {s.t1}, {s.fs}
        s_cmp_eq_u32 {s.fs}, 7
        s_cselect_b32 {s.fs1}, {s.t0}, {s.fs1}
        s_lshl_b32 {s.m0b}, {s.w}, 13""")
        s.vfree('_t'); s.sfree('stb spc')
        for nm, off, sz in s.SRDS:
            r = getattr(s, nm); A(f"s_mov_b32 {r[2]}, {sz}\n s_mov_b32 {r[3]}, 0x20000")
        s.sg('xo', 2)
        A(f"""s_lshl_b32 {s.t0}, {s.w}, 11
        s_add_u32 m0, {s.t0}, {L_XR}
        s_lshl_b32 {s.xo[0]}, {s.w}, 9
        s_add_u32 {s.xo[0]}, {s.xo[0]}, {s.p}
        s_lshl_b32 {s.xo[0]}, {s.xo[0]}, 10
        s_add_u32 {s.xo[1]}, {s.xo[0]}, {262144-1024}""")
        vx = s.v('g1vx', 4); t, u = s.vs('_t _u'); s.sg('sox', 8, 1); s.sg('sow', 8, 1); bx, bw, mw, rot = s.ss('_bx _bw _mw _rot')
        A(f"""v_lshrrev_b32 {u}, 3, {s.l}
        v_and_b32 {t}, 7, {s.l}
        v_xor_b32 {t}, {t}, {s.q}
        v_lshlrev_b32 {u}, 10, {u}
        v_lshl_add_u32 {vx[0]}, {t}, 4, {u}
        v_xor_b32 {vx[1]}, 64, {vx[0]}
        v_add_u32 {vx[1]}, {262144-1024}, {vx[1]}
        v_add_u32 {vx[2]}, {2*(262144-1024)}, {vx[0]}
        v_add_u32 {vx[3]}, {2*(262144-1024)}, {vx[1]}
        s_and_b32 {s.t1}, {s.w}, 1
        s_lshr_b32 {s.t0}, {s.w}, 1
        s_lshl1_add_u32 {bx}, {s.rb1}, {s.t0}
        s_lshl_b32 {s.t2}, {s.t1}, 7
        s_add_u32 {bx}, {bx}, {s.t2}
        s_lshl_b32 {bx}, {bx}, 13
        s_lshl3_add_u32 {bw}, {s.t0}, {s.t1}
        s_mul_i32 {bw}, {bw}, {4*2752}
        s_mul_i32 {s.t2}, {s.fs1}, 192
        s_add_u32 {bw}, {bw}, {s.t2}
        s_mul_i32 {s.t0}, {s.rb1}, {86*1024}
        s_mul_i32 {s.t1}, {s.w}, 3072
        s_add_u32 {s.t0}, {s.t0}, {s.t1}
        s_mov_b32 {mw}, {64*2752}
        s_mov_b32 {s.sx1[3]}, 0x20000
        s_cmp_eq_u32 {s.fs1}, 15
        s_cselect_b32 {bw}, {s.t0}, {bw}
        s_cselect_b32 {mw}, 12288, {mw}
        s_cselect_b32 {s.sx1[2]}, 0, {s.sx[2]}""")
        r1 = opt('rot1', 'x')
        if r1 == 'x': A(f"s_mov_b32 {rot}, {s.xcd}")
        elif r1 == 'xh': A(f"s_and_b32 {s.t0}, {s.j}, 1\n s_lshl2_add_u32 {rot}, {s.t0}, {s.xcd}")
        elif r1 == 'x1': A(f"s_and_b32 {s.t0}, {s.j}, 1\n s_add_u32 {rot}, {s.t0}, {s.xcd}")
        s.vfree('_t _u')
    def so_calc(s, c0, c1):
        o = []
        for st in range(c0, c1):
            o += L(f"""s_and_b32 {s._rot}, {s._rot}, 7
            s_lshl_b32 {s.t1}, {s._rot}, 7
            s_add_u32 {s.sox[st]}, {s._bx}, {s.t1}
            s_mul_i32 {s.t1}, {s._rot}, {s._mw}
            s_add_u32 {s.sow[st]}, {s._bw}, {s.t1}
            s_add_u32 {s._rot}, {s._rot}, 1""")
        if c1 == 8: s.sfree('_bx _bw _rot _mw')
        return o
    def g1_halves(s, st):
        base = (st % 4) * 32768
        return [[f"s_add_u32 m0, {s.m0b}, {base+4096}"] + [f"buffer_load_dwordx4 {s.g1vx[z]}, {s.sx1}, {s.sox[st]} offen offset:{1024*z} lds ;@st{st}" for z in range(4)],
                [f"s_add_u32 m0, {s.m0b}, {base}"] + [f"buffer_load_dwordx4 {s.g1vw[z]}, {s.sw1}, {s.sow[st]} offen offset:{1024*z} lds ;@st{st}" for z in range(3)]]
    def tables(s):
        l, n, q = TB.l, TB.n, TB.q
        b1 = TB.B1(); t5 = TB.T(512); f = TB.F16(); sa = TB.SA(); t2 = TB.T(256); c1 = TB.C1(); sc = TB.SC()
        u8, c8, i5, hh = l >> 3, l & 7, l & 31, l >> 5
        ast = lambda t: L_XO + XOS*(n >> 1) + 64*(4*t + q) + 16*((n & 1) ^ (2*t + (q >> 1)))
        def vw(z):
            Lz = 64*z + l; row = Lz // 12; ch = (Lz % 12) ^ (2*((row >> 2) & 1)); return (row + (row & 12)) * 2752 + 16*ch - 1024*z
        tl = [('g1vw', [vw(0), vw(1), vw(2), 514*u8 + 16*c8], ''),
              ('B1r', b1[0], ''), ('B1i', b1[1], ''),
              ('m', [0x3f80 + 0*l, L_XR + 8*l, TB.u32(np.where(n == 0, 1.0, 0.0)), TB.u32(np.where(n < 8, 1.0, -1.0))], 'sel0 a_trad mn0 sgn'),
              ('T512c', t5[0], ''), ('T512s', t5[1], ''), ('FWr', f['FWr'], ''), ('FWi', f['FWi'], ''), ('SAr', sa[0], ''), ('SAi', sa[1], ''),
              ('a_wr', [L_E + 16 * TB.sig_unit(k, n) for k in TB.kk], ''),
              ('m', [L_XO + XOS*u8 + 64*c8 + 16*(3 ^ (c8 >> 1)), L_XO + XOS*u8 + 64*c8 + 16*(2 ^ (c8 >> 1)), ast(0), ast(1)], 'wso2 wso a_st0 a_st1'),
              ('m', [L_E + 16 * (8*(n >> 2) + 4*(q >> 1) + (n & 3)) + EH * (q & 1), L_XO + XOS*hh + 16*i5, 2048*hh + 64*(i5 >> 2) + 16*((i5 & 3) ^ (i5 >> 3)),
                     WS_R + np.where(l & 1, 32 + 16*hh, 16*hh)], 'a_rd xord xost rms'),
              ('m', [192*(l >> 2) + 8*(l & 3) + 32*(q & 1), 4096 + 128*n + 16*((n >> 1) ^ q), WS_R + 128*(n & 7) + 32 + 16*(n >> 3), 16384*(l >> 2) + 16*((l ^ q) & 3) + SWZ*128*((l >> 2) & 7)], 'wa0 xa0 mla b_ga'),
              ('m', [L_U + 4096*q + 64*n + 16*(n >> 2), L_UO + 2048*q + 32*n + 16*(n >> 3), 32*(l >> 1) + 16*((l ^ q) & 1), 32*i5 + 16*hh], 'b_ua b_uo b_st s_st'),
              ('m', [1024*u8 + 16*(c8 ^ (4*(q & 1))), 128*(8*hh + ((l >> 2) & 3)) + 64*((l >> 3) & 1) + 32*(q & 1) + 8*(l & 3), 272*i5 + 16*hh, 272*u8 + 32*c8], 'vo2 ra2 g2rw g2rr'),
              ('m', [1024*u8 + 16*c8, 65536*(l >> 1) + 16*(l & 1) + SWZ*128*((l >> 1) & 7), L_U + 8*i5 + 4096*hh, L_E + EH*hh + 32*n + 33*16*(q & 1)], 'g2st c_ga c_ua c_ew'),
              ('c_er', [L_E + 16 * TB.sig_unit(n, k) for k in TB.kk], ''),
              ('T256c', t2[0], ''), ('T256s', t2[1], ''),
              ('C1x', c1[0], 'A'), ('C1y', c1[1], 'A'), ('SCr', sc[0], 'A'), ('SCi', sc[1], 'A')]
        assert len(tl) == 4 * s.NT
        ad = s.v('_tad'); s.A(f"v_add_u32 {ad}, {L_TB}, {s.l16}"); na = 0; out = []
        for nm, quad, sub in tl:
            i = s.tb.add(quad)
            if sub == 'A': r = R('a', 240 + 4*na, 4); na += 1; setattr(s, nm, r)
            else:
                r = s.v(nm, 4)
                if sub:
                    b, _ = s.V.names.pop(nm)
                    for k, x in enumerate(sub.split()): s.V.names[x] = (b + k, 1); setattr(s, x, r[k])
            out.append(f"ds_read_b128 {r}, {ad} offset:{1024*i}")
        return out
    def trig3(s, name, fwd, pre):
        co = s.v('_co', 4); si = s.v('_si', 4); m, t = s.vs('_m _t'); rr = s.v(name + 'r', 4); ii = s.v(name + 'i', 4)
        o = L(pre(co[0], t, m))
        o += [f"v_mul_f32 {si[0]}, {fl(1/2048)}, {co[0]}", f"v_mul_f32 {t}, {fl(1/2048)}, {t}"]
        o += [f"v_add_f32 {si[c]}, {si[c-1]}, {t}" for c in (1, 2, 3)]
        o += [f"v_cos_f32 {co[c]}, {si[c]}" for c in range(4)] + [f"v_sin_f32 {si[c]}, {si[c]}" for c in range(4)]
        for c in range(4): o += [f"v_cndmask_b32 {co[c]}, 0, {co[c]}, vcc", f"v_cndmask_b32 {si[c]}, 0, {si[c]}, vcc"]
        for c in range(4): o += [f"v_cvt_pk_bf16_f32 {rr[c]}, {co[c]}, {'' if fwd else '-'}{si[c]}", f"v_cvt_pk_bf16_f32 {ii[c]}, {'-' if fwd else ''}{si[c]}, {co[c]}"]
        s.vfree('_co _si _m _t'); return o
    def const_A3(s):
        return s.trig3('A3', True, lambda c0, t, m: f"""v_and_b32 {t}, 1, {s.q}
        v_lshl_add_u32 {t}, {t}, 10, {s.p}
        v_lshrrev_b32 {m}, 1, {s.n}
        v_mul_u32_u24 {c0}, {m}, {t}
        v_lshlrev_b32 {t}, 8, {m}
        v_lshrrev_b32 {m}, 5, {s.l}
        v_xor_b32 {m}, {m}, {s.l}
        v_and_b32 {m}, 1, {m}
        v_cmp_eq_u32 vcc, 0, {m}
        v_cvt_f32_u32 {c0}, {c0}
        v_cvt_f32_u32 {t}, {t}""")
    def const_C3(s):
        return s.trig3('C3', False, lambda c0, t, m: f"""v_lshrrev_b32 {t}, 3, {s.n}
        v_and_b32 {m}, 3, {s.n}
        v_lshl_add_u32 {t}, {t}, 2, {m}
        v_lshl_add_u32 {t}, {t}, 8, {s.p}
        v_lshrrev_b32 {m}, 5, {s.l}
        v_mul_u32_u24 {c0}, {m}, {t}
        v_lshlrev_b32 {c0}, 2, {c0}
        v_lshrrev_b32 {m}, 2, {s.l}
        v_xor_b32 {m}, {m}, {s.q}
        v_and_b32 {m}, 1, {m}
        v_cmp_eq_u32 vcc, 0, {m}
        v_cvt_f32_u32 {c0}, {c0}
        v_cvt_f32_u32 {t}, {t}""")
    def fwarm(s):
        t = s.v('_t')
        o = L(f"""v_lshlrev_b32 {t}, 15, {s.l}
        s_lshl_b32 {s.t0}, s2, 7
        s_add_u32 {s.t0}, {s.t0}, {F1}
        s_cmp_lt_u32 s2, 64
        s_cselect_b32 {s.t1}, 15, 7
        s_cmp_eq_u32 {s.w}, 1
        s_cselect_b32 {s.t0}, {s.t0}, {WS_SIZE}""")
        o.append(f"s_mov_b32 exec_hi, 0\n s_mov_b32 exec_lo, {s.t1}\n buffer_store_dword {t}, {t}, {s.sws}, {s.t0} offen offset:124 sc1 ;@fw\n s_mov_b64 exec, -1")
        s.vfree('_t'); return o
    def flags_setup(s):
        s.vs('pa pg pg2 pv fra'); s.ss('fo fo2 k4096 tag')
        return L(f"""s_lshl_b32 {s.t0}, {s.xcd}, 13
        s_add_u32 {s.t0}, {s.t0}, {F1}
        v_lshl_add_u32 {s.pa}, v0, 4, {s.t0}
        v_lshlrev_b32 {s.fra}, 13, {s.l}
        s_lshl_b32 {s.t0}, {s.rb}, 7
        s_add_u32 {s.t0}, {s.t0}, {F2}
        v_and_b32 {s.pg}, 0x70, {s.l16}
        v_add_u32 {s.pg}, {s.t0}, {s.pg}
        s_and_b32 {s.t0}, {s.t0}, -256
        v_lshl_add_u32 {s.pg2}, {s.n}, 4, {s.t0}
        s_lshl4_add_u32 {s.fo}, {s.p}, {F1}
        s_lshl4_add_u32 {s.fo2}, {s.rb1}, {s.fs1}
        s_lshl4_add_u32 {s.fo2}, {s.fo2}, {F2}
        s_cmp_eq_u32 {s.w}, 0
        s_cselect_b32 {s.fo}, {s.fo}, {WS_SIZE}
        s_cselect_b32 {s.fo2}, {s.fo2}, {WS_SIZE}
        s_mov_b32 {s.spin}, 0
        s_mov_b32 {s.spin2}, 0
        s_movk_i32 {s.k4096}, 4096""")
    def tag_fix(s): return ["@wait tag", f"v_readfirstlane_b32 {s.tag}, {s.vtag}", f"s_mul_i32 {s.tag}, {s.tag}, 1664525", f"s_add_u32 {s.tag}, {s.tag}, 1013904223", f"v_mov_b32 {s.vtag}, {s.tag}"]
    def flag(s, nm, so, add=0):
        pre = f"s_add_u32 {s.t0}, {so}, {add}\n " if add else ""; so = s.t0 if add else so
        if nm in ('f1', 'f3'): return [pre + f"s_mov_b64 exec, 255\n buffer_store_dword {s.vtag}, {s.fra}, {s.sws}, {so} offen sc1 ;@{nm}\n s_mov_b64 exec, -1"]
        return [pre + f"s_mov_b64 exec, 1\n buffer_store_dword {s.vtag}, off, {s.sws}, {so} sc1 ;@{nm}\n s_mov_b64 exec, -1"]
    def poll(s, nm, ad, so):
        ins = f"buffer_load_dword {s.pv}, {ad}, {s.sws}, {so} offen sc1"
        s.tail += L(f"""L_retry{nm}:
        s_add_u32 {s.spin}, {s.spin}, {1 << (8*(int(nm[1])-1))}
        s_add_u32 {s.spin2}, {s.spin2}, 1
        s_cmp_ge_u32 {s.spin2}, 400000
        s_cbranch_scc1 L_out{nm}
        s_mov_b64 exec, vcc
        s_sleep {opt('ps', 3)}
        {ins}
        s_waitcnt vmcnt(0)
        v_cmp_ne_u32 vcc, {s.tag}, {s.pv}
        s_cbranch_vccnz L_retry{nm}
        L_out{nm}:
        s_mov_b64 exec, -1
        s_branch L_back{nm}""")
        return [ins + f" ;@{nm}"], [f"@wait {nm}\n v_cmp_ne_u32 vcc, {s.tag}, {s.pv}\n s_cbranch_vccnz L_retry{nm}\n L_back{nm}:"]
    def reloc_prod(s, reg, key, lo, hi, cond=None):
        t = s.v('_r')
        o = L(f"s_and_b32 {s.t0}, {key}, 3\n s_lshl_b32 {s.t0}, {s.t0}, 7\n s_add_u32 {s.t0}, {s.t0}, {BIG + 128}")
        if cond: o += L(f"{cond}\n s_cselect_b32 {s.t0}, {s.t0}, 0")
        o += L(f"v_add_u32 {t}, {s.t0}, {reg}\n s_mov_b32 vcc_lo, {hex(lo)}\n s_mov_b32 vcc_hi, {hex(hi)}\n v_cndmask_b32 {reg}, {reg}, {t}, vcc")
        s.vfree('_r'); return o
    def reloc_cons(s, reg, key, sh, lanesh):
        t = s.v('_r')
        o = L(f"""v_bfe_u32 {t}, {s.l}, {lanesh}, 2
        v_lshl_add_u32 {t}, {t}, 7, {reg}
        v_add_u32 {t}, {BIG + 128}, {t}
        s_bfe_u32 {s.t0}, {key}, {hex(0x30000 + sh)}
        s_cmp_eq_u32 {s.t0}, 3
        s_cselect_b64 vcc, -1, 0
        v_cndmask_b32 {reg}, {reg}, {t}, vcc""")
        s.vfree('_r'); return o
    def cmul(s, dr, di, co, si, tmp, conj):
        o = []; neg = " neg_lo:[0,0,1] neg_hi:[0,0,1]"
        for h in (0, 2):
            P = lambda r: r[h:h+2]
            o += [f"v_pk_mul_f32 {tmp[0:2]}, {P(di)}, {P(si)}", f"v_pk_mul_f32 {tmp[2:4]}, {P(dr)}, {P(si)}",
                  f"v_pk_fma_f32 {P(dr)}, {P(dr)}, {P(co)}, {tmp[0:2]}" + (neg if conj else ""), f"v_pk_fma_f32 {P(di)}, {P(di)}, {P(co)}, {tmp[2:4]}" + ("" if conj else neg)]
        return o
    def pack(s, dst, dr, di): return [f"v_cvt_pk_bf16_f32 {dst(c)}, {dr[c]}, {di[c]}" for c in range(4)]
    def a_scalars(s):
        s.sg('mq0', 2); s.sg('ab', 4, 1); s.ss('wl x1o'); b = s.ab
        return L(f"""s_mov_b64 {s.mq0}, 0xffff
        s_lshr_b32 {s.t0}, {s.w}, 1
        s_mul_i32 {s.t0}, {s.t0}, {EH}
        s_and_b32 {s.t1}, {s.w}, 1
        s_lshl3_add_u32 {b[0]}, {s.t1}, {s.t0}
        s_mul_i32 {b[1]}, {s.w}, {66*16}
        s_mul_i32 {b[2]}, {s.w}, {8*XOS}
        s_lshl_b32 {b[3]}, {s.w}, 11
        s_mul_i32 {s.wl}, {s.p}, 4112
        s_lshl_b32 {s.t0}, {s.w}, 7
        s_add_u32 {s.wl}, {s.wl}, {s.t0}
        s_add_u32 {s.wl}, {s.wl}, 2
        s_lshl_b32 {s.x1o}, {s.p}, 14
        s_lshl2_add_u32 {s.x1o}, {s.t0}, {s.x1o}
        s_and_b32 {s.t0}, {s.fs}, {4*SWZ}
        s_lshl_b32 {s.t0}, {s.t0}, 7
        s_xor_b32 {s.x1o}, {s.x1o}, {s.t0}""")
    def a_fix(s):
        b = s.ab
        return [f"v_add_u32 {s.a_wr[c]}, {b[0]}, {s.a_wr[c]}" for c in range(4)] + [f"v_add_u32 {s.a_rd}, {b[1]}, {s.a_rd}"] + \
               [f"v_add_u32 {r}, {b[2]}, {r}" for r in (s.a_st0, s.a_st1, s.wso, s.wso2, s.xord)] + \
               L(f"s_and_b32 {s.t0}, {s.fs}, {3*SWZ}\n s_lshl_b32 {s.t0}, {s.t0}, 7\n v_xor_b32 {s.xost}, {s.t0}, {s.xost}")
    def a_part1(s, early):
        F = [s.v('aF0', 4), s.v('aF1', 4)]; s.aD = D = [[s.v(f'aD{i}{x}', 4) for x in 'ri'] for i in range(2)]
        Sp = [[s.v(f'aS{i}{x}', 4) for x in 'ri'] for i in range(2)]
        d = s.v('ad', 8); st = s.v('ast', 4); tmp = s.v('atmp', 4); P = s.v('aP', 8); sel1 = s.v('sel1')
        r01 = s.sg('r01', 4, 2); piv = s.sg('apiv', 2); pv2 = s.sg('apw', 2); o = []
        for i in range(2): o += [f"ds_read_b64_tr_b16 {F[i][2*h:2*h+2]}, {s.a_trad} offset:{1024*i+512*h}" for h in range(2)]
        o += [f"v_mov_b32 {sel1}, 1.0"] + early
        for i in range(2):
            o += [f"s_waitcnt lgkmcnt({2-2*i})", f"{M16} {D[i][0]}, {F[i]}, {s.B1r}, 0", f"v_readfirstlane_b32 {piv[i]}, {F[i][0]}", f"{M16} {D[i][1]}, {F[i]}, {s.B1i}, 0",
                  f"s_lshl_b32 {piv[i]}, {piv[i]}, 16", f"s_xor_b32 {piv[i]}, {piv[i]}, 0x80000000"]
        for i in range(2):
            for c in range(4): o += [f"v_dot2_f32_bf16 {d[2*c]}, {F[i][c]}, {s.sel0}, {piv[i]}", f"v_dot2_f32_bf16 {d[2*c+1]}, {F[i][c]}, {sel1}, {piv[i]}"]
            o += L(f"""v_pk_mul_f32 {tmp[0:2]}, {d[0:2]}, {d[0:2]}
            v_pk_add_f32 {tmp[2:4]}, {d[0:2]}, {d[2:4]}
            v_pk_fma_f32 {tmp[0:2]}, {d[2:4]}, {d[2:4]}, {tmp[0:2]}
            v_pk_add_f32 {tmp[2:4]}, {tmp[2:4]}, {d[4:6]}
            v_pk_fma_f32 {tmp[0:2]}, {d[4:6]}, {d[4:6]}, {tmp[0:2]}
            v_pk_add_f32 {tmp[2:4]}, {tmp[2:4]}, {d[6:8]}
            v_pk_fma_f32 {tmp[0:2]}, {d[6:8]}, {d[6:8]}, {tmp[0:2]}
            v_add_f32 {st[i]}, {tmp[2]}, {tmp[3]}
            v_add_f32 {st[2+i]}, {tmp[0]}, {tmp[1]}""")
        o += [f"v_readfirstlane_b32 {pv2[i]}, {D[i][0][0]}" for i in range(2)]
        o += L(f"""v_permlane32_swap_b32 {st[0]}, {st[1]}
        v_permlane32_swap_b32 {st[2]}, {st[3]}
        v_add_f32 {st[0]}, {st[0]}, {st[1]}
        v_add_f32 {st[2]}, {st[2]}, {st[3]}""")
        o += [f"v_mul_f32 {d[2*i]}, {pv2[i]}, {s.mn0}" for i in range(2)]
        o += [f"v_permlane16_swap_b32 {st[0]}, {st[2]}", f"v_add_f32 {st[0]}, {st[0]}, {st[2]}"]
        red = [f"v_add_f32_dpp {st[0]}, {st[0]}, {st[0]} row_ror:{k} row_mask:0xf bank_mask:0xf" for k in (8, 4, 2, 1)]
        for i in range(2):
            o += [f"v_pk_add_f32 {D[i][0][h:h+2]}, {D[i][0][h:h+2]}, {d[2*i:2*i+2]} op_sel_hi:[1,0] neg_lo:[0,1] neg_hi:[0,1]" for h in (0, 2)]
            o += [red[2*i]] + s.cmul(D[i][0], D[i][1], s.T512c, s.T512s, tmp, False) + [red[2*i+1]] + s.pack(lambda c: F[i][c], D[i][0], D[i][1])
        o.append(f"v_mov_b32 {st[1]}, {st[0]}")
        fin = L(f"""v_permlane16_swap_b32 {st[0]}, {st[1]}
        v_mul_f32 {st[0]}, {fl(1/512)}, {st[0]}
        v_mul_f32 {st[1]}, {fl(1/512)}, {st[1]}
        v_fma_f32 {st[1]}, -{st[0]}, {st[0]}, {st[1]}
        v_max_f32 {st[1]}, 0, {st[1]}
        v_cvt_pk_bf16_f32 {st[1]}, {st[1]}, {st[1]}
        v_lshlrev_b32 {st[1]}, 16, {st[1]}
        v_add_f32 {st[1]}, {fl(1e-5)}, {st[1]}
        v_cvt_pk_bf16_f32 {st[1]}, {st[1]}, {st[1]}
        v_lshlrev_b32 {st[1]}, 16, {st[1]}
        v_sqrt_f32 {st[1]}, {st[1]}
        v_cvt_pk_bf16_f32 {st[1]}, {st[1]}, {st[1]}
        v_lshlrev_b32 {st[1]}, 16, {st[1]}
        v_rcp_f32 {st[1]}, {st[1]}
        v_readlane_b32 {r01[0]}, {st[1]}, 0
        v_readlane_b32 {r01[2]}, {st[1]}, 32""")
        mf = cat([f"{M16} {D[i][0]}, {F[i]}, {s.FWr}, 0", f"{M16} {D[i][1]}, {F[i]}, {s.FWi}, 0", f"{M16} {Sp[i][0]}, {F[i]}, {s.SAr}, 0", f"{M16} {Sp[i][1]}, {F[i]}, {s.SAi}, 0"] for i in range(2))
        for k in range(8): o += [mf[k], fin[2*k], fin[2*k+1]]
        o += [f"v_mul_f32 {d[2*i]}, {r01[2*i]}, {s.sgn}" for i in range(2)]
        for i in range(2):
            o += [f"v_cndmask_b32 {D[i][x][0]}, {D[i][x][0]}, {Sp[i][x][0]}, {s.mq0}" for x in range(2)]
            for h in (0, 2): o += [f"v_pk_mul_f32 {D[i][0][h:h+2]}, {D[i][0][h:h+2]}, {r01[2*i:2*i+2]} op_sel_hi:[1,0]", f"v_pk_mul_f32 {D[i][1][h:h+2]}, {D[i][1][h:h+2]}, {d[2*i:2*i+2]} op_sel_hi:[1,0]"]
            o += s.pack(lambda c: P[2*c+i], D[i][0], D[i][1])
        o += [f"ds_write_b64 {s.a_wr[c]}, {P[2*c:2*c+2]}" for c in range(4)]
        s.vfree('aS0r aS0i aS1r aS1i ad atmp aP sel1'); s.sfree('r01 apw'); return o
    def a_part2(s):
        F = [s.aF0, s.aF1]; D = s.aD; st = s.ast; piv = s.apiv
        o = [f"ds_read_b128 {F[t]}, {s.a_rd} offset:{t*33*16}" for t in range(2)]
        o += L(f"""v_sub_f32 {st[2]}, {piv[0]}, {st[0]}
        v_sub_f32 {st[3]}, {piv[1]}, {st[0]}
        v_cvt_pk_bf16_f32 {st[2]}, {st[2]}, {st[3]}
        v_lshlrev_b32 {st[3]}, 16, {st[2]}
        v_and_b32 {st[2]}, 0xffff0000, {st[2]}
        s_lshl_b32 {s.t0}, {s.p}, 7
        s_lshl2_add_u32 {s.xo2}, {s.w}, {s.t0}""")
        o.append(f"s_mov_b64 exec, 2\n v_mov_b32 {st[1]}, {st[3]}\n s_mov_b32 exec_lo, 0\n s_mov_b32 exec_hi, 2\n v_mov_b32 {st[1]}, {st[2]}\n s_mov_b64 exec, -1")
        for t in range(2): o += [f"s_waitcnt lgkmcnt({1-t})", f"{M16} {D[t][0]}, {F[t]}, {s.A3r}, 0", f"{M16} {D[t][1]}, {F[t]}, {s.A3i}, 0"]
        wst = ["@wait W", f"ds_write_b128 {s.wso}, {s.wraw[0:4]}", f"ds_write_b128 {s.wso2}, {s.wraw[4:8]}"]
        pk = cat(s.pack(lambda c: F[t][c], D[t][0], D[t][1]) + [f"ds_write_b128 {(s.a_st0, s.a_st1)[t]}, {F[t]}"] for t in range(2))
        Q = [D[0][0], D[0][1], D[1][0], D[1][1]]
        rd = [f"ds_read_b128 {Q[z]}, {s.xord} offset:{2*XOS*z}" for z in range(4)]
        sts = [f"s_mov_b32 exec_lo, 3\n s_mov_b32 exec_hi, 3\n buffer_store_dword {st[1]}, {s.rms}, {s.sws}, {s.xo2} offen sc1 ;@x1\n s_mov_b64 exec, -1"]
        sts += [(f"s_add_u32 {s.x1o}, {s.x1o}, 4096\n " if z else "") + f"buffer_store_dwordx4 {Q[z]}, {s.xost}, {s.sws}, {s.x1o} offen sc1 ;@x1" for z in range(4)]
        return o, wst, pk, rd, sts
    def g1_rd_setup(s):
        wa = s.v('g1wa', 6); xa = s.v('g1xa', 4); s.ss('tau0 dtau'); s.a('ones', 4); s.a('xf', 32); s.a('wf', 24); s.vs('xw xr_')
        sc = L(f"""s_and_b32 {s.t0}, {s.w}, 1
        s_mul_i32 {s.tau0}, {s.t0}, 3
        s_and_b32 {s.t1}, {s.w}, 2
        s_add_u32 {s.tau0}, {s.tau0}, {s.t1}
        s_sub_u32 {s.dtau}, 1, {s.t1}
        v_mov_b32 {s.xw}, 0x3f803f80""") + [f"v_accvgpr_write_b32 {s.ones[c]}, {s.xw}" for c in range(4)] + L(f"""s_lshl_b32 {s.t0}, {s.w}, 10
        s_add_u32 {s.t0}, {s.t0}, {L_XCH}
        v_add_u32 {s.xw}, {s.t0}, {s.l16}
        s_xor_b32 {s.t0}, {s.w}, 2
        s_lshl_b32 {s.t0}, {s.t0}, 10
        s_add_u32 {s.t0}, {s.t0}, {L_XCH}
        v_add_u32 {s.xr_}, {s.t0}, {s.l16}""")
        fix = [f"s_mov_b32 {s.t0}, {s.tau0}"]
        for i in range(3):
            fix += L(f"""s_and_b32 {s.t1}, {s.t0}, 1
            s_lshl_b32 {s.t1}, {s.t1}, 5
            v_xor_b32 {wa[i]}, {s.t1}, {s.wa0}
            s_lshr_b32 {s.t1}, {s.t0}, 1
            v_lshl_add_u32 {wa[i]}, {s.t1}, 6, {wa[i]}
            v_add_u32 {wa[3+i]}, 65536, {wa[i]}
            s_add_u32 {s.t0}, {s.t0}, {s.dtau}""")
        fix += L(f"""s_and_b32 {s.t0}, {s.m0b}, 16384
        v_add_u32 {xa[0]}, {s.t0}, {s.xa0}
        v_xor_b32 {xa[1]}, 64, {xa[0]}
        v_add_u32 {xa[2]}, 65536, {xa[0]}
        v_add_u32 {xa[3]}, 65536, {xa[1]}""")
        return sc, fix
    def g1_reads(s, step):
        st = step // 2; ks = step % 2; sl = st % 4; hi = sl // 2; base = (sl % 2) * 32768; b = step % 2
        xr = [f"ds_read_b128 {s.xf[16*b+4*a:16*b+4*a+4]}, {s.g1xa[2*hi+ks]} offset:{base + (a//2)*8192 + (a%2)*2048}" for a in range(4)]
        wr = [[f"ds_read_b64_tr_b16 {s.wf[12*b+4*i+2*h:12*b+4*i+2*h+2]}, {s.g1wa[3*hi+i]} offset:{base + (2*ks+h)*8192}" for h in range(2)] for i in range(3)]
        return wr[0] + xr + wr[1] + wr[2]
    def g1_mfmas(s, step):
        b = step % 2; o = []; z = lambda acc: acc if step else 0
        for i in range(3):
            wf = s.wf[12*b+4*i:12*b+4*i+4]
            if i < 2: acc = s.accc[4*i:4*i+4]; o.append(f"{M16} {acc}, {wf}, {s.ones}, {z(acc)}")
            for a in range(4): acc = s.acc1[16*i+4*a:16*i+4*a+4]; o.append(f"{M16} {acc}, {wf}, {s.xf[16*b+4*a:16*b+4*a+4]}, {z(acc)}")
        return o
    def g1_step(s, step, P):
        A = s.A; A(P['head'][step])
        nx = step // 2 + 1
        A("@wait lgkm=0 " + (f"st{nx} " if step % 2 and nx < 8 else "") + P['also'][step])
        if step % 2 or step in P['bar']: A("s_barrier")
        if step in (4, 8): s.stamp(f's{step}')
        s.stamp(f'.g{step}')
        r = s.g1_reads(step + 1) if step < 15 else []; e = glue(P['extra'][step]); fill = list(P['first'][step]); k = 0
        while r or e:
            fill.append(e.pop(0) if e and (k % 3 == 2 or not r) else r.pop(0)); k += 1
        fill += P['last'][step]
        mf = s.g1_mfmas(step)
        for i, m in enumerate(mf):
            A(m); left = len(mf) - i; k = -(-len(fill) // left) if len(fill) > left else 1
            A(fill[:k]); fill = fill[k:]
    def h_offsets(s):
        so = s.sg('hst', 3, 1)
        o = L(f"""s_lshr_b32 {s.t0}, {s.w}, 1
        s_lshl1_add_u32 {s.t0}, {s.rb1}, {s.t0}
        s_lshl_b32 {s.mlo}, {s.t0}, 10
        s_mul_i32 {s.t0}, {s.t0}, {86*2048}
        s_add_u32 {s.t0}, {s.t0}, {WS_H}
        s_mul_i32 {s.t1}, {s.fs1}, 6
        s_add_u32 {s.t1}, {s.t1}, {s.tau0}""")
        for i in range(3):
            o += L(f"s_lshl_b32 {so[i]}, {s.t1}, 11\n s_add_u32 {so[i]}, {so[i]}, {s.t0}\n s_cmp_lt_u32 {s.t1}, 86\n s_cselect_b32 {so[i]}, {so[i]}, {WS_SIZE}")
            if i < 2: o.append(f"s_add_u32 {s.t1}, {s.t1}, {s.dtau}")
        return o
    def g1_epilogue(s):
        mm = s.g1m; P = s.v('g1P', 24); o = []
        for n, (i, M) in enumerate(((0, 0), (0, 1), (1, 0), (1, 1), (2, 0), (2, 1))):
            if n == 2: o += ["s_waitcnt lgkmcnt(0)", "s_barrier", f"ds_read_b128 {s.accc[8:12]}, {s.xr_}"]
            if n == 4: o.append("s_waitcnt lgkmcnt(0)")
            Q = P[4*n:4*n+4]; acc = [s.acc1[16*i+4*(2*M+e):16*i+4*(2*M+e)+4] for e in range(2)]
            for e in range(2):
                mo = 2*M + 4*e
                o += [f"v_pk_fma_f32 {acc[e][h:h+2]}, {s.accc[4*i+h:4*i+h+2]}, {mm[mo:mo+2]}, {acc[e][h:h+2]} op_sel_hi:[1,0,1]" for h in (0, 2)]
            o += [f"v_cvt_pk_bf16_f32 {Q[2*e+h]}, {acc[e][2*h]}, {acc[e][2*h+1]}" for e in range(2) for h in range(2)]
            o += [f"v_pk_max_i16 {Q[c]}, {Q[c]}, 0" for c in (0, 2, 1, 3)]
            o += [f"v_permlane16_swap_b32 {Q[0]}, {Q[2]}", f"v_permlane16_swap_b32 {Q[1]}, {Q[3]}", f"buffer_store_dwordx4 {Q}, {s.hla}, {s.sws}, {s.hst[i]} offen offset:{1024*M} sc1 ;@h"]
        return o
    def b_setup(s):
        s.v('b_lin'); s.v('b_wa', 2); s.v('IVr', 4); s.v('IVi', 4); s.ss('go y1o')
        g = L(f"""s_lshl_b32 {s.go}, {s.w}, 9
        s_add_u32 {s.go}, {s.go}, {s.xcd}
        s_lshl_b32 {s.go}, {s.go}, 11
        s_lshl_b32 {s.t0}, {s.j}, 6
        v_xor_b32 {s.b_ga}, {s.t0}, {s.b_ga}""")
        o = L(f"""s_add_u32 {s.t0}, {s.ab[3]}, {L_UO}
        v_add_u32 {s.b_lin}, {s.t0}, {s.l16}
        s_lshl_b32 {s.y1o}, s2, 13
        s_add_u32 {s.y1o}, {s.y1o}, {s.ab[3]}
        s_add_u32 {s.y1o}, {s.y1o}, {WS_Y1}
        s_lshl_b32 {s.t0}, {s.w}, 3
        s_lshl2_add_u32 {s.t1}, {s.w}, 32
        v_xor_b32 {s.b_wa[0]}, {s.t1}, {s.b_ua}
        v_xor_b32 {s.b_ua}, {s.t0}, {s.b_ua}
        v_xor_b32 {s.b_uo}, {s.t0}, {s.b_uo}
        v_xor_b32 {s.b_wa[1]}, 16, {s.b_wa[0]}
        s_and_b32 {s.t0}, {s.j}, {7*SWZ}
        s_lshl_b32 {s.t0}, {s.t0}, 7
        v_xor_b32 {s.b_st}, {s.t0}, {s.b_st}""")
        o += cat([f"v_xor_b32 {s.IVr[c]}, 0x80000000, {s.FWr[c]}", f"v_xor_b32 {s.IVi[c]}, 0x8000, {s.FWi[c]}"] for c in range(4))
        return g, o
    def b_gather(s):
        return [f"s_lshl1_add_u32 m0, {s.ab[3]}, {L_U}"] + \
               [(f"s_add_u32 {s.go}, {s.go}, {16*16384-1024}\n " if z else "") + f"buffer_load_dwordx4 {s.b_ga}, {s.sws}, {s.go} offen offset:{1024*z} sc1 lds ;@gx" for z in range(4)]
    def b_parts(s):
        F = s.v('bF', 8); W = s.v('bW', 8); D = [[s.v(f'bD{i}{x}', 4) for x in 'ri'] for i in range(2)]; tmp = s.v('btmp', 4); X = s.v('bX', 16); O = W
        U = [F[0:4], F[4:8]]
        rd = [f"ds_read_b64 {F[2*pos:2*pos+2]}, {s.b_ua} offset:{1024*c}" for pos, c in enumerate((0, 2, 1, 3))]
        rd += [f"ds_read2st64_b32 {W[4*x+2*h:4*x+2*h+2]}, {s.b_wa[x]} offset0:{8*h} offset1:{8*h+4}" for x in range(2) for h in range(2)]
        sw = [f"v_swap_b32 {F[1]}, {F[4]}", f"v_swap_b32 {F[3]}, {F[6]}"]
        u0 = [f"v_lshlrev_b32 {X[k]}, 16, {W[k]}" for k in range(8)]; u1 = [f"v_and_b32 {X[8+k]}, 0xffff0000, {W[k]}" for k in range(8)]
        stages = [(True, s.FWr, s.FWi), (False, s.FWr, s.FWi), (True, s.IVr, s.IVi), (False, s.IVr, s.IVi)]
        def mm(k, i):
            dA, cr, ci = stages[k]; return [f"{M16} {D[i][x]}, {U[i]}, {cc}, 0" if dA else f"{M16} {D[i][x]}, {cc}, {U[i]}, 0" for x, cc in enumerate((cr, ci))]
        def vv(k, i):
            t = [(s.T256c, s.T256s, False), (X[8*i:8*i+4], X[8*i+4:8*i+8], True), (s.T256c, s.T256s, True)]
            return (s.cmul(D[i][0], D[i][1], t[k][0], t[k][1], tmp, t[k][2]) if k < 3 else []) + s.pack(lambda c: U[i][c] if k < 3 else O[2*c+i], D[i][0], D[i][1])
        o = u0[:2] + mm(0, 0) + mm(0, 1) + u0[2:8] + vv(0, 0) + u1[:2] + mm(1, 0) + u1[2:4] + vv(0, 1) + u1[4:6] + mm(1, 1) + u1[6:8] + vv(1, 0)
        for k in (2, 3): o += mm(k, 0) + vv(k-1, 1) + mm(k, 1) + vv(k, 0)
        o += vv(3, 1) + [f"ds_write_b64 {s.b_uo}, {O[2*c:2*c+2]} offset:{512*c}" for c in range(4)]
        rd2 = [f"ds_read_b128 {F[4*t:4*t+4]}, {s.b_lin} offset:{1024*t}" for t in range(2)]
        st = [f"buffer_store_dwordx4 {F[4*t:4*t+4]}, {s.b_st}, {s.sws}, {s.y1o} offen offset:{1024*t} sc1 ;@y1" for t in range(2)]
        return rd, sw, o, rd2, st
    def w2_setup(s):
        vo = s.v('g2vo', 3); so = s.hso; s.sg('sw2o'); s.vs('pfo pfd')
        o = [f"v_add_u32 {vo[z]}, {(z+1)*(8192-1024)}, {s.vo2}" for z in range(3)]
        o += L(f"s_mul_i32 {s.sw2o}, {s.w}, {352*1024}\n s_lshl_b32 {s.t0}, {s.fs}, 7\n s_add_u32 {s.sw2o}, {s.sw2o}, {s.t0}")
        if opt('rot2', 'x') == '0': o += [f"s_mov_b32 {so[i]}, {4096*i}" for i in range(11)]
        else:
            o.append(f"s_lshl_b32 {so[0]}, {s.xcd}, 12")
            for i in range(1, 11):
                o.append(f"s_add_u32 {so[i]}, {so[i-1]}, 4096")
                if i >= 4: o += [f"s_cmp_eq_u32 {so[i]}, {11*4096}", f"s_cselect_b32 {so[i]}, 0, {so[i]}"]
        pf = L(f"""s_mul_i32 {s.t0}, {s.j}, 43
        s_mul_i32 {s.t1}, {s.w}, 11
        s_add_u32 {s.t0}, {s.t0}, {s.t1}
        v_min_u32 {s.pfo}, 10, {s.n}
        v_add_lshl_u32 {s.pfo}, {s.t0}, {s.pfo}, 10""")
        return o, pf
    def pf3(s): return [f"s_mov_b64 exec, 0xffff\n buffer_load_dword {s.pfd}, {s.pfo}, {s.sw2}, 0 offen offset:384 ;@pf\n s_mov_b64 exec, -1"]
    def w2dma(s, hb):
        pos = hb % 8
        return [f"s_add_u32 m0, {s.m0b}, {(pos//2)*32768 + (pos%2)*4096}", f"s_lshl3_add_u32 {s.t2}, {s.hso[hb]}, {s.sw2o}"] + \
               [f"buffer_load_dwordx4 {s.g2vo[z-1] if z else s.vo2}, {s.sw2}, {s.t2} offen offset:{1024*z} lds ;@wb{hb}" for z in range(4)]
    def w2read(s, hb):
        pos = hb % 8; slot = pos // 2; dst = s.w2f[16*hb:16*hb+16]
        return [f"ds_read_b64_tr_b16 {dst[8*ks+4*nt+2*i:8*ks+4*nt+2*i+2]}, {s.g2ra[2*(slot//2)+nt]} offset:{(slot%2)*32768 + (pos%2)*4096 + ks*2048 + i*512}"
                for ks in range(2) for nt in range(2) for i in range(2)]
    def g2_setup(s):
        ra = s.v('g2ra', 4); s.v('s_ld'); s.v('rv', 4); s.v('rn', 4); s.sg('rowo', 2); r = s.sg('sh', 4, 4); m = s.v('_m'); s.v('CGr', 4); s.v('CGi', 4); s.sg('gyo', 2)
        first = L(f"v_add_u32 {ra[0]}, {s.m0b}, {s.ra2}\n v_xor_b32 {ra[1]}, 64, {ra[0]}\n v_add_u32 {ra[2]}, 65536, {ra[0]}\n v_add_u32 {ra[3]}, 65536, {ra[1]}")
        o = L(f"""s_lshl_b32 {s.t0}, {s.w}, 14
        s_lshl_b32 {s.t1}, {s.p}, 5
        v_xor_b32 {s.c_ga}, {s.t1}, {s.c_ga}
        s_add_u32 {s.gyo[0]}, {s.t0}, {WS_Y1}
        s_add_u32 {s.gyo[1]}, {s.gyo[0]}, {8192-1024}
        s_lshl_b32 {s.t0}, {s.w}, 8
        v_add_u32 {s.c_ua}, {s.t0}, {s.c_ua}
        v_add_u32 {s.c_ew}, {s.ab[1]}, {s.c_ew}""") + [f"v_add_u32 {s.c_er[c]}, {s.ab[0]}, {s.c_er[c]}" for c in range(4)]
        o += L(f"v_lshlrev_b32 {m}, 30, {s.q}\n v_and_b32 {m}, 0x80000000, {m}")
        o += cat([f"v_xor_b32 {s.CGr[c]}, {s.IVr[c]}, {m}", f"v_xor_b32 {s.CGi[c]}, {s.IVi[c]}, {m}"] for c in range(4))
        o += L(f"""s_add_u32 {s.xo[0]}, {s.xo[0]}, {WS_S}
        s_add_u32 {s.xo[1]}, {s.xo[0]}, 262144
        s_mul_i32 {s.t0}, {s.w}, {RED_S}
        v_add_u32 {s.g2rw}, {s.t0}, {s.g2rw}
        s_mul_i32 {s.t0}, {s.w}, {8*272}
        v_add_u32 {s.g2rr}, {s.t0}, {s.g2rr}
        s_lshl_b32 {s.t0}, {s.rb}, 10
        s_and_b32 {s.t1}, {s.w}, 1
        s_lshl4_add_u32 {s.t0}, {s.t1}, {s.t0}
        s_lshr_b32 {s.t1}, {s.w}, 1
        s_lshl2_add_u32 {s.t0}, {s.t1}, {s.t0}
        s_add_u32 {s.t0}, {s.t0}, {WS_R}
        v_lshrrev_b32 {m}, 3, {s.l}
        v_lshl_add_u32 {s.rn[0]}, {m}, 7, {s.t0}
        v_and_b32 {m}, {7*SWZ}, {m}
        v_xor_b32 {m}, {s.fs}, {m}
        v_lshl_add_u32 {s.s_ld}, {m}, 7, {s.g2st}
        s_lshl_b32 {s.t0}, {s.fs}, 7
        s_and_b32 {s.t0}, {s.t0}, {896*SWZ}
        v_xor_b32 {s.s_st}, {s.t0}, {s.s_st}
        s_lshl_b32 {s.t0}, {s.w}, 5
        s_add_u32 {s.t0}, {s.t0}, {s.rb}
        s_lshl_b32 {s.t0}, {s.t0}, 6
        s_add_u32 {s.t0}, {s.t0}, {s.fs}
        s_lshl_b32 {s.rowo[0]}, {s.t0}, 7
        s_add_u32 {s.rowo[1]}, {s.rowo[0]}, {4*262144}
        s_mul_i32 {s.t0}, {s.rb}, 86
        s_mul_i32 {s.t1}, {s.w}, 22
        s_add_u32 {s.t0}, {s.t0}, {s.t1}
        s_lshl_b32 {s.t0}, {s.t0}, 11
        s_add_u32 {s.t0}, {s.t0}, {WS_H}
        s_add_u32 {r[0]}, {s.sws[0]}, {s.t0}
        s_addc_u32 {r[1]}, {s.sws[1]}, 0
        s_cmp_eq_u32 {s.w}, 3
        s_cselect_b32 {r[2]}, 20, 22
        s_lshl_b32 {r[2]}, {r[2]}, 11
        s_mov_b32 {r[3]}, 0x20000""")
        s.vfree('_m'); return first, o
    def hload(s, idx):
        mt, i = divmod(idx, 22); sl = idx % s.NH
        return f"buffer_load_dwordx4 {s.hf[4*sl:4*sl+4]}, {s.hla}, {s.sh}, {s.hso[i//2]} offen offset:{(i%2)*2048 + mt*1024} sc1 ;@h{idx}"
    def red_write(s, mt): return [f"ds_write_b128 {s.g2rw}, {s.acc2[32*mt+4*k:32*mt+4*k+4]} offset:{mt*4*RED_S + 32*k}" for k in range(8)]
    def red_read(s, mt): return [f"ds_read_b128 {s.acc2[32*mt+4*k:32*mt+4*k+4]}, {s.g2rr} offset:{mt*4*RED_S + (k//2)*RED_S + (k%2)*16}" for k in range(8)]
    def unpack(s, dst, src): return cat([f"v_lshlrev_b32 {dst[2*c]}, 16, {src[c]}", f"v_and_b32 {dst[2*c+1]}, 0xffff0000, {src[c]}"] for c in range(src.n))
    def finish(s, mt, pk):
        a = s.acc2[32*mt:32*mt+32]; xf = s.fx[8*mt:8*mt+8]; sr = s.fs_[8*mt:8*mt+8]
        def op(name, d, x, y, z=None, bc=False):
            if pk: return [f"v_pk_{name}_f32 {d[h:h+2]}, {x[h:h+2]}, {y if bc else y[h:h+2]}" + (f", {z[h:h+2]}" if z else "") + (" op_sel_hi:[1,0]" if bc else "") for h in range(0, 8, 2)]
            yy = lambda c: (y if isinstance(y, str) else y[0]) if bc else y[c]
            return [f"v_{name}_f32 {d[c]}, {yy(c)}, {x[c]}" + (f", {z[c]}" if z else "") for c in range(8)]
        o, e = a[0:8], a[8:16]
        p1 = op('add', o, o, e) + op('add', a[16:24], a[16:24], a[24:32]) + op('add', o, o, a[16:24]) + op('mul', e, o, s.rn[2*mt:2*mt+2], bc=True)
        p1 += [f"v_exp_f32 {e[c]}, {e[c]}" for c in range(8)]
        mid = op('mul', o, o, sr)
        p2 = op('add', e, e, '1.0', bc=True) + [f"v_rcp_f32 {e[c]}, {e[c]}" for c in range(8)]
        p3 = op('fma', o, o, e, xf) + [f"v_cvt_pk_bf16_f32 {a[16+c]}, {o[2*c]}, {o[2*c+1]}" for c in range(4)]
        p3.append(f"buffer_store_dwordx4 {a[16:20]}, {s.g2st}, {s.sout}, {s.rowo[mt]} offen sc1 ;@out")
        return p1, mid, p2, p3
    def c_gather(s):
        return [f"s_add_u32 m0, {s.ab[3]}, {L_U}"] + [f"buffer_load_dwordx4 {s.c_ga}, {s.sws}, {s.gyo[t]} offen offset:{1024*t} sc1 lds ;@gy" for t in range(2)]
    def c_parts(s):
        F = s.v('cF', 8); D = [[s.v(f'cD{i}{x}', 4) for x in 'ri'] for i in range(2)]; Sp = [[s.v(f'cS{i}{x}', 4) for x in 'ri'] for i in range(2)]; tmp = s.v('ctmp', 4)
        U = [F[0:4], F[4:8]]; sw = ["s_waitcnt lgkmcnt(0)", f"v_swap_b32 {F[1]}, {F[4]}", f"v_swap_b32 {F[3]}, {F[6]}"]
        o = [f"ds_read_b64 {F[2*pos:2*pos+2]}, {s.c_ua} offset:{1024*c}" for pos, c in enumerate((0, 2, 1, 3))] + ['@1'] + sw
        o += cat([f"{M16} {D[i][0]}, {s.C3r}, {U[i]}, 0", f"{M16} {D[i][1]}, {s.C3i}, {U[i]}, 0"] for i in range(2)) + ['@2']
        o += cat(s.pack(lambda c: U[i][c], D[i][0], D[i][1]) + [f"ds_write_b128 {s.c_ew}, {U[i]} offset:{16*i}"] for i in range(2))
        o += ['@3', "s_waitcnt lgkmcnt(0)", "s_barrier"]
        o += [f"ds_read_b64 {F[2*pos:2*pos+2]}, {s.c_er[c]}" for pos, c in enumerate((0, 2, 1, 3))] + ['@4'] + sw
        o += cat([f"{M16} {D[i][0]}, {U[i]}, {s.CGr}, 0", f"{M16} {D[i][1]}, {U[i]}, {s.CGi}, 0", f"{M16} {Sp[i][0]}, {U[i]}, {s.SCr}, 0", f"{M16} {Sp[i][1]}, {U[i]}, {s.SCi}, 0"] for i in range(2)) + ['@5']
        for i in range(2):
            o += [f"v_cndmask_b32 {D[i][x][0]}, {D[i][x][0]}, {Sp[i][x][0]}, {s.mq0}" for x in range(2)]
            if i: o += [f"{M16} {D[0][0]}, {U[0]}, {s.C1x}, 0", f"{M16} {D[0][1]}, {U[0]}, {s.C1y}, 0"]
            o += s.cmul(D[i][0], D[i][1], s.T512c, s.T512s, tmp, True) + s.pack(lambda c: U[i][c], D[i][0], D[i][1])
        Q = [Sp[0][0], Sp[1][0]]
        cv = lambda i: [f"v_cvt_pk_bf16_f32 {Q[i][2*y+h]}, {D[i][y][2*h]}, {D[i][y][2*h+1]}" for y in range(2) for h in range(2)]
        stt = lambda i: [f"v_permlane16_swap_b32 {Q[i][0]}, {Q[i][2]}", f"v_permlane16_swap_b32 {Q[i][1]}, {Q[i][3]}", f"buffer_store_dwordx4 {Q[i]}, {s.s_st}, {s.sws}, {s.xo[i]} offen sc1 ;@s"]
        c0 = cv(0)
        o += c0[:2] + [f"{M16} {D[1][0]}, {U[1]}, {s.C1x}, 0", f"{M16} {D[1][1]}, {U[1]}, {s.C1y}, 0"] + c0[2:] + ['@6'] + stt(0) + cv(1) + stt(1)
        return o
    def build(s):
        A = s.A
        s.entry(); nso = opt('nso', 3); A(s.so_calc(0, nso))
        A(f"""s_waitcnt lgkmcnt(0)
        buffer_load_dwordx4 {s.l16}, {s.sx}, {s.xo[0]} offen lds ;@xr
        buffer_load_dwordx4 {s.l16}, {s.sx}, {s.xo[1]} offen offset:1024 lds ;@xr
        s_mov_b64 {s.sx1[0:2]}, {s.sx[0:2]}
        s_cmp_eq_u32 {s.fs1}, 15
        s_cselect_b64 {s.sw1[0:2]}, {s.sw2[0:2]}, {s.sw1[0:2]} ;@K""")
        s.stamp('karg')
        tr = s.tables(); W = s.v('wraw', 8); s.v('vtag'); s.ss('xo2 mlo')
        halves = cat(s.g1_halves(st) for st in range(8)); npre = opt('npre', 6)
        asc = s.a_scalars()
        wl = [f"buffer_load_dwordx4 {W[0:4]}, {s.g1vw[3]}, {s.swr}, {s.wl} offen ;@W", f"buffer_load_dwordx4 {W[4:8]}, {s.g1vw[3]}, {s.swi}, {s.wl} offen ;@W"]
        q = glue(cat(halves[:npre])); wpos = opt('wpos', 7); q = q[:wpos] + wl + q[wpos:]
        n0 = opt('n0', 4); assert n0 <= 4; A(q[:n0]); q = q[n0:]
        A(s.fwarm()); A(f"s_mov_b32 {s.t0}, {EP}\n buffer_load_dword {s.vtag}, off, {s.sws}, {s.t0} sc1 ;@tag")
        rsc, rfix = s.g1_rd_setup()
        A(asc + s.const_A3() + s.so_calc(nso, 8) + rsc + s.flags_setup())
        A("@wait tb\n s_barrier"); s.stamp('tb')
        A(tr[:12])
        A(f"""s_waitcnt lgkmcnt(8)
        v_add_u32 {s.a_trad}, {s.ab[3]}, {s.a_trad}
        s_cmp_eq_u32 {s.fs1}, 15
        s_cselect_b64 vcc, -1, 0""")
        A([f"v_cndmask_b32 {s.g1vw[z]}, {s.g1vw[z]}, {s.l16}, vcc" for z in range(3)])
        n1 = opt('n1', 5); assert n0 + n1 >= wpos + 2
        A(sprinkle(tr[12:], q[:n1], 0, 2)); q = q[n1:]
        s.sfree('swr swi wl'); s.vfree('cpf _tad')
        RL = opt('rl', 0)
        A("@wait xr lgkm=0"); s.stamp('xin')
        na = opt('na', 6)
        A(sprinkle(s.a_part1(s.a_fix()), q[:na], opt('f1a', 50), opt('e1', 18))); q = q[na:]
        A(rfix[:opt('rf', 12)]); A("s_waitcnt lgkmcnt(0)\n s_barrier"); s.stamp('a1')
        rf2 = rfix[opt('rf', 12):]
        p2, wst_, pk, xrd, xst = s.a_part2()
        if RL & 1: rf2 = rf2 + s.reloc_prod(s.xost, s.p, 0xff000000, 0xff000000, f"s_bitcmp0_b32 {s.w}, 0")
        A(p2[:2] + rf2); A(sprinkle(p2[2:], q[:opt('na2', 3)], 4, 3)); q = q[opt('na2', 3):]
        P = dict(head={t: [] for t in range(16)}, also={t: '' for t in range(16)}, extra={t: [] for t in range(16)}, first={t: [] for t in range(16)}, last={t: [] for t in range(16)}, bar=set())
        head, also, extra = P['head'], P['also'], P['extra']
        xin = opt('xin', 1)
        if xin == 0: A(wst_ + pk + xrd + q + xst[:1] + cat([f"s_waitcnt lgkmcnt({3-z})", xst[1+z]] for z in range(4)))
        elif xin == 1: A(wst_ + pk + xrd + q); extra[0] += xst
        else: A(pk + q); P['last'][0] += wst_ + xrd; extra[1] += xst
        s.vfree('aF0 aF1 a_trad sel0 a_wr B1r B1i SAr SAi A3r A3i mn0 sgn a_rd a_st0 a_st1 wa0 xa0'); s.sfree('apiv')
        s.v('acc1', 48); s.v('accc', 12); mm = s.v('g1m', 8)
        s.stamp('a2')
        f1 = opt('f1', 5); p1 = opt('p1', 10); c1s = opt('c1', 13); pf3 = opt('pf3', 6)
        s.sg('hso', 11, 1); gsc, bsu = s.b_setup(); wsu, pfs = s.w2_setup()
        if RL & 1: gsc += s.reloc_cons(s.b_ga, s.j, 1, 2)
        if RL & 2: wsu += s.reloc_prod(s.b_st, s.j, 0xff000000, 0)
        s.v('hla'); wsu += [f"v_mov_b32 {s.hla}, {s.l16}"]
        if RL & 8: wsu += L(f"s_lshr_b32 {s.t1}, {s.w}, 1\n s_lshl1_add_u32 {s.t1}, {s.rb1}, {s.t1}") + s.reloc_prod(s.hla, s.t1, 0xff000000, 0)
        s.v('_keep')
        wst = [int(x) for x in opt('wst', '11,12,14,15').split(',') if x]
        head[f1] += s.tag_fix(); head[opt('hA', 3)] += pfs + gsc + s.h_offsets(); head[opt('hB', 5)] += wsu
        assert opt('hA', 3) <= min(c1s, pf3 or 99, opt('hB', 5)) and opt('hB', 5) <= min(wst + [15])
        t = opt('o3', 1)
        for h in range(npre, 16):
            t = max(t, 2*(h//2 - 4) + 1)
            if t == c1s and opt('gfirst', 1): t += 1
            assert t <= 2*(h//2) - 2, (h, t)
            extra[t] += halves[h]; t += 1
        also[f1] += ' x1'; extra[f1] = s.flag('f1', s.fo) + extra[f1]
        if pf3: extra[pf3] += s.pf3()
        i1, c1 = s.poll('p1', s.pa, 0)
        head[c1s] += c1; extra[c1s] = [f"buffer_load_dwordx4 {mm[0:4]}, {s.mla}, {s.sws}, {s.mlo} offen sc1 ;@m"] + s.b_gather() + extra[c1s]; P['bar'].add(c1s); P['bar'].add(f1)
        extra[p1] = i1 + extra[p1]
        for hb, st in enumerate(wst):
            assert st >= 9 + 2*(hb//2); extra[st] += s.w2dma(hb)
        P['last'][15] += [''] * max(0, 9 - len(glue(extra[15]))) + [f"ds_write_b128 {s.xw}, {s.accc[0:4]}", "@wait m", f"v_mov_b32 {mm[4]}, {mm[1]}", f"v_mov_b32 {mm[6]}, {mm[3]}"]
        if opt('hC', 15) == 15: P['first'][15] += bsu
        else: head[opt('hC', 15)] += bsu
        A("@wait st0\n s_barrier"); s.stamp('in0'); A(s.g1_reads(0))
        for step in range(16):
            s.g1_step(step, P)
            if step == 1: s.vfree('aD0r aD0i aD1r aD1i ast wraw wso wso2 xord xost rms'); s.sfree('x1o xo2')
        s.stamp('g1main')
        brd, bsw, bmain, brd2, bst = s.b_parts()
        nb = len(wst); e0 = opt('ne', 1); nbb = opt('nbb', 1); nd = opt('nd', 1); assert nb + e0 + nbb <= 8 and nb + e0 >= 3
        epi = s.g1_epilogue()
        if opt('gxe', 1):
            k = epi.index('s_barrier'); epi[k-1] = "@wait gx lgkm=0"; epi[k+2:k+2] = brd
        A(sprinkle(epi, glue(cat(s.w2dma(h) for h in range(nb, nb + e0))), opt('ef', 14), opt('ee', 15)))
        s.stamp('g1epi')
        if not opt('gxe', 1): A("@wait gx\n s_barrier"); A(brd); A("s_waitcnt lgkmcnt(0)")
        A(bsw); A(sprinkle(bmain, glue(cat(s.w2dma(h) for h in range(nb + e0, nb + e0 + nbb))), opt('bf', 5), opt('e2', 16)))
        s.vfree('g1m g1P acc1 accc g1wa g1xa g1vx g1vw xw xr_ pfo pfd mla'); s.afree('ones xf wf'); s.sfree('hst sox sow tau0 dtau sx1 sw1 go mlo')
        hb_ = opt('hearly', 0)
        A(("@wait h lgkm=0" if hb_ == 1 else "s_waitcnt lgkmcnt(0)") + "\n s_barrier"); A(brd2)
        if hb_ == 1: A(s.flag('f2', s.fo2))
        s.v('acc2', 64); s.a('w2f', 176); NH = s.NH = opt('nh', 16); s.a('hf', 4*NH)
        X = s.v('fX', 8); S = s.v('fS', 8); pv2 = s.v('pv2')
        g0, g1 = s.g2_setup(); A(g0)
        if RL & 2: g1 += s.reloc_cons(s.c_ga, s.p, 2, 1)
        if RL & 4: g1 += s.reloc_prod(s.s_st, s.fs, 0xf000, 0xf000) + s.reloc_cons(s.s_ld, s.fs, 0, 3)
        if RL & 8: g1 += [f"v_mov_b32 {s.hla}, {s.l16}"] + s.reloc_prod(s.hla, s.rb, 0xff000000, 0) + [f"s_mov_b32 {s.sh[2]}, {BIG + 65536}"]
        A("s_waitcnt lgkmcnt(0)"); A(bst); s.stamp('b')
        s.vfree('bD0r bD0i bD1r bD1i btmp bX bW b_ua b_wa b_uo T256c T256s b_lin b_ga FWr FWi IVr IVi ra2'); s.sfree('y1o')
        i3, c3 = s.poll('p3', s.pa, s.k4096); i4, c4 = s.poll('p4', s.pg, s.k4096); pv = s.pv; s.pv = pv2; i2, c2 = s.poll('p2', s.pg2, 0); s.pv = pv
        n1_ = nb + e0 + nbb; rest = list(range(n1_, 11))
        cc = [f"@wait wb{nb-1}"] + sprinkle(g1 + s.const_C3(), cat(s.w2read(h) for h in range(nb)), 0, 2)
        k = min(opt('ca', 100), len(cc))
        while k < len(cc) and cc[k].startswith(('s_cselect', 's_addc')): k += 1
        assert n1_ + nd <= 8
        A(cat(s.w2dma(h) for h in rest[:nd])); A(cc[:k]); s.stamp('pre')
        t0 = s.t0; s.t0 = s.t2
        A("@wait y1\n s_barrier"); A(s.flag('f3', s.fo, F3 - F1)); s.t0 = t0
        if hb_ == 0: A(s.flag('f2', s.fo2))
        s.stamp('ack'); s.vfree('bF b_st')
        xl = [f"buffer_load_dword {s.rv[0]}, {s.rn[0]}, {s.sws}, 0 offen sc1 ;@r", f"buffer_load_dword {s.rv[2]}, {s.rn[0]}, {s.sws}, 0 offen offset:8 sc1 ;@r"] + \
             [f"buffer_load_dwordx4 {X[4*m:4*m+4]}, {s.g2st}, {s.sx}, {s.rowo[m]} offen ;@xt" for m in range(2)]
        lo = [h for h in rest[nd:] if h < 8]; hi = [h for h in rest[nd:] if h >= 8]; xi = opt('xi', -1)
        A(sprinkle(cc[k:] + cat(s.w2read(h) for h in range(nb, n1_)), glue(cat(s.w2dma(h) for h in lo)), 0, opt('e5', 8))); A("s_waitcnt lgkmcnt(0)")
        wq = glue(cat(s.w2dma(h) for h in hi)) + (xl if xi < 0 else []); nw = opt('nw', 12)
        A(wq[:nw]); wq = wq[nw:]
        if opt('d3', 15): A(f"s_sleep {opt('d3', 15)}")
        s.stamp('pre3'); A(i3); A(i2); np_ = opt('np', 4); A(wq[:np_]); wq = wq[np_:]
        A(f"s_cmp_eq_u32 {s.p}, 0\n s_cselect_b32 {s.t1}, {s.fo}, {WS_SIZE}")
        wtags = [re.search(r';@(wb\d+)', x).group(1) for x in wq if ';@wb' in x]; assert not wtags or wq[0].startswith('s_add')
        A(c3); A("s_barrier"); A(s.c_gather()); A(s.flag('ep', s.t1, EP - F1)); s.stamp('f3')
        A(wq)
        if RL & 8:
            A(f"s_cmp_eq_u32 {s.w}, 3\n s_cselect_b32 {s.t0}, {9*4096}, -1"); A([f"s_min_u32 {s.hso[i]}, {s.hso[i]}, {s.t0}" for i in range(3 if opt('rot2', 'x') == 'x' else 10, 11)])
        A(c2); s.stamp('f2')
        hq = [s.hload(i) for i in range(NH)]; ng = opt('ng', 4)
        early = [h for h in rest if A.vmlog.index('p3') > max(i for i, t in enumerate(A.vmlog) if t == f'wb{h}')]
        A(sprinkle(cat(s.w2read(h) for h in early), hq[:ng], 0, 6)); hq = hq[ng:]
        A("@wait gy\n s_barrier"); s.stamp('gy')
        per = [int(x) for x in opt('cq', '3,2,3,2,2,9').split(',')]
        for x in s.c_parts():
            if x[0] == '@' and len(x) == 2:
                k = int(x[1]); A(hq[:per[k-1]]); hq = hq[per[k-1]:]
                if k == 5 and len(early) < len(rest): A("@wait wb10"); A(cat(s.w2read(h) for h in rest if h not in early))
            else: A(x)
        A(hq); s.stamp('c')
        s.vfree('cF cD0r cD0i cD1r cD1i cS0i cS1i ctmp C3r C3i CGr CGi c_er c_ua c_ew c_ga T512c T512s vo2 g2vo')
        s.v('fx', 16); s.v('fs_', 16)
        ev = {i: [] for i in range(45)}
        if xi >= 0:
            for k in range(4): ev[xi + k] += [xl[k]]
        f4 = opt('f4', 12); p4 = opt('p4', 28); c4i = opt('c4', 36); sw = opt('sw', 43)
        ev[f4] += ["@wait s\n s_barrier"] + s.flag('f4', s.fo, F4 - F1); ev[p4] += i4
        ev[c4i] += [f"s_and_b32 {s.t0}, {s.rowo[0]}, -1024", f"s_add_u32 {s.t0}, {s.t0}, {WS_S}", f"s_add_u32 {s.t1}, {s.t0}, {4*262144}"] + c4 + \
                   [f"buffer_load_dwordx4 {S[4*m:4*m+4]}, {s.s_ld}, {s.sws}, {(s.t0, s.t1)[m]} offen sc1 ;@s{m}" for m in range(2)]
        for k in range(8): ev[23 + k*opt('rw', 7)//8] += [s.red_write(0)[k]]
        r0 = 24 + opt('rw', 7); ev[r0] += ["s_waitcnt lgkmcnt(0)\n s_barrier"] + s.red_read(0)
        a1, am, a2, a3 = s.finish(0, False)
        srs = s.unpack(s.fs_, S) + [f"v_mul_f32 {s.fs_[c]}, {s.rv[2*(c//8)]}, {s.fs_[c]}" for c in range(16)]
        streams = [(18, ["@wait xt"] + [f"v_mul_f32 {s.rn[2*m]}, {fl(-LOG2E)}, {s.rv[2*m]}" for m in range(2)] + s.unpack(s.fx, X)),
                   (r0 + 2, ["s_waitcnt lgkmcnt(0)"] + a1 + a2), (sw, ["@wait s1"] + srs + am + a3)]
        perm = opt('per', 6); nlast = opt('nl', 5); late = []
        def take(idx, n):
            o = []
            while streams and n > 0 and streams[0][0] <= idx:
                x = streams[0][1][:n]; del streams[0][1][:n]; o += x; n -= len(x)
                if not streams[0][1]: streams.pop(0)
            return o
        for idx in range(44):
            mt, i = divmod(idx, 22); sl = idx % NH
            A(f"@wait h{idx}" + (" lgkm=0" if idx == 0 else ""))
            if idx == 0: s.stamp('h0')
            if idx == 22: s.stamp('ph1')
            if idx and idx % 3 == 0: s.stamp(f'.h{idx}')
            mf = []
            for nt in range(2):
                acc = s.acc2[32*mt+16*nt:32*mt+16*nt+16]
                mf.append(f"{M32} {acc}, {s.w2f[8*i+4*nt:8*i+4*nt+4]}, {s.hf[4*sl:4*sl+4]}, {acc if i else 0}")
            if idx >= 44 - nlast:
                late.append(mf[1]); A(mf[0]); A(ev[idx] + take(idx, perm // 2 - len(ev[idx]))); continue
            fill = list(ev[idx]); fill += take(idx, perm - len(fill))
            hl = [s.hload(idx + NH)] if idx + NH < 44 else []; h = (len(fill) + 1) // 2
            A(mf[0]); A(fill[:h]); A(mf[1]); A(hl + fill[h:])
        rw = s.red_write(1)
        for k, m in enumerate(late):
            A(m); A(take(99, perm // 2))
            if k >= 2 and len(rw) > 4: A(rw[:2]); rw = rw[2:]
        s.stamp('g2main')
        A(rw[:len(rw)-4]); A(take(99, 10)); A(rw[len(rw)-4:]); A(take(99, 20))
        A("s_waitcnt lgkmcnt(0)\n s_barrier"); A(s.red_read(1)); A(take(99, 999))
        a1, am, a2, a3 = s.finish(1, True)
        A("s_waitcnt lgkmcnt(4)"); A(a1[:4]); A("s_waitcnt lgkmcnt(0)"); A(a1[4:] + am + a2 + a3); s.stamp('fin')
        if STAMPS:
            A("s_waitcnt vmcnt(0)"); s.stamp('end'); n = len(s.tags)
            A(f"""s_waitcnt lgkmcnt(0)
            v_writelane_b32 {s._sv}, {s._sp[2*((n-1)%2)]}, {n-1}
            v_writelane_b32 {s._sv}, {s.spin}, 31
            s_lshl2_add_u32 {s.t0}, s2, {s.w}
            s_lshl_b32 {s.t0}, {s.t0}, 7
            s_add_u32 {s.t0}, {s.t0}, {32<<20}
            v_lshl_add_u32 v0, {s.l}, 2, {s.t0}
            s_mov_b64 exec, 0xffffffff
            global_store_dword v0, {s._sv}, {s.sws[0:2]}""")
        A("L_end:\n s_endpgm"); A(s.tail); A("L_codeend:")

def main(cls):
    k = cls(); k.build(); b = k.A.finish()
    if opt('kill', ''):
        pats = opt('kill', '').split(','); Ls = b.split("\n")
        for i, l in enumerate(Ls):
            m = re.search(r';@(\w+)', l)
            if m and l.strip().startswith('buffer_') and m.group(1) != 'xr' and any(re.fullmatch(p, m.group(1)) for p in pats): Ls[i] = re.sub(r's\[\d+:\d+\], (s\d+|0) ', 's[96:99], 0 ', l)
            if ';@K' in l: Ls[i] = l + f"\n    s_mov_b32 s96, {k.sws[0]}\n    s_mov_b32 s97, {k.sws[1]}\n    s_mov_b32 s98, 0\n    s_mov_b32 s99, 0x20000"
        b = "\n".join(Ls)
    o = open("recurrent_scan__spectral_gfnet__dense_activation_relu__prompt.s.ref").read().split("; Override launch")[0]
    o += f"; @launch grid=(256,1,1) block=(256,1,1) lds={LDS}\n" + '.amdgcn_target "amdgcn-amd-amdhsa--gfx950"\n.text\n'
    o += f".globl {KN}\n.p2align 8\n.type {KN},@function\n{KN}:\n" + b + '.section .rodata,"a"\n.p2align 6\n'
    o += f""".amdhsa_kernel {KN}
  .amdhsa_next_free_vgpr 512
  .amdhsa_next_free_sgpr 102
  .amdhsa_accum_offset 256
  .amdhsa_group_segment_fixed_size 0
  .amdhsa_kernarg_size 72
  .amdhsa_user_sgpr_count 2
  .amdhsa_user_sgpr_kernarg_segment_ptr 1
  .amdhsa_system_sgpr_workgroup_id_x 1
.end_amdhsa_kernel
""" + k.tb.text("tbl")
    open(sys.argv[1], "w").write(o)
    print("v", k.V.hw, "a", k.AC.hw, "s", k.S.hw, "instrs", len(k.A.lines), "nops", k.A.nops)
    if STAMPS: open(sys.argv[1] + ".tags", "w").write(" ".join(k.tags))
if __name__ == "__main__": main(Kern)
```

```python
import sys, re
import numpy as np
from asmlib import *
import tables as TB
from comp import fl, M16, M32
KN = "recurrent_scan__spectral_gfnet__dense_activation_relu__prompt_kernel"
OPT = dict(a.split('=') for a in sys.argv[2:] if '=' in a)
def opt(k, d): return type(d)(OPT.get(k, d))
STAMPS = 'stamps' in sys.argv[2:]
WS_X1 = 0; WS_Y1 = 4 << 20; WS_H = 6 << 20; WS_S = 12 << 20; F1 = 14 << 20; WS_SIZE = 31 << 20; BIG = 16 << 20
F3 = F1 + 4096; REPS = 8192; WS_R = F1 + 65536; F2 = F1 + 98304; F4 = F2 + 4096; EP = F2 + 8192
LB = 131072; EH = 4288; XOS = 544; RED_S = 8704
L_TB = 98304; L_E = L_UO = LB; L_XR = L_XO = L_U = LB + 8704; L_XCH = LB + 26112; LDS = L_XCH + 4096
SWZ = opt('swz', 0)
LOG2E = 1.4426950408889634
def sprinkle(base, ins, first, every):
    out = []; ins = list(ins); due = 0
    for i, x in enumerate(base):
        out.append(x)
        if i >= first and (i - first) % every == 0: due += 1
        nxt = base[i+1] if i + 1 < len(base) else ''
        if due and ins and not nxt.startswith(('s_cselect', 's_addc', 's_subb', 's_cbranch')):
            out.append(ins.pop(0)); due -= 1
    return out + ins
def glue(lst):
    out = []; pend = []
    for x in lst:
        pend.append(x)
        if not x.startswith('s_') or 'buffer_' in x: out.append("\n".join(pend)); pend = []
    if pend: out.append("\n".join(pend))
    return out
def L(text): return [x.strip() for x in text.split('\n') if x.strip()]
def cat(it): return sum(it, [])

class Kern:
    def __init__(s):
        s.A = Asm(); s.V = Regs('v', 1, 256); s.AC = Regs('a', 0, 240); s.S = Regs('s', 3, 102); s.tail = []; s.tb = TB.Table()
        if opt('kill', ''): s.S.alloc('_kill', 4, 4)
    def v(s, name, n=1): r = s.V.alloc(name, n); setattr(s, name, r); return r
    def a(s, name, n=1): r = s.AC.alloc(name, n); setattr(s, name, r); return r
    def sg(s, name, n=1, align=None): r = s.S.alloc(name, n, align); setattr(s, name, r); return r
    def vs(s, names): return [s.v(x) for x in names.split()]
    def ss(s, names): return [s.sg(x) for x in names.split()]
    def vfree(s, names): s.V.release(*names.split())
    def afree(s, names): s.AC.release(*names.split())
    def sfree(s, names): s.S.release(*names.split())
    def stamp(s, tag):
        if not STAMPS: return
        fine = opt('fine', '')
        if fine == 'none' and tag not in ('start', 'end'): return
        if tag.startswith('.'):
            if not fine or not tag.startswith('.' + fine): return
        elif fine and tag not in ('start', 'end', 'in0', 'g1main', 'g1epi', 'b', 'f2', 'h0', 'g2main', 'xin'): return
        if not hasattr(s, 'tags'): s.tags = []; s.sg('_sp', 4, 2); s.v('_sv')
        s.tags.append(tag); i = len(s.tags) - 1
        s.A(f"{'s_memtime' if opt('cyc', 0) else 's_memrealtime'} {s._sp[2*(i%2):2*(i%2)+2]}")
        if i > 0: s.A(f"v_writelane_b32 {s._sv}, {s._sp[2*((i-1)%2)]}, {i-1}")
    SRDS = [('sx', 0, 2097152), ('sw1', 32, 1409024), ('sw2', 40, 1409024), ('sws', 64, WS_SIZE), ('swr', 8, 2048*514), ('swi', 16, 2048*514), ('sout', 48, 2097152)]
    NT = 6
    def entry(s):
        A = s.A; s.stamp('start')
        for nm, off, sz in s.SRDS: s.sg(nm, 4, 4); A(f"s_load_dwordx2 {getattr(s, nm)[0:2]}, s[0:1], {off}")
        s.sg('sx1', 4, 4); s.sg('hso', 11, 1); s.sg('stb', 2); s.sg('spc', 2); s.vs('l n q l16 cpf'); s.ss('w rb fs p t0 t1 t2 xcd j rb1 fs1 spin spin2 m0b')
        t = s.v('_t')
        A(f"""v_lshrrev_b32 {s.q}, 6, v0
        s_cmp_ge_u32 s2, 256
        s_cbranch_scc1 L_end
        s_getpc_b64 {s.spc}
        L_pc:
        s_add_u32 {s.stb[0]}, {s.spc[0]}, tbl@rel32@lo+4
        s_addc_u32 {s.stb[1]}, {s.spc[1]}, tbl@rel32@hi+12
        v_readfirstlane_b32 {s.w}, {s.q}
        v_and_b32 {s.l}, 63, v0
        v_lshlrev_b32 {s.l16}, 4, {s.l}
        s_mul_i32 {s.t0}, {s.w}, {1024*s.NT}
        s_add_u32 m0, {s.t0}, {L_TB}
        v_add_u32 {t}, {s.t0}, {s.l16}""")
        for z in range(4): A(f"global_load_lds_dwordx4 {t}, {s.stb} offset:{1024*z} ;@tb")
        A(f"s_add_u32 m0, {s.t0}, {L_TB + 4096}\n v_add_u32 {t}, 4096, {t}\n s_lshr_b32 {s.j}, s2, 3\n s_and_b32 {s.t0}, {s.j}, 3\n s_lshl_b32 {s.t1}, {s.t0}, 12")
        for z in range(s.NT - 4): A(f"global_load_lds_dwordx4 {t}, {s.stb} offset:{1024*z} ;@tb")
        A(f"""v_lshrrev_b32 {t}, 3, v0
        v_lshl_add_u32 {t}, {t}, 7, {s.t1}
        v_min_u32 {t}, L_codeend-L_pc-4, {t}
        global_load_dword {s.cpf}, {t}, {s.spc} ;@cpf
        v_and_b32 {s.n}, 15, v0
        v_lshrrev_b32 {s.q}, 4, {s.l}
        s_and_b32 {s.xcd}, s2, 7
        s_lshl2_add_u32 {s.rb}, {s.xcd}, {s.t0}
        s_lshr_b32 {s.fs}, s2, 5
        s_lshl3_add_u32 {s.p}, {s.rb}, {s.fs}
        s_lshr_b32 {s.t1}, {s.xcd}, 1
        s_lshl2_add_u32 {s.rb1}, {s.t1}, {s.t0}
        s_xor_b32 {s.t0}, {s.t0}, {s.xcd}
        s_and_b32 {s.t0}, {s.t0}, 1
        s_sub_u32 {s.t0}, 15, {s.t0}
        s_and_b32 {s.t1}, {s.xcd}, 1
        s_mul_i32 {s.t1}, {s.t1}, 7
        s_add_u32 {s.fs1}, {s.t1}, {s.fs}
        s_cmp_eq_u32 {s.fs}, 7
        s_cselect_b32 {s.fs1}, {s.t0}, {s.fs1}
        s_lshl_b32 {s.m0b}, {s.w}, 13""")
        s.vfree('_t'); s.sfree('stb spc')
        for nm, off, sz in s.SRDS:
            r = getattr(s, nm); A(f"s_mov_b32 {r[2]}, {sz}\n s_mov_b32 {r[3]}, 0x20000")
        s.sg('xo', 2)
        A(f"""s_lshl_b32 {s.t0}, {s.w}, 11
        s_add_u32 m0, {s.t0}, {L_XR}
        s_lshl_b32 {s.xo[0]}, {s.w}, 9
        s_add_u32 {s.xo[0]}, {s.xo[0]}, {s.p}
        s_lshl_b32 {s.xo[0]}, {s.xo[0]}, 10
        s_add_u32 {s.xo[1]}, {s.xo[0]}, {262144-1024}""")
        vx = s.v('g1vx', 4); t, u = s.vs('_t _u'); s.sg('sox', 8, 1); s.sg('sow', 8, 1); bx, bw, mw, rot = s.ss('_bx _bw _mw _rot')
        A(f"""v_lshrrev_b32 {u}, 3, {s.l}
        v_and_b32 {t}, 7, {s.l}
        v_xor_b32 {t}, {t}, {s.q}
        v_lshlrev_b32 {u}, 10, {u}
        v_lshl_add_u32 {vx[0]}, {t}, 4, {u}
        v_xor_b32 {vx[1]}, 64, {vx[0]}
        v_add_u32 {vx[1]}, {262144-1024}, {vx[1]}
        v_add_u32 {vx[2]}, {2*(262144-1024)}, {vx[0]}
        v_add_u32 {vx[3]}, {2*(262144-1024)}, {vx[1]}
        s_and_b32 {s.t1}, {s.w}, 1
        s_lshr_b32 {s.t0}, {s.w}, 1
        s_lshl1_add_u32 {bx}, {s.rb1}, {s.t0}
        s_lshl_b32 {s.t2}, {s.t1}, 7
        s_add_u32 {bx}, {bx}, {s.t2}
        s_lshl_b32 {bx}, {bx}, 13
        s_lshl3_add_u32 {bw}, {s.t0}, {s.t1}
        s_mul_i32 {bw}, {bw}, {4*2752}
        s_mul_i32 {s.t2}, {s.fs1}, 192
        s_add_u32 {bw}, {bw}, {s.t2}
        s_mul_i32 {s.t0}, {s.rb1}, {86*1024}
        s_mul_i32 {s.t1}, {s.w}, 3072
        s_add_u32 {s.t0}, {s.t0}, {s.t1}
        s_mov_b32 {mw}, {64*2752}
        s_mov_b32 {s.sx1[3]}, 0x20000
        s_cmp_eq_u32 {s.fs1}, 15
        s_cselect_b32 {bw}, {s.t0}, {bw}
        s_cselect_b32 {mw}, 12288, {mw}
        s_cselect_b32 {s.sx1[2]}, 0, {s.sx[2]}""")
        if opt('vwc', 0):
            vw = s.v('g1vc', 3); k = s.v('_k'); A("s_cselect_b64 vcc, -1, 0")
            for z in range(3):
                A(f"""v_add_u32 {t}, {64*z}, {s.l}
                v_mul_u32_u24 {u}, 5462, {t}
                v_lshrrev_b32 {u}, 16, {u}
                v_mad_i32_i24 {t}, {u}, -12, {t}
                v_lshrrev_b32 {k}, 1, {u}
                v_and_b32 {k}, 2, {k}
                v_xor_b32 {t}, {t}, {k}
                v_and_b32 {k}, 12, {u}
                v_add_u32 {u}, {u}, {k}
                v_mul_u32_u24 {u}, 2752, {u}
                v_lshl_add_u32 {t}, {t}, 4, {u}""")
                if z: A(f"v_subrev_u32 {t}, {1024*z}, {t}")
                A(f"v_cndmask_b32 {vw[z]}, {t}, {s.l16}, vcc")
            s.vfree('_k')
        r1 = opt('rot1', 'xh')
        if r1 == 'x': A(f"s_mov_b32 {rot}, {s.xcd}")
        elif r1 == 'xh': A(f"s_and_b32 {s.t0}, {s.j}, 1\n s_lshl2_add_u32 {rot}, {s.t0}, {s.xcd}")
        elif r1 == 'x1': A(f"s_and_b32 {s.t0}, {s.j}, 1\n s_add_u32 {rot}, {s.t0}, {s.xcd}")
        s.vfree('_t _u')
    def so_calc(s, c0, c1):
        o = []
        for st in range(c0, c1):
            o += L(f"""s_and_b32 {s._rot}, {s._rot}, 7
            s_lshl_b32 {s.t1}, {s._rot}, 7
            s_add_u32 {s.sox[st]}, {s._bx}, {s.t1}
            s_mul_i32 {s.t1}, {s._rot}, {s._mw}
            s_add_u32 {s.sow[st]}, {s._bw}, {s.t1}
            s_add_u32 {s._rot}, {s._rot}, 1""")
        if c1 == 8: s.sfree('_bx _bw _rot _mw')
        return o
    def g1_halves(s, st):
        base = (st % 4) * 32768; vw = s.g1vc if opt('vwc', 0) else s.g1vw
        hv = [[f"s_add_u32 m0, {s.m0b}, {base+4096}"] + [f"buffer_load_dwordx4 {s.g1vx[z]}, {s.sx1}, {s.sox[st]} offen offset:{1024*z} lds ;@st{st}" for z in range(4)],
                [f"s_add_u32 m0, {s.m0b}, {base}"] + [f"buffer_load_dwordx4 {vw[z]}, {s.sw1}, {s.sow[st]} offen offset:{1024*z} lds ;@st{st}" for z in range(3)]]
        return hv[::-1] if opt('vwc', 0) else hv
    def tables(s):
        l, n, q = TB.l, TB.n, TB.q
        b1 = TB.B1(); t5 = TB.T(512); f = TB.F16(); sa = TB.SA(); t2 = TB.T(256); c1 = TB.C1(); sc = TB.SC()
        u8, c8, i5, hh = l >> 3, l & 7, l & 31, l >> 5
        ast = lambda t: L_XO + XOS*(n >> 1) + 64*(4*t + q) + 16*((n & 1) ^ (2*t + (q >> 1)))
        def vw(z):
            Lz = 64*z + l; row = Lz // 12; ch = (Lz % 12) ^ (2*((row >> 2) & 1)); return (row + (row & 12)) * 2752 + 16*ch - 1024*z
        tl = [('g1vw', [vw(0), vw(1), vw(2), 514*u8 + 16*c8], ''),
              ('B1r', b1[0], ''), ('B1i', b1[1], ''),
              ('m', [0x3f80 + 0*l, L_XR + 8*l, TB.u32(np.where(n == 0, 1.0, 0.0)), TB.u32(np.where(n < 8, 1.0, -1.0))], 'sel0 a_trad mn0 sgn'),
              ('T512c', t5[0], ''), ('T512s', t5[1], ''), ('FWr', f['FWr'], ''), ('FWi', f['FWi'], ''), ('SAr', sa[0], ''), ('SAi', sa[1], ''),
              ('a_wr', [L_E + 16 * TB.sig_unit(k, n) for k in TB.kk], ''),
              ('m', [L_XO + XOS*u8 + 64*c8 + 16*(3 ^ (c8 >> 1)), L_XO + XOS*u8 + 64*c8 + 16*(2 ^ (c8 >> 1)), ast(0), ast(1)], 'wso2 wso a_st0 a_st1'),
              ('m', [L_E + 16 * (8*(n >> 2) + 4*(q >> 1) + (n & 3)) + EH * (q & 1), L_XO + XOS*hh + 16*i5, 2048*hh + 64*(i5 >> 2) + 16*((i5 & 3) ^ (i5 >> 3)),
                     WS_R + np.where(l & 1, 32 + 16*hh, 16*hh)], 'a_rd xord xost rms'),
              ('m', [192*(l >> 2) + 8*(l & 3) + 32*(q & 1), 4096 + 128*n + 16*((n >> 1) ^ q), WS_R + 128*(n & 7) + 32 + 16*(n >> 3), 16384*(l >> 2) + 16*((l ^ q) & 3) + SWZ*128*((l >> 2) & 7)], 'wa0 xa0 mla b_ga'),
              ('m', [L_U + 4096*q + 64*n + 16*(n >> 2), L_UO + 2048*q + 32*n + 16*(n >> 3), 32*(l >> 1) + 16*((l ^ q) & 1), 32*i5 + 16*hh], 'b_ua b_uo b_st s_st'),
              ('m', [1024*u8 + 16*(c8 ^ (4*(q & 1))), 128*(8*hh + ((l >> 2) & 3)) + 64*((l >> 3) & 1) + 32*(q & 1) + 8*(l & 3), 272*i5 + 16*hh, 272*u8 + 32*c8], 'vo2 ra2 g2rw g2rr'),
              ('m', [1024*u8 + 16*c8, 65536*(l >> 1) + 16*(l & 1) + SWZ*128*((l >> 1) & 7), L_U + 8*i5 + 4096*hh, L_E + EH*hh + 32*n + 33*16*(q & 1)], 'g2st c_ga c_ua c_ew'),
              ('c_er', [L_E + 16 * TB.sig_unit(n, k) for k in TB.kk], ''),
              ('T256c', t2[0], ''), ('T256s', t2[1], ''),
              ('C1x', c1[0], 'A'), ('C1y', c1[1], 'A'), ('SCr', sc[0], 'A'), ('SCi', sc[1], 'A')]
        assert len(tl) == 4 * s.NT
        ad = s.v('_tad'); s.A(f"v_add_u32 {ad}, {L_TB}, {s.l16}"); na = 0; out = []
        for nm, quad, sub in tl:
            i = s.tb.add(quad)
            if sub == 'A': r = R('a', 240 + 4*na, 4); na += 1; setattr(s, nm, r)
            else:
                r = s.v(nm, 4)
                if sub:
                    b, _ = s.V.names.pop(nm)
                    for k, x in enumerate(sub.split()): s.V.names[x] = (b + k, 1); setattr(s, x, r[k])
            out.append(f"ds_read_b128 {r}, {ad} offset:{1024*i}")
        return out
    def trig3(s, name, fwd, pre):
        co = s.v('_co', 4); si = s.v('_si', 4); m, t = s.vs('_m _t'); rr = s.v(name + 'r', 4); ii = s.v(name + 'i', 4)
        o = L(pre(co[0], t, m))
        o += [f"v_mul_f32 {si[0]}, {fl(1/2048)}, {co[0]}", f"v_mul_f32 {t}, {fl(1/2048)}, {t}"]
        o += [f"v_add_f32 {si[c]}, {si[c-1]}, {t}" for c in (1, 2, 3)]
        o += [f"v_cos_f32 {co[c]}, {si[c]}" for c in range(4)] + [f"v_sin_f32 {si[c]}, {si[c]}" for c in range(4)]
        for c in range(4): o += [f"v_cndmask_b32 {co[c]}, 0, {co[c]}, vcc", f"v_cndmask_b32 {si[c]}, 0, {si[c]}, vcc"]
        for c in range(4): o += [f"v_cvt_pk_bf16_f32 {rr[c]}, {co[c]}, {'' if fwd else '-'}{si[c]}", f"v_cvt_pk_bf16_f32 {ii[c]}, {'-' if fwd else ''}{si[c]}, {co[c]}"]
        s.vfree('_co _si _m _t'); return o
    def const_A3(s):
        return s.trig3('A3', True, lambda c0, t, m: f"""v_and_b32 {t}, 1, {s.q}
        v_lshl_add_u32 {t}, {t}, 10, {s.p}
        v_lshrrev_b32 {m}, 1, {s.n}
        v_mul_u32_u24 {c0}, {m}, {t}
        v_lshlrev_b32 {t}, 8, {m}
        v_lshrrev_b32 {m}, 5, {s.l}
        v_xor_b32 {m}, {m}, {s.l}
        v_and_b32 {m}, 1, {m}
        v_cmp_eq_u32 vcc, 0, {m}
        v_cvt_f32_u32 {c0}, {c0}
        v_cvt_f32_u32 {t}, {t}""")
    def const_C3(s):
        return s.trig3('C3', False, lambda c0, t, m: f"""v_lshrrev_b32 {t}, 3, {s.n}
        v_and_b32 {m}, 3, {s.n}
        v_lshl_add_u32 {t}, {t}, 2, {m}
        v_lshl_add_u32 {t}, {t}, 8, {s.p}
        v_lshrrev_b32 {m}, 5, {s.l}
        v_mul_u32_u24 {c0}, {m}, {t}
        v_lshlrev_b32 {c0}, 2, {c0}
        v_lshrrev_b32 {m}, 2, {s.l}
        v_xor_b32 {m}, {m}, {s.q}
        v_and_b32 {m}, 1, {m}
        v_cmp_eq_u32 vcc, 0, {m}
        v_cvt_f32_u32 {c0}, {c0}
        v_cvt_f32_u32 {t}, {t}""")
    def fwarm(s):
        t = s.v('_t')
        o = L(f"""v_lshlrev_b32 {t}, 15, {s.l}
        s_lshl_b32 {s.t0}, s2, 7
        s_add_u32 {s.t0}, {s.t0}, {F1}
        s_cmp_lt_u32 s2, 64
        s_cselect_b32 {s.t1}, 15, 7
        s_cmp_eq_u32 {s.w}, 1
        s_cselect_b32 {s.t0}, {s.t0}, {WS_SIZE}""")
        o.append(f"s_mov_b32 exec_hi, 0\n s_mov_b32 exec_lo, {s.t1}\n buffer_store_dword {t}, {t}, {s.sws}, {s.t0} offen offset:124 sc1 ;@fw\n s_mov_b64 exec, -1")
        s.vfree('_t'); return o
    def flags_setup(s):
        s.vs('pa pg pg2 pv fra'); s.ss('fo fo2 k4096 tag')
        return L(f"""s_lshl_b32 {s.t0}, {s.xcd}, 13
        s_add_u32 {s.t0}, {s.t0}, {F1}
        v_lshl_add_u32 {s.pa}, v0, 4, {s.t0}
        v_lshlrev_b32 {s.fra}, 13, {s.l}
        s_lshl_b32 {s.t0}, {s.rb}, 7
        s_add_u32 {s.t0}, {s.t0}, {F2}
        v_and_b32 {s.pg}, 0x70, {s.l16}
        v_add_u32 {s.pg}, {s.t0}, {s.pg}
        s_and_b32 {s.t0}, {s.t0}, -256
        v_lshl_add_u32 {s.pg2}, {s.n}, 4, {s.t0}
        s_lshl4_add_u32 {s.fo}, {s.p}, {F1}
        s_lshl4_add_u32 {s.fo2}, {s.rb1}, {s.fs1}
        s_lshl4_add_u32 {s.fo2}, {s.fo2}, {F2}
        s_cmp_eq_u32 {s.w}, 0
        s_cselect_b32 {s.fo}, {s.fo}, {WS_SIZE}
        s_cselect_b32 {s.fo2}, {s.fo2}, {WS_SIZE}
        s_mov_b32 {s.spin}, 0
        s_mov_b32 {s.spin2}, 0
        s_movk_i32 {s.k4096}, 4096""")
    def tag_fix(s): return ["@wait tag", f"v_readfirstlane_b32 {s.tag}, {s.vtag}", f"s_mul_i32 {s.tag}, {s.tag}, 1664525", f"s_add_u32 {s.tag}, {s.tag}, 1013904223", f"v_mov_b32 {s.vtag}, {s.tag}"]
    def flag(s, nm, so, add=0):
        pre = f"s_add_u32 {s.t0}, {so}, {add}\n " if add else ""; so = s.t0 if add else so
        if nm in ('f1', 'f3'): return [pre + f"s_mov_b64 exec, 255\n buffer_store_dword {s.vtag}, {s.fra}, {s.sws}, {so} offen sc1 ;@{nm}\n s_mov_b64 exec, -1"]
        return [pre + f"s_mov_b64 exec, 1\n buffer_store_dword {s.vtag}, off, {s.sws}, {so} sc1 ;@{nm}\n s_mov_b64 exec, -1"]
    def poll(s, nm, ad, so):
        ins = f"buffer_load_dword {s.pv}, {ad}, {s.sws}, {so} offen sc1"
        s.tail += L(f"""L_retry{nm}:
        s_add_u32 {s.spin}, {s.spin}, {1 << (8*(int(nm[1])-1))}
        s_add_u32 {s.spin2}, {s.spin2}, 1
        s_cmp_ge_u32 {s.spin2}, 400000
        s_cbranch_scc1 L_out{nm}
        s_mov_b64 exec, vcc
        s_sleep {opt('ps', 3)}
        {ins}
        s_waitcnt vmcnt(0)
        v_cmp_ne_u32 vcc, {s.tag}, {s.pv}
        s_cbranch_vccnz L_retry{nm}
        L_out{nm}:
        s_mov_b64 exec, -1
        s_branch L_back{nm}""")
        return [ins + f" ;@{nm}"], [f"@wait {nm}\n v_cmp_ne_u32 vcc, {s.tag}, {s.pv}\n s_cbranch_vccnz L_retry{nm}\n L_back{nm}:"]
    def reloc_prod(s, reg, key, lo, hi, cond=None):
        t = s.v('_r')
        o = L(f"s_and_b32 {s.t0}, {key}, 3\n s_lshl_b32 {s.t0}, {s.t0}, 7\n s_add_u32 {s.t0}, {s.t0}, {BIG + 128}")
        if cond: o += L(f"{cond}\n s_cselect_b32 {s.t0}, {s.t0}, 0")
        o += L(f"v_add_u32 {t}, {s.t0}, {reg}\n s_mov_b32 vcc_lo, {hex(lo)}\n s_mov_b32 vcc_hi, {hex(hi)}\n v_cndmask_b32 {reg}, {reg}, {t}, vcc")
        s.vfree('_r'); return o
    def reloc_cons(s, reg, key, sh, lanesh):
        t = s.v('_r')
        o = L(f"""v_bfe_u32 {t}, {s.l}, {lanesh}, 2
        v_lshl_add_u32 {t}, {t}, 7, {reg}
        v_add_u32 {t}, {BIG + 128}, {t}
        s_bfe_u32 {s.t0}, {key}, {hex(0x30000 + sh)}
        s_cmp_eq_u32 {s.t0}, 3
        s_cselect_b64 vcc, -1, 0
        v_cndmask_b32 {reg}, {reg}, {t}, vcc""")
        s.vfree('_r'); return o
    def cmul(s, dr, di, co, si, tmp, conj):
        o = []; neg = " neg_lo:[0,0,1] neg_hi:[0,0,1]"
        for h in (0, 2):
            P = lambda r: r[h:h+2]
            o += [f"v_pk_mul_f32 {tmp[0:2]}, {P(di)}, {P(si)}", f"v_pk_mul_f32 {tmp[2:4]}, {P(dr)}, {P(si)}",
                  f"v_pk_fma_f32 {P(dr)}, {P(dr)}, {P(co)}, {tmp[0:2]}" + (neg if conj else ""), f"v_pk_fma_f32 {P(di)}, {P(di)}, {P(co)}, {tmp[2:4]}" + ("" if conj else neg)]
        return o
    def pack(s, dst, dr, di): return [f"v_cvt_pk_bf16_f32 {dst(c)}, {dr[c]}, {di[c]}" for c in range(4)]
    def a_scalars(s):
        s.sg('mq0', 2); s.sg('ab', 4, 1); s.ss('wl x1o'); b = s.ab
        return L(f"""s_mov_b64 {s.mq0}, 0xffff
        s_lshr_b32 {s.t0}, {s.w}, 1
        s_mul_i32 {s.t0}, {s.t0}, {EH}
        s_and_b32 {s.t1}, {s.w}, 1
        s_lshl3_add_u32 {b[0]}, {s.t1}, {s.t0}
        s_mul_i32 {b[1]}, {s.w}, {66*16}
        s_mul_i32 {b[2]}, {s.w}, {8*XOS}
        s_lshl_b32 {b[3]}, {s.w}, 11
        s_mul_i32 {s.wl}, {s.p}, 4112
        s_lshl_b32 {s.t0}, {s.w}, 7
        s_add_u32 {s.wl}, {s.wl}, {s.t0}
        s_add_u32 {s.wl}, {s.wl}, 2
        s_lshl_b32 {s.x1o}, {s.p}, 14
        s_lshl2_add_u32 {s.x1o}, {s.t0}, {s.x1o}
        s_and_b32 {s.t0}, {s.fs}, {4*SWZ}
        s_lshl_b32 {s.t0}, {s.t0}, 7
        s_xor_b32 {s.x1o}, {s.x1o}, {s.t0}""")
    def a_fix(s):
        b = s.ab
        return [f"v_add_u32 {s.a_wr[c]}, {b[0]}, {s.a_wr[c]}" for c in range(4)] + [f"v_add_u32 {s.a_rd}, {b[1]}, {s.a_rd}"] + \
               [f"v_add_u32 {r}, {b[2]}, {r}" for r in (s.a_st0, s.a_st1, s.wso, s.wso2, s.xord)] + \
               L(f"s_and_b32 {s.t0}, {s.fs}, {3*SWZ}\n s_lshl_b32 {s.t0}, {s.t0}, 7\n v_xor_b32 {s.xost}, {s.t0}, {s.xost}")
    def a_part1(s, early):
        F = [s.v('aF0', 4), s.v('aF1', 4)]; s.aD = D = [[s.v(f'aD{i}{x}', 4) for x in 'ri'] for i in range(2)]
        Sp = [[s.v(f'aS{i}{x}', 4) for x in 'ri'] for i in range(2)]
        d = s.v('ad', 8); st = s.v('ast', 4); tmp = s.v('atmp', 4); P = s.v('aP', 8); sel1 = s.v('sel1')
        r01 = s.sg('r01', 4, 2); piv = s.sg('apiv', 2); pv2 = s.sg('apw', 2); o = []
        for i in range(2): o += [f"ds_read_b64_tr_b16 {F[i][2*h:2*h+2]}, {s.a_trad} offset:{1024*i+512*h}" for h in range(2)]
        o += [f"v_mov_b32 {sel1}, 1.0"] + early
        for i in range(2):
            o += [f"s_waitcnt lgkmcnt({2-2*i})", f"{M16} {D[i][0]}, {F[i]}, {s.B1r}, 0", f"v_readfirstlane_b32 {piv[i]}, {F[i][0]}", f"{M16} {D[i][1]}, {F[i]}, {s.B1i}, 0",
                  f"s_lshl_b32 {piv[i]}, {piv[i]}, 16", f"s_xor_b32 {piv[i]}, {piv[i]}, 0x80000000"]
        for i in range(2):
            for c in range(4): o += [f"v_dot2_f32_bf16 {d[2*c]}, {F[i][c]}, {s.sel0}, {piv[i]}", f"v_dot2_f32_bf16 {d[2*c+1]}, {F[i][c]}, {sel1}, {piv[i]}"]
            o += L(f"""v_pk_mul_f32 {tmp[0:2]}, {d[0:2]}, {d[0:2]}
            v_pk_add_f32 {tmp[2:4]}, {d[0:2]}, {d[2:4]}
            v_pk_fma_f32 {tmp[0:2]}, {d[2:4]}, {d[2:4]}, {tmp[0:2]}
            v_pk_add_f32 {tmp[2:4]}, {tmp[2:4]}, {d[4:6]}
            v_pk_fma_f32 {tmp[0:2]}, {d[4:6]}, {d[4:6]}, {tmp[0:2]}
            v_pk_add_f32 {tmp[2:4]}, {tmp[2:4]}, {d[6:8]}
            v_pk_fma_f32 {tmp[0:2]}, {d[6:8]}, {d[6:8]}, {tmp[0:2]}
            v_add_f32 {st[i]}, {tmp[2]}, {tmp[3]}
            v_add_f32 {st[2+i]}, {tmp[0]}, {tmp[1]}""")
        o += [f"v_readfirstlane_b32 {pv2[i]}, {D[i][0][0]}" for i in range(2)]
        o += L(f"""v_permlane32_swap_b32 {st[0]}, {st[1]}
        v_permlane32_swap_b32 {st[2]}, {st[3]}
        v_add_f32 {st[0]}, {st[0]}, {st[1]}
        v_add_f32 {st[2]}, {st[2]}, {st[3]}""")
        o += [f"v_mul_f32 {d[2*i]}, {pv2[i]}, {s.mn0}" for i in range(2)]
        o += [f"v_permlane16_swap_b32 {st[0]}, {st[2]}", f"v_add_f32 {st[0]}, {st[0]}, {st[2]}"]
        red = [f"v_add_f32_dpp {st[0]}, {st[0]}, {st[0]} row_ror:{k} row_mask:0xf bank_mask:0xf" for k in (8, 4, 2, 1)]
        for i in range(2):
            o += [f"v_pk_add_f32 {D[i][0][h:h+2]}, {D[i][0][h:h+2]}, {d[2*i:2*i+2]} op_sel_hi:[1,0] neg_lo:[0,1] neg_hi:[0,1]" for h in (0, 2)]
            o += [red[2*i]] + s.cmul(D[i][0], D[i][1], s.T512c, s.T512s, tmp, False) + [red[2*i+1]] + s.pack(lambda c: F[i][c], D[i][0], D[i][1])
        o.append(f"v_mov_b32 {st[1]}, {st[0]}")
        fin = L(f"""v_permlane16_swap_b32 {st[0]}, {st[1]}
        v_mul_f32 {st[0]}, {fl(1/512)}, {st[0]}
        v_mul_f32 {st[1]}, {fl(1/512)}, {st[1]}
        v_fma_f32 {st[1]}, -{st[0]}, {st[0]}, {st[1]}
        v_max_f32 {st[1]}, 0, {st[1]}
        v_cvt_pk_bf16_f32 {st[1]}, {st[1]}, {st[1]}
        v_lshlrev_b32 {st[1]}, 16, {st[1]}
        v_add_f32 {st[1]}, {fl(1e-5)}, {st[1]}
        v_cvt_pk_bf16_f32 {st[1]}, {st[1]}, {st[1]}
        v_lshlrev_b32 {st[1]}, 16, {st[1]}
        v_sqrt_f32 {st[1]}, {st[1]}
        v_cvt_pk_bf16_f32 {st[1]}, {st[1]}, {st[1]}
        v_lshlrev_b32 {st[1]}, 16, {st[1]}
        v_rcp_f32 {st[1]}, {st[1]}
        v_readlane_b32 {r01[0]}, {st[1]}, 0
        v_readlane_b32 {r01[2]}, {st[1]}, 32""")
        mf = cat([f"{M16} {D[i][0]}, {F[i]}, {s.FWr}, 0", f"{M16} {D[i][1]}, {F[i]}, {s.FWi}, 0", f"{M16} {Sp[i][0]}, {F[i]}, {s.SAr}, 0", f"{M16} {Sp[i][1]}, {F[i]}, {s.SAi}, 0"] for i in range(2))
        for k in range(8): o += [mf[k], fin[2*k], fin[2*k+1]]
        o += [f"v_mul_f32 {d[2*i]}, {r01[2*i]}, {s.sgn}" for i in range(2)]
        for i in range(2):
            o += [f"v_cndmask_b32 {D[i][x][0]}, {D[i][x][0]}, {Sp[i][x][0]}, {s.mq0}" for x in range(2)]
            for h in (0, 2): o += [f"v_pk_mul_f32 {D[i][0][h:h+2]}, {D[i][0][h:h+2]}, {r01[2*i:2*i+2]} op_sel_hi:[1,0]", f"v_pk_mul_f32 {D[i][1][h:h+2]}, {D[i][1][h:h+2]}, {d[2*i:2*i+2]} op_sel_hi:[1,0]"]
            o += s.pack(lambda c: P[2*c+i], D[i][0], D[i][1])
        o += [f"ds_write_b64 {s.a_wr[c]}, {P[2*c:2*c+2]}" for c in range(4)]
        s.vfree('aS0r aS0i aS1r aS1i ad atmp aP sel1'); s.sfree('r01 apw'); return o
    def a_part2(s):
        F = [s.aF0, s.aF1]; D = s.aD; st = s.ast; piv = s.apiv
        o = [f"ds_read_b128 {F[t]}, {s.a_rd} offset:{t*33*16}" for t in range(2)]
        o += L(f"""v_sub_f32 {st[2]}, {piv[0]}, {st[0]}
        v_sub_f32 {st[3]}, {piv[1]}, {st[0]}
        v_cvt_pk_bf16_f32 {st[2]}, {st[2]}, {st[3]}
        v_lshlrev_b32 {st[3]}, 16, {st[2]}
        v_and_b32 {st[2]}, 0xffff0000, {st[2]}
        s_lshl_b32 {s.t0}, {s.p}, 7
        s_lshl2_add_u32 {s.xo2}, {s.w}, {s.t0}""")
        o.append(f"s_mov_b64 exec, 2\n v_mov_b32 {st[1]}, {st[3]}\n s_mov_b32 exec_lo, 0\n s_mov_b32 exec_hi, 2\n v_mov_b32 {st[1]}, {st[2]}\n s_mov_b64 exec, -1")
        for t in range(2): o += [f"s_waitcnt lgkmcnt({1-t})", f"{M16} {D[t][0]}, {F[t]}, {s.A3r}, 0", f"{M16} {D[t][1]}, {F[t]}, {s.A3i}, 0"]
        wst = ["@wait W", f"ds_write_b128 {s.wso}, {s.wraw[0:4]}", f"ds_write_b128 {s.wso2}, {s.wraw[4:8]}"]
        pk = cat(s.pack(lambda c: F[t][c], D[t][0], D[t][1]) + [f"ds_write_b128 {(s.a_st0, s.a_st1)[t]}, {F[t]}"] for t in range(2))
        Q = [D[0][0], D[0][1], D[1][0], D[1][1]]
        rd = [f"ds_read_b128 {Q[z]}, {s.xord} offset:{2*XOS*z}" for z in range(4)]
        sts = [f"s_mov_b32 exec_lo, 3\n s_mov_b32 exec_hi, 3\n buffer_store_dword {st[1]}, {s.rms}, {s.sws}, {s.xo2} offen sc1 ;@x1\n s_mov_b64 exec, -1"]
        sts += [(f"s_add_u32 {s.x1o}, {s.x1o}, 4096\n " if z else "") + f"buffer_store_dwordx4 {Q[z]}, {s.xost}, {s.sws}, {s.x1o} offen sc1 ;@x1" for z in range(4)]
        return o, wst, pk, rd, sts
    def g1_rd_setup(s):
        wa = s.v('g1wa', 6); xa = s.v('g1xa', 4); s.ss('tau0 dtau'); s.a('ones', 4); s.a('xf', 32); s.a('wf', 24); s.vs('xw xr_')
        sc = L(f"""s_and_b32 {s.t0}, {s.w}, 1
        s_mul_i32 {s.tau0}, {s.t0}, 3
        s_and_b32 {s.t1}, {s.w}, 2
        s_add_u32 {s.tau0}, {s.tau0}, {s.t1}
        s_sub_u32 {s.dtau}, 1, {s.t1}
        v_mov_b32 {s.xw}, 0x3f803f80""") + [f"v_accvgpr_write_b32 {s.ones[c]}, {s.xw}" for c in range(4)] + L(f"""s_lshl_b32 {s.t0}, {s.w}, 10
        s_add_u32 {s.t0}, {s.t0}, {L_XCH}
        v_add_u32 {s.xw}, {s.t0}, {s.l16}
        s_xor_b32 {s.t0}, {s.w}, 2
        s_lshl_b32 {s.t0}, {s.t0}, 10
        s_add_u32 {s.t0}, {s.t0}, {L_XCH}
        v_add_u32 {s.xr_}, {s.t0}, {s.l16}""")
        fix = [f"s_mov_b32 {s.t0}, {s.tau0}"]
        for i in range(3):
            fix += L(f"""s_and_b32 {s.t1}, {s.t0}, 1
            s_lshl_b32 {s.t1}, {s.t1}, 5
            v_xor_b32 {wa[i]}, {s.t1}, {s.wa0}
            s_lshr_b32 {s.t1}, {s.t0}, 1
            v_lshl_add_u32 {wa[i]}, {s.t1}, 6, {wa[i]}
            v_add_u32 {wa[3+i]}, 65536, {wa[i]}
            s_add_u32 {s.t0}, {s.t0}, {s.dtau}""")
        fix += L(f"""s_and_b32 {s.t0}, {s.m0b}, 16384
        v_add_u32 {xa[0]}, {s.t0}, {s.xa0}
        v_xor_b32 {xa[1]}, 64, {xa[0]}
        v_add_u32 {xa[2]}, 65536, {xa[0]}
        v_add_u32 {xa[3]}, 65536, {xa[1]}""")
        return sc, fix
    def g1_reads(s, step):
        st = step // 2; ks = step % 2; sl = st % 4; hi = sl // 2; base = (sl % 2) * 32768; b = step % 2
        xr = [f"ds_read_b128 {s.xf[16*b+4*a:16*b+4*a+4]}, {s.g1xa[2*hi+ks]} offset:{base + (a//2)*8192 + (a%2)*2048}" for a in range(4)]
        wr = [[f"ds_read_b64_tr_b16 {s.wf[12*b+4*i+2*h:12*b+4*i+2*h+2]}, {s.g1wa[3*hi+i]} offset:{base + (2*ks+h)*8192}" for h in range(2)] for i in range(3)]
        return wr[0] + xr + wr[1] + wr[2]
    def g1_mfmas(s, step):
        b = step % 2; o = []; z = lambda acc: acc if step else 0
        for i in range(3):
            wf = s.wf[12*b+4*i:12*b+4*i+4]
            if i < 2: acc = s.accc[4*i:4*i+4]; o.append(f"{M16} {acc}, {wf}, {s.ones}, {z(acc)}")
            for a in range(4): acc = s.acc1[16*i+4*a:16*i+4*a+4]; o.append(f"{M16} {acc}, {wf}, {s.xf[16*b+4*a:16*b+4*a+4]}, {z(acc)}")
        return o
    def g1_step(s, step, P):
        A = s.A; A(P['head'][step])
        nx = step // 2 + 1
        A("@wait lgkm=0 " + (f"st{nx} " if step % 2 and nx < 8 else "") + P['also'][step])
        if step % 2 or step in P['bar']: A("s_barrier")
        if step in (4, 8): s.stamp(f's{step}')
        s.stamp(f'.g{step}')
        r = s.g1_reads(step + 1) if step < 15 else []; e = glue(P['extra'][step]); fill = list(P['first'][step]); k = 0
        while r or e:
            fill.append(e.pop(0) if e and (k % 3 == 2 or not r) else r.pop(0)); k += 1
        fill += P['last'][step]
        mf = s.g1_mfmas(step)
        for i, m in enumerate(mf):
            A(m); left = len(mf) - i; k = -(-len(fill) // left) if len(fill) > left else 1
            A(fill[:k]); fill = fill[k:]
    def h_offsets(s):
        so = s.sg('hst', 3, 1)
        o = L(f"""s_lshr_b32 {s.t0}, {s.w}, 1
        s_lshl1_add_u32 {s.t0}, {s.rb1}, {s.t0}
        s_lshl_b32 {s.mlo}, {s.t0}, 10
        s_mul_i32 {s.t0}, {s.t0}, {86*2048}
        s_add_u32 {s.t0}, {s.t0}, {WS_H}
        s_mul_i32 {s.t1}, {s.fs1}, 6
        s_add_u32 {s.t1}, {s.t1}, {s.tau0}""")
        for i in range(3):
            o += L(f"s_lshl_b32 {so[i]}, {s.t1}, 11\n s_add_u32 {so[i]}, {so[i]}, {s.t0}\n s_cmp_lt_u32 {s.t1}, 86\n s_cselect_b32 {so[i]}, {so[i]}, {WS_SIZE}")
            if i < 2: o.append(f"s_add_u32 {s.t1}, {s.t1}, {s.dtau}")
        return o
    def g1_epilogue(s):
        mm = s.g1m; P = s.v('g1P', 24); o = []
        for n, (i, M) in enumerate(((0, 0), (0, 1), (1, 0), (1, 1), (2, 0), (2, 1))):
            if n == 2: o += ["s_waitcnt lgkmcnt(0)", "s_barrier", f"ds_read_b128 {s.accc[8:12]}, {s.xr_}"]
            if n == 4: o.append("s_waitcnt lgkmcnt(0)")
            Q = P[4*n:4*n+4]; acc = [s.acc1[16*i+4*(2*M+e):16*i+4*(2*M+e)+4] for e in range(2)]
            for e in range(2):
                mo = 2*M + 4*e
                o += [f"v_pk_fma_f32 {acc[e][h:h+2]}, {s.accc[4*i+h:4*i+h+2]}, {mm[mo:mo+2]}, {acc[e][h:h+2]} op_sel_hi:[1,0,1]" for h in (0, 2)]
            o += [f"v_cvt_pk_bf16_f32 {Q[2*e+h]}, {acc[e][2*h]}, {acc[e][2*h+1]}" for e in range(2) for h in range(2)]
            o += [f"v_pk_max_i16 {Q[c]}, {Q[c]}, 0" for c in (0, 2, 1, 3)]
            o += [f"v_permlane16_swap_b32 {Q[0]}, {Q[2]}", f"v_permlane16_swap_b32 {Q[1]}, {Q[3]}", f"buffer_store_dwordx4 {Q}, {s.hla}, {s.sws}, {s.hst[i]} offen offset:{1024*M} sc1 ;@h"]
        return o
    def b_setup(s):
        s.v('b_lin'); s.v('b_wa', 2); s.v('IVr', 4); s.v('IVi', 4); s.ss('go y1o')
        g = L(f"""s_lshl_b32 {s.go}, {s.w}, 9
        s_add_u32 {s.go}, {s.go}, {s.xcd}
        s_lshl_b32 {s.go}, {s.go}, 11
        s_lshl_b32 {s.t0}, {s.j}, 6
        v_xor_b32 {s.b_ga}, {s.t0}, {s.b_ga}""")
        o = L(f"""s_add_u32 {s.t0}, {s.ab[3]}, {L_UO}
        v_add_u32 {s.b_lin}, {s.t0}, {s.l16}
        s_lshl_b32 {s.y1o}, s2, 13
        s_add_u32 {s.y1o}, {s.y1o}, {s.ab[3]}
        s_add_u32 {s.y1o}, {s.y1o}, {WS_Y1}
        s_lshl_b32 {s.t0}, {s.w}, 3
        s_lshl2_add_u32 {s.t1}, {s.w}, 32
        v_xor_b32 {s.b_wa[0]}, {s.t1}, {s.b_ua}
        v_xor_b32 {s.b_ua}, {s.t0}, {s.b_ua}
        v_xor_b32 {s.b_uo}, {s.t0}, {s.b_uo}
        v_xor_b32 {s.b_wa[1]}, 16, {s.b_wa[0]}
        s_and_b32 {s.t0}, {s.j}, {7*SWZ}
        s_lshl_b32 {s.t0}, {s.t0}, 7
        v_xor_b32 {s.b_st}, {s.t0}, {s.b_st}""")
        o += cat([f"v_xor_b32 {s.IVr[c]}, 0x80000000, {s.FWr[c]}", f"v_xor_b32 {s.IVi[c]}, 0x8000, {s.FWi[c]}"] for c in range(4))
        return g, o
    def b_gather(s):
        return [f"s_lshl1_add_u32 m0, {s.ab[3]}, {L_U}"] + \
               [(f"s_add_u32 {s.go}, {s.go}, {16*16384-1024}\n " if z else "") + f"buffer_load_dwordx4 {s.b_ga}, {s.sws}, {s.go} offen offset:{1024*z} sc1 lds ;@gx" for z in range(4)]
    def b_parts(s):
        F = s.v('bF', 8); W = s.v('bW', 8); D = [[s.v(f'bD{i}{x}', 4) for x in 'ri'] for i in range(2)]; tmp = s.v('btmp', 4); X = s.v('bX', 16); O = W
        U = [F[0:4], F[4:8]]
        rd = [f"ds_read_b64 {F[2*pos:2*pos+2]}, {s.b_ua} offset:{1024*c}" for pos, c in enumerate((0, 2, 1, 3))]
        rd += [f"ds_read2st64_b32 {W[4*x+2*h:4*x+2*h+2]}, {s.b_wa[x]} offset0:{8*h} offset1:{8*h+4}" for x in range(2) for h in range(2)]
        sw = [f"v_swap_b32 {F[1]}, {F[4]}", f"v_swap_b32 {F[3]}, {F[6]}"]
        u0 = [f"v_lshlrev_b32 {X[k]}, 16, {W[k]}" for k in range(8)]; u1 = [f"v_and_b32 {X[8+k]}, 0xffff0000, {W[k]}" for k in range(8)]
        stages = [(True, s.FWr, s.FWi), (False, s.FWr, s.FWi), (True, s.IVr, s.IVi), (False, s.IVr, s.IVi)]
        def mm(k, i):
            dA, cr, ci = stages[k]; return [f"{M16} {D[i][x]}, {U[i]}, {cc}, 0" if dA else f"{M16} {D[i][x]}, {cc}, {U[i]}, 0" for x, cc in enumerate((cr, ci))]
        def vv(k, i):
            t = [(s.T256c, s.T256s, False), (X[8*i:8*i+4], X[8*i+4:8*i+8], True), (s.T256c, s.T256s, True)]
            return (s.cmul(D[i][0], D[i][1], t[k][0], t[k][1], tmp, t[k][2]) if k < 3 else []) + s.pack(lambda c: U[i][c] if k < 3 else O[2*c+i], D[i][0], D[i][1])
        o = u0[:2] + mm(0, 0) + mm(0, 1) + u0[2:8] + vv(0, 0) + u1[:2] + mm(1, 0) + u1[2:4] + vv(0, 1) + u1[4:6] + mm(1, 1) + u1[6:8] + vv(1, 0)
        for k in (2, 3): o += mm(k, 0) + vv(k-1, 1) + mm(k, 1) + vv(k, 0)
        o += vv(3, 1) + [f"ds_write_b64 {s.b_uo}, {O[2*c:2*c+2]} offset:{512*c}" for c in range(4)]
        rd2 = [f"ds_read_b128 {F[4*t:4*t+4]}, {s.b_lin} offset:{1024*t}" for t in range(2)]
        st = [f"buffer_store_dwordx4 {F[4*t:4*t+4]}, {s.b_st}, {s.sws}, {s.y1o} offen offset:{1024*t} sc1 ;@y1" for t in range(2)]
        return rd, sw, o, rd2, st
    def w2_setup(s):
        vo = s.v('g2vo', 3); so = s.hso; s.sg('sw2o'); s.vs('pfo pfd')
        o = [f"v_add_u32 {vo[z]}, {(z+1)*(8192-1024)}, {s.vo2}" for z in range(3)]
        o += L(f"s_mul_i32 {s.sw2o}, {s.w}, {352*1024}\n s_lshl_b32 {s.t0}, {s.fs}, 7\n s_add_u32 {s.sw2o}, {s.sw2o}, {s.t0}")
        if opt('rot2', 'x') == '0': o += [f"s_mov_b32 {so[i]}, {4096*i}" for i in range(11)]
        else:
            o.append(f"s_lshl_b32 {so[0]}, {s.xcd}, 12")
            for i in range(1, 11):
                o.append(f"s_add_u32 {so[i]}, {so[i-1]}, 4096")
                if i >= 4: o += [f"s_cmp_eq_u32 {so[i]}, {11*4096}", f"s_cselect_b32 {so[i]}, 0, {so[i]}"]
        pf = L(f"""s_mul_i32 {s.t0}, {s.j}, 43
        s_mul_i32 {s.t1}, {s.w}, 11
        s_add_u32 {s.t0}, {s.t0}, {s.t1}
        v_min_u32 {s.pfo}, 10, {s.n}
        v_add_lshl_u32 {s.pfo}, {s.t0}, {s.pfo}, 10""")
        return o, pf
    def pf3(s): return [f"s_mov_b64 exec, 0xffff\n buffer_load_dword {s.pfd}, {s.pfo}, {s.sw2}, 0 offen offset:384 ;@pf\n s_mov_b64 exec, -1"]
    def w2dma(s, hb):
        pos = hb % 8
        return [f"s_add_u32 m0, {s.m0b}, {(pos//2)*32768 + (pos%2)*4096}", f"s_lshl3_add_u32 {s.t2}, {s.hso[hb]}, {s.sw2o}"] + \
               [f"buffer_load_dwordx4 {s.g2vo[z-1] if z else s.vo2}, {s.sw2}, {s.t2} offen offset:{1024*z} lds ;@wb{hb}" for z in range(4)]
    def w2read(s, hb):
        pos = hb % 8; slot = pos // 2; dst = s.w2f[16*hb:16*hb+16]
        return [f"ds_read_b64_tr_b16 {dst[8*ks+4*nt+2*i:8*ks+4*nt+2*i+2]}, {s.g2ra[2*(slot//2)+nt]} offset:{(slot%2)*32768 + (pos%2)*4096 + ks*2048 + i*512}"
                for ks in range(2) for nt in range(2) for i in range(2)]
    def g2_setup(s):
        ra = s.v('g2ra', 4); s.v('s_ld'); s.v('rv', 4); s.v('rn', 4); s.sg('rowo', 2); r = s.sg('sh', 4, 4); m = s.v('_m'); s.v('CGr', 4); s.v('CGi', 4); s.sg('gyo', 2)
        first = L(f"v_add_u32 {ra[0]}, {s.m0b}, {s.ra2}\n v_xor_b32 {ra[1]}, 64, {ra[0]}\n v_add_u32 {ra[2]}, 65536, {ra[0]}\n v_add_u32 {ra[3]}, 65536, {ra[1]}")
        o = L(f"""s_lshl_b32 {s.t0}, {s.w}, 14
        s_lshl_b32 {s.t1}, {s.p}, 5
        v_xor_b32 {s.c_ga}, {s.t1}, {s.c_ga}
        s_add_u32 {s.gyo[0]}, {s.t0}, {WS_Y1}
        s_add_u32 {s.gyo[1]}, {s.gyo[0]}, {8192-1024}
        s_lshl_b32 {s.t0}, {s.w}, 8
        v_add_u32 {s.c_ua}, {s.t0}, {s.c_ua}
        v_add_u32 {s.c_ew}, {s.ab[1]}, {s.c_ew}""") + [f"v_add_u32 {s.c_er[c]}, {s.ab[0]}, {s.c_er[c]}" for c in range(4)]
        o += L(f"v_lshlrev_b32 {m}, 30, {s.q}\n v_and_b32 {m}, 0x80000000, {m}")
        o += cat([f"v_xor_b32 {s.CGr[c]}, {s.IVr[c]}, {m}", f"v_xor_b32 {s.CGi[c]}, {s.IVi[c]}, {m}"] for c in range(4))
        o += L(f"""s_add_u32 {s.xo[0]}, {s.xo[0]}, {WS_S}
        s_add_u32 {s.xo[1]}, {s.xo[0]}, 262144
        s_mul_i32 {s.t0}, {s.w}, {RED_S}
        v_add_u32 {s.g2rw}, {s.t0}, {s.g2rw}
        s_mul_i32 {s.t0}, {s.w}, {8*272}
        v_add_u32 {s.g2rr}, {s.t0}, {s.g2rr}
        s_lshl_b32 {s.t0}, {s.rb}, 10
        s_and_b32 {s.t1}, {s.w}, 1
        s_lshl4_add_u32 {s.t0}, {s.t1}, {s.t0}
        s_lshr_b32 {s.t1}, {s.w}, 1
        s_lshl2_add_u32 {s.t0}, {s.t1}, {s.t0}
        s_add_u32 {s.t0}, {s.t0}, {WS_R}
        v_lshrrev_b32 {m}, 3, {s.l}
        v_lshl_add_u32 {s.rn[0]}, {m}, 7, {s.t0}
        v_and_b32 {m}, {7*SWZ}, {m}
        v_xor_b32 {m}, {s.fs}, {m}
        v_lshl_add_u32 {s.s_ld}, {m}, 7, {s.g2st}
        s_lshl_b32 {s.t0}, {s.fs}, 7
        s_and_b32 {s.t0}, {s.t0}, {896*SWZ}
        v_xor_b32 {s.s_st}, {s.t0}, {s.s_st}
        s_lshl_b32 {s.t0}, {s.w}, 5
        s_add_u32 {s.t0}, {s.t0}, {s.rb}
        s_lshl_b32 {s.t0}, {s.t0}, 6
        s_add_u32 {s.t0}, {s.t0}, {s.fs}
        s_lshl_b32 {s.rowo[0]}, {s.t0}, 7
        s_add_u32 {s.rowo[1]}, {s.rowo[0]}, {4*262144}
        s_mul_i32 {s.t0}, {s.rb}, 86
        s_mul_i32 {s.t1}, {s.w}, 22
        s_add_u32 {s.t0}, {s.t0}, {s.t1}
        s_lshl_b32 {s.t0}, {s.t0}, 11
        s_add_u32 {s.t0}, {s.t0}, {WS_H}
        s_add_u32 {r[0]}, {s.sws[0]}, {s.t0}
        s_addc_u32 {r[1]}, {s.sws[1]}, 0
        s_cmp_eq_u32 {s.w}, 3
        s_cselect_b32 {r[2]}, 20, 22
        s_lshl_b32 {r[2]}, {r[2]}, 11
        s_mov_b32 {r[3]}, 0x20000""")
        s.vfree('_m'); return first, o
    def hload(s, idx):
        mt, i = divmod(idx, 22); sl = idx % s.NH
        return f"buffer_load_dwordx4 {s.hf[4*sl:4*sl+4]}, {s.hla}, {s.sh}, {s.hso[i//2]} offen offset:{(i%2)*2048 + mt*1024} sc1 ;@h{idx}"
    def red_write(s, mt): return [f"ds_write_b128 {s.g2rw}, {s.acc2[32*mt+4*k:32*mt+4*k+4]} offset:{mt*4*RED_S + 32*k}" for k in range(8)]
    def red_read(s, mt): return [f"ds_read_b128 {s.acc2[32*mt+4*k:32*mt+4*k+4]}, {s.g2rr} offset:{mt*4*RED_S + (k//2)*RED_S + (k%2)*16}" for k in range(8)]
    def unpack(s, dst, src): return cat([f"v_lshlrev_b32 {dst[2*c]}, 16, {src[c]}", f"v_and_b32 {dst[2*c+1]}, 0xffff0000, {src[c]}"] for c in range(src.n))
    def finish(s, mt, pk):
        a = s.acc2[32*mt:32*mt+32]; xf = s.fx[8*mt:8*mt+8]; sr = s.fs_[8*mt:8*mt+8]
        def op(name, d, x, y, z=None, bc=False):
            if pk: return [f"v_pk_{name}_f32 {d[h:h+2]}, {x[h:h+2]}, {y if bc else y[h:h+2]}" + (f", {z[h:h+2]}" if z else "") + (" op_sel_hi:[1,0]" if bc else "") for h in range(0, 8, 2)]
            yy = lambda c: (y if isinstance(y, str) else y[0]) if bc else y[c]
            return [f"v_{name}_f32 {d[c]}, {yy(c)}, {x[c]}" + (f", {z[c]}" if z else "") for c in range(8)]
        o, e = a[0:8], a[8:16]
        p1 = op('add', o, o, e) + op('add', a[16:24], a[16:24], a[24:32]) + op('add', o, o, a[16:24]) + op('mul', e, o, s.rn[2*mt:2*mt+2], bc=True)
        p1 += [f"v_exp_f32 {e[c]}, {e[c]}" for c in range(8)]
        mid = op('mul', o, o, sr)
        p2 = op('add', e, e, '1.0', bc=True) + [f"v_rcp_f32 {e[c]}, {e[c]}" for c in range(8)]
        p3 = op('fma', o, o, e, xf) + [f"v_cvt_pk_bf16_f32 {a[16+c]}, {o[2*c]}, {o[2*c+1]}" for c in range(4)]
        p3.append(f"buffer_store_dwordx4 {a[16:20]}, {s.g2st}, {s.sout}, {s.rowo[mt]} offen sc1 ;@out")
        return p1, mid, p2, p3
    def c_gather(s):
        return [f"s_add_u32 m0, {s.ab[3]}, {L_U}"] + [f"buffer_load_dwordx4 {s.c_ga}, {s.sws}, {s.gyo[t]} offen offset:{1024*t} sc1 lds ;@gy" for t in range(2)]
    def c_parts(s):
        F = s.v('cF', 8); D = [[s.v(f'cD{i}{x}', 4) for x in 'ri'] for i in range(2)]; Sp = [[s.v(f'cS{i}{x}', 4) for x in 'ri'] for i in range(2)]; tmp = s.v('ctmp', 4)
        U = [F[0:4], F[4:8]]; sw = ["s_waitcnt lgkmcnt(0)", f"v_swap_b32 {F[1]}, {F[4]}", f"v_swap_b32 {F[3]}, {F[6]}"]
        o = [f"ds_read_b64 {F[2*pos:2*pos+2]}, {s.c_ua} offset:{1024*c}" for pos, c in enumerate((0, 2, 1, 3))] + ['@1'] + sw
        o += cat([f"{M16} {D[i][0]}, {s.C3r}, {U[i]}, 0", f"{M16} {D[i][1]}, {s.C3i}, {U[i]}, 0"] for i in range(2)) + ['@2']
        o += cat(s.pack(lambda c: U[i][c], D[i][0], D[i][1]) + [f"ds_write_b128 {s.c_ew}, {U[i]} offset:{16*i}"] for i in range(2))
        o += ['@3', "s_waitcnt lgkmcnt(0)", "s_barrier"]
        o += [f"ds_read_b64 {F[2*pos:2*pos+2]}, {s.c_er[c]}" for pos, c in enumerate((0, 2, 1, 3))] + ['@4'] + sw
        o += cat([f"{M16} {D[i][0]}, {U[i]}, {s.CGr}, 0", f"{M16} {D[i][1]}, {U[i]}, {s.CGi}, 0", f"{M16} {Sp[i][0]}, {U[i]}, {s.SCr}, 0", f"{M16} {Sp[i][1]}, {U[i]}, {s.SCi}, 0"] for i in range(2)) + ['@5']
        for i in range(2):
            o += [f"v_cndmask_b32 {D[i][x][0]}, {D[i][x][0]}, {Sp[i][x][0]}, {s.mq0}" for x in range(2)]
            if i: o += [f"{M16} {D[0][0]}, {U[0]}, {s.C1x}, 0", f"{M16} {D[0][1]}, {U[0]}, {s.C1y}, 0"]
            o += s.cmul(D[i][0], D[i][1], s.T512c, s.T512s, tmp, True) + s.pack(lambda c: U[i][c], D[i][0], D[i][1])
        Q = [Sp[0][0], Sp[1][0]]
        cv = lambda i: [f"v_cvt_pk_bf16_f32 {Q[i][2*y+h]}, {D[i][y][2*h]}, {D[i][y][2*h+1]}" for y in range(2) for h in range(2)]
        stt = lambda i: [f"v_permlane16_swap_b32 {Q[i][0]}, {Q[i][2]}", f"v_permlane16_swap_b32 {Q[i][1]}, {Q[i][3]}", f"buffer_store_dwordx4 {Q[i]}, {s.s_st}, {s.sws}, {s.xo[i]} offen sc1 ;@s"]
        c0 = cv(0)
        o += c0[:2] + [f"{M16} {D[1][0]}, {U[1]}, {s.C1x}, 0", f"{M16} {D[1][1]}, {U[1]}, {s.C1y}, 0"] + c0[2:] + ['@6'] + stt(0) + cv(1) + stt(1)
        return o
    def build(s):
        A = s.A
        s.entry(); nso = opt('nso', 3); A(s.so_calc(0, nso))
        A(f"""s_waitcnt lgkmcnt(0)
        buffer_load_dwordx4 {s.l16}, {s.sx}, {s.xo[0]} offen lds ;@xr
        buffer_load_dwordx4 {s.l16}, {s.sx}, {s.xo[1]} offen offset:1024 lds ;@xr
        s_mov_b64 {s.sx1[0:2]}, {s.sx[0:2]}
        s_cmp_eq_u32 {s.fs1}, 15
        s_cselect_b64 {s.sw1[0:2]}, {s.sw2[0:2]}, {s.sw1[0:2]} ;@K""")
        s.stamp('karg'); s.S.free = [0, 1] + s.S.free
        tr = s.tables(); W = s.v('wraw', 8); s.v('vtag'); s.ss('xo2 mlo')
        halves = cat(s.g1_halves(st) for st in range(8)); npre = opt('npre', 6)
        asc = s.a_scalars()
        wl = [f"buffer_load_dwordx4 {W[0:4]}, {s.g1vw[3]}, {s.swr}, {s.wl} offen ;@W", f"buffer_load_dwordx4 {W[4:8]}, {s.g1vw[3]}, {s.swi}, {s.wl} offen ;@W"]
        q = glue(cat(halves[:npre])); wpos = opt('wpos', 7); q = q[:wpos] + wl + q[wpos:]
        n0 = opt('n0', 4); assert n0 <= (wpos if opt('vwc', 0) else 4); A(q[:n0]); q = q[n0:]
        A(s.fwarm()); A(f"s_mov_b32 {s.t0}, {EP}\n buffer_load_dword {s.vtag}, off, {s.sws}, {s.t0} sc1 ;@tag")
        rsc, rfix = s.g1_rd_setup()
        su = asc + s.const_A3() + s.so_calc(nso, 8) + rsc + s.flags_setup(); k = min(opt('sb', 60), len(su)); assert k >= len(asc)
        while k < len(su) and su[k].startswith('s_cselect'): k += 1
        A(su[:k]); su = su[k:]
        A("@wait tb\n s_barrier"); s.stamp('tb')
        A(tr[:12])
        A(f"""s_waitcnt lgkmcnt(8)
        v_add_u32 {s.a_trad}, {s.ab[3]}, {s.a_trad}
""")
        if not opt('vwc', 0):
            A(f"s_cmp_eq_u32 {s.fs1}, 15\n s_cselect_b64 {s.mq0}, -1, 0"); A([f"v_cndmask_b32 {s.g1vw[z]}, {s.g1vw[z]}, {s.l16}, {s.mq0}" for z in range(3)]); A(f"s_mov_b64 {s.mq0}, 0xffff")
        n1 = opt('n1', 5); assert n0 + n1 >= wpos + 2
        A(sprinkle(tr[12:] + su, q[:n1], 0, opt('e0', 8))); q = q[n1:]
        s.sfree('swr swi wl'); s.vfree('cpf _tad')
        RL = opt('rl', 0)
        A("@wait xr lgkm=0"); s.stamp('xin')
        na = opt('na', 6)
        A(sprinkle(s.a_part1(s.a_fix()), q[:na], opt('f1a', 50), opt('e1', 18))); q = q[na:]
        assert 'st3' not in A.vmlog
        A(rfix[:opt('rf', 12)]); A("s_waitcnt lgkmcnt(0)\n s_barrier"); s.stamp('a1')
        rf2 = rfix[opt('rf', 12):]
        p2, wst_, pk, xrd, xst = s.a_part2()
        if RL & 1: rf2 = rf2 + s.reloc_prod(s.xost, s.p, 0xff000000, 0xff000000, f"s_bitcmp0_b32 {s.w}, 0")
        A(p2[:2] + rf2); A(sprinkle(p2[2:], q[:opt('na2', 3)], 4, 3)); q = q[opt('na2', 3):]
        P = dict(head={t: [] for t in range(16)}, also={t: '' for t in range(16)}, extra={t: [] for t in range(16)}, first={t: [] for t in range(16)}, last={t: [] for t in range(16)}, bar=set())
        head, also, extra = P['head'], P['also'], P['extra']
        xin = opt('xin', 0)
        if xin == 0: A(wst_ + pk + xrd + q + xst[:1] + cat([f"s_waitcnt lgkmcnt({3-z})", xst[1+z]] for z in range(4)))
        elif xin == 1: A(wst_ + pk + xrd + q); extra[0] += xst
        else: A(pk + q); P['last'][0] += wst_ + xrd; extra[1] += xst
        s.vfree('aF0 aF1 a_trad sel0 a_wr B1r B1i SAr SAi A3r A3i mn0 sgn a_rd a_st0 a_st1 wa0 xa0'); s.sfree('apiv')
        s.v('acc1', 48); s.v('accc', 12); mm = s.v('g1m', 8)
        s.stamp('a2')
        f1 = opt('f1', 4); p1 = opt('p1', 10); c1s = opt('c1', 13); pf3 = opt('pf3', 6)
        gsc, bsu = s.b_setup(); wsu, pfs = s.w2_setup()
        if RL & 1: gsc += s.reloc_cons(s.b_ga, s.j, 1, 2)
        if RL & 2: wsu += s.reloc_prod(s.b_st, s.j, 0xff000000, 0)
        s.v('hla'); wsu += [f"v_mov_b32 {s.hla}, {s.l16}"]
        if RL & 8: wsu += L(f"s_lshr_b32 {s.t1}, {s.w}, 1\n s_lshl1_add_u32 {s.t1}, {s.rb1}, {s.t1}") + s.reloc_prod(s.hla, s.t1, 0xff000000, 0)
        s.v('_keep')
        wst = [int(x) for x in opt('wst', '11,12,14,15').split(',') if x]
        head[f1] += s.tag_fix(); head[opt('hA', 3)] += pfs + gsc + s.h_offsets(); head[opt('hB', 7)] += wsu
        assert opt('hA', 3) <= min(c1s, pf3 or 99, opt('hB', 7)) and opt('hB', 7) <= min(wst + [15])
        t = opt('o3', 0)
        for h in range(npre, 16):
            t = max(t, 2*(h//2 - 4) + 1)
            if t == c1s and opt('gfirst', 1): t += 1
            assert t <= 2*(h//2) - 2, (h, t)
            extra[t] += halves[h]; t += 1
        also[f1] += ' x1'; extra[f1] = s.flag('f1', s.fo) + extra[f1]
        if pf3: extra[pf3] += s.pf3()
        i1, c1 = s.poll('p1', s.pa, 0)
        head[c1s] += c1; extra[c1s] = [f"buffer_load_dwordx4 {mm[0:4]}, {s.mla}, {s.sws}, {s.mlo} offen sc1 ;@m"] + s.b_gather() + extra[c1s]; P['bar'].add(c1s); P['bar'].add(f1)
        extra[p1] = i1 + extra[p1]
        for hb, st in enumerate(wst):
            assert st >= 9 + 2*(hb//2); extra[st] += s.w2dma(hb)
        P['last'][15] += [''] * max(0, 9 - len(glue(extra[15]))) + [f"ds_write_b128 {s.xw}, {s.accc[0:4]}", "@wait m", f"v_mov_b32 {mm[4]}, {mm[1]}", f"v_mov_b32 {mm[6]}, {mm[3]}"]
        if opt('hC', 15) == 15: P['first'][15] += bsu
        else: head[opt('hC', 15)] += bsu
        A("@wait st0\n s_barrier"); s.stamp('in0'); A(s.g1_reads(0))
        for step in range(16):
            s.g1_step(step, P)
            if step == 1: s.vfree('aD0r aD0i aD1r aD1i ast wraw wso wso2 xord xost rms'); s.sfree('x1o xo2')
        s.stamp('g1main')
        brd, bsw, bmain, brd2, bst = s.b_parts()
        nb = len(wst); e0 = opt('ne', 0); nbb = opt('nbb', 2); nd = opt('nd', 1); assert nb + e0 + nbb <= 8 and nb + e0 >= 3
        epi = s.g1_epilogue()
        if opt('gxe', 1):
            k = epi.index('s_barrier'); epi[k-1] = "@wait gx lgkm=0"; epi[k+2:k+2] = brd
        A(sprinkle(epi, glue(cat(s.w2dma(h) for h in range(nb, nb + e0))), opt('ef', 2), opt('ee', 15)))
        s.stamp('g1epi')
        if not opt('gxe', 1): A("@wait gx\n s_barrier"); A(brd); A("s_waitcnt lgkmcnt(0)")
        A(bsw); A(sprinkle(bmain, glue(cat(s.w2dma(h) for h in range(nb + e0, nb + e0 + nbb))), opt('bf', 40), opt('e2', 16)))
        s.vfree('g1m g1P acc1 accc g1wa g1xa g1vx g1vw xw xr_ pfo pfd mla'); s.afree('ones xf wf'); s.sfree('hst sox sow tau0 dtau sx1 sw1 go mlo')
        hb_ = opt('hearly', 1)
        A(("@wait h lgkm=0" if hb_ == 1 else "s_waitcnt lgkmcnt(0)") + "\n s_barrier"); A(brd2)
        if hb_ == 1: A(s.flag('f2', s.fo2))
        s.v('acc2', 64); s.a('w2f', 176); NH = s.NH = opt('nh', 16); s.a('hf', 4*NH)
        X = s.v('fX', 8); S = s.v('fS', 8); pv2 = s.v('pv2')
        g0, g1 = s.g2_setup(); A(g0)
        if RL & 2: g1 += s.reloc_cons(s.c_ga, s.p, 2, 1)
        if RL & 4: g1 += s.reloc_prod(s.s_st, s.fs, 0xf000, 0xf000) + s.reloc_cons(s.s_ld, s.fs, 0, 3)
        if RL & 8: g1 += [f"v_mov_b32 {s.hla}, {s.l16}"] + s.reloc_prod(s.hla, s.rb, 0xff000000, 0) + [f"s_mov_b32 {s.sh[2]}, {BIG + 65536}"]
        A("s_waitcnt lgkmcnt(0)"); A(bst); s.stamp('b')
        s.vfree('bD0r bD0i bD1r bD1i btmp bX bW b_ua b_wa b_uo T256c T256s b_lin b_ga FWr FWi IVr IVi ra2'); s.sfree('y1o')
        i3, c3 = s.poll('p3', s.pa, s.k4096); i4, c4 = s.poll('p4', s.pg, s.k4096); pv = s.pv; s.pv = pv2; i2, c2 = s.poll('p2', s.pg2, 0); s.pv = pv
        n1_ = nb + e0 + nbb; rest = list(range(n1_, 11))
        cc = [f"@wait wb{nb-1}"] + sprinkle(g1 + s.const_C3(), cat(s.w2read(h) for h in range(nb)), 0, 2)
        k = min(opt('ca', 100), len(cc))
        while k < len(cc) and cc[k].startswith(('s_cselect', 's_addc')): k += 1
        assert n1_ + nd <= 8
        A(cat(s.w2dma(h) for h in rest[:nd])); A(cc[:k]); s.stamp('pre')
        t0 = s.t0; s.t0 = s.t2
        A("@wait y1\n s_barrier"); A(s.flag('f3', s.fo, F3 - F1)); s.t0 = t0
        if hb_ == 0: A(s.flag('f2', s.fo2))
        s.stamp('ack'); s.vfree('bF b_st')
        xl = [f"buffer_load_dword {s.rv[0]}, {s.rn[0]}, {s.sws}, 0 offen sc1 ;@r", f"buffer_load_dword {s.rv[2]}, {s.rn[0]}, {s.sws}, 0 offen offset:8 sc1 ;@r"] + \
             [f"buffer_load_dwordx4 {X[4*m:4*m+4]}, {s.g2st}, {s.sx}, {s.rowo[m]} offen ;@xt" for m in range(2)]
        cpos = opt('cpos', 16); nlate = opt('nlate', 0); ev = {i: [] for i in range(45)}; xi = opt('xi', -1)
        lo = [h for h in rest[nd:] if h < 8]; hi = [h for h in rest[nd:] if h >= 8]; lateh = hi[len(hi)-nlate:] if nlate else []; hi = hi[:len(hi)-nlate]
        A(sprinkle(cc[k:] + cat(s.w2read(h) for h in range(nb, n1_)), glue(cat(s.w2dma(h) for h in lo)), 0, opt('e5', 8))); A("s_waitcnt lgkmcnt(0)")
        wq = glue(cat(s.w2dma(h) for h in hi)) + (xl if xi == -1 else []); nw = opt('nw', 4)
        A(wq[:nw]); wq = wq[nw:]
        if opt('d2', 0): A(f"s_sleep {opt('d2', 0)}")
        s.stamp('pre3'); A(i2); A(wq)
        if RL & 8:
            assert not nlate
            A(f"s_cmp_eq_u32 {s.w}, 3\n s_cselect_b32 {s.t0}, {9*4096}, -1"); A([f"s_min_u32 {s.hso[i]}, {s.hso[i]}, {s.t0}" for i in range(3 if opt('rot2', 'x') == 'x' else 10, 11)])
        A(c2); s.stamp('f2')
        now = [h for h in rest if h not in lateh]
        early = [h for h in now if A.vmlog.index('p2') > max(i for i, t in enumerate(A.vmlog) if t == f'wb{h}')]
        lead = min(NH, opt('lead', 10)); hq = [s.hload(i) for i in range(lead)]; p3 = opt('p3', -4); c3i = opt('c3', 6)
        if p3 < 0: hq[lead+p3:lead+p3] = i3
        else: ev[p3] += i3
        A(sprinkle(cat(s.w2read(h) for h in early), hq, 0, 3))
        if len(early) < len(now): A(f"@wait wb{now[-1]}"); A(cat(s.w2read(h) for h in now if h not in early))
        ev[c3i] += [f"s_cmp_eq_u32 {s.p}, 0\n s_cselect_b32 {s.t1}, {s.fo}, {WS_SIZE}"] + c3 + ["s_barrier"] + glue(s.c_gather()) + s.flag('ep', s.t1, EP - F1)
        li = opt('li', c3i + 1); assert li > c3i
        for n, x in enumerate(glue(cat(s.w2dma(h) for h in lateh))): ev[min(cpos - 1, li + n // opt('lr', 2))].append(x)
        top = [s.hload(i) for i in range(cpos + lead, min(44, cpos + NH))] + (xl if xi == -2 else [])
        per = [int(x) for x in opt('cq', '2,1,2,2,1,9').split(',')]; cblk = ["@wait gy", "s_barrier"]
        for x in s.c_parts():
            if x[0] == '@' and len(x) == 2:
                k = int(x[1]); cblk += top[:per[k-1]]; top = top[per[k-1]:]
                if k == opt('lk', 5) and lateh: cblk += [f"@wait wb{lateh[-1]}"] + cat(s.w2read(h) for h in lateh)
            else: cblk.append(x)
        cblk += top + (["s_waitcnt lgkmcnt(0)"] if lateh else []); blk = {cpos: cblk}
        assert p3 < c3i < cpos <= min([22] + [2*h for h in lateh])
        s.vfree('cF cD0r cD0i cD1r cD1i cS0i cS1i ctmp C3r C3i CGr CGi c_er c_ua c_ew c_ga T512c T512s vo2 g2vo')
        s.v('fx', 16); s.v('fs_', 16)
        if xi >= 0:
            for k in range(4): ev[xi + k] += [xl[k]]
        assert opt('sw', 100) > opt('c4', 44) and (opt('c4', 44) < 44 or opt('sw', 100) > 99); f4 = opt('f4', 30); p4 = opt('p4', 42); c4i = opt('c4', 44); sw = opt('sw', 100)
        ev[f4] += ["@wait s\n s_barrier"] + s.flag('f4', s.fo, F4 - F1); ev[p4] += i4
        ev[c4i] += [f"s_and_b32 {s.t0}, {s.rowo[0]}, -1024", f"s_add_u32 {s.t0}, {s.t0}, {WS_S}", f"s_add_u32 {s.t1}, {s.t0}, {4*262144}"] + c4 + \
                   [f"buffer_load_dwordx4 {S[4*m:4*m+4]}, {s.s_ld}, {s.sws}, {(s.t0, s.t1)[m]} offen sc1 ;@s{m}" for m in range(2)]
        w0 = max(23, f4 + 1) if (lateh and opt('lk', 5) > 2) else 23
        for k in range(8): ev[w0 + k*opt('rw', 7)//8] += [s.red_write(0)[k]]
        r0 = w0 + 1 + opt('rw', 7); ev[r0] += ["s_waitcnt lgkmcnt(0)\n s_barrier"] + s.red_read(0)
        a1, am, a2, a3 = s.finish(0, False)
        srs = s.unpack(s.fs_, S) + [f"v_mul_f32 {s.fs_[c]}, {s.rv[2*(c//8)]}, {s.fs_[c]}" for c in range(16)]
        if sw > 44:
            _, am, _, a3 = s.finish(0, True)
            srs = s.unpack(s.fs_, S) + [f"v_pk_mul_f32 {s.fs_[c:c+2]}, {s.fs_[c:c+2]}, {s.rv[2*(c//8):2*(c//8)+2]} op_sel_hi:[1,0]" for c in range(0, 16, 2)]
        assert f4 >= cpos
        streams = [(max(18, cpos + (6 if xi == -2 else 0)), ["@wait xt"] + [f"v_mul_f32 {s.rn[2*m]}, {fl(-LOG2E)}, {s.rv[2*m]}" for m in range(2)] + s.unpack(s.fx, X)),
                   (r0 + 2, ["s_waitcnt lgkmcnt(0)"] + a1 + a2), (sw, ["@wait s1"] + srs + am + a3)]
        perm = opt('per', 6); nlast = opt('nl', 5); late = []
        def take(idx, n):
            o = []
            while streams and n > 0 and streams[0][0] <= idx:
                x = streams[0][1][:n]; del streams[0][1][:n]; o += x; n -= len(x)
                if not streams[0][1]: streams.pop(0)
            return o
        for idx in range(44):
            mt, i = divmod(idx, 22); sl = idx % NH
            if idx in blk: s.stamp('gy'); A(blk[idx]); s.stamp('c')
            A(f"@wait h{idx}" + (" lgkm=0" if idx == 0 else ""))
            if idx == 0: s.stamp('h0')
            if idx == 22: s.stamp('ph1')
            if idx and idx % 3 == 0: s.stamp(f'.h{idx}')
            mf = []
            for nt in range(2):
                acc = s.acc2[32*mt+16*nt:32*mt+16*nt+16]
                mf.append(f"{M32} {acc}, {s.w2f[8*i+4*nt:8*i+4*nt+4]}, {s.hf[4*sl:4*sl+4]}, {acc if i else 0}")
            if idx >= 44 - nlast:
                late.append(mf[1]); A(mf[0]); A(ev[idx] + take(idx, perm // 2 - len(ev[idx]))); continue
            fill = list(ev[idx]); fill += take(idx, perm - len(fill))
            ld_ = lead if idx < cpos else NH; hl = [s.hload(idx + ld_)] if idx + ld_ < 44 else []; h = (len(fill) + 1) // 2
            A(mf[0]); A(fill[:h]); A(mf[1]); A(hl + fill[h:])
        rw = s.red_write(1)
        for k, m in enumerate(late):
            A(m); A(take(99, perm // 2))
            if k >= 2 and len(rw) > 4: A(rw[:2]); rw = rw[2:]
        s.stamp('g2main')
        A(rw[:len(rw)-4]); A(take(99, 10)); A(rw[len(rw)-4:]); A(take(99, 20))
        A(ev[44]); A("s_waitcnt lgkmcnt(0)\n s_barrier"); A(s.red_read(1)); A(take(99, 999))
        a1, am, a2, a3 = s.finish(1, True)
        A("s_waitcnt lgkmcnt(4)"); A(a1[:4]); A("s_waitcnt lgkmcnt(0)")
        if streams: A(a1[4:] + a2); A(take(999, 999)); A(am + a3)
        else: A(a1[4:] + am + a2 + a3)
        s.stamp('fin')
        if STAMPS:
            A("s_waitcnt vmcnt(0)"); s.stamp('end'); n = len(s.tags)
            A(f"""s_waitcnt lgkmcnt(0)
            v_writelane_b32 {s._sv}, {s._sp[2*((n-1)%2)]}, {n-1}
            v_writelane_b32 {s._sv}, {s.spin}, 31
            s_lshl2_add_u32 {s.t0}, s2, {s.w}
            s_lshl_b32 {s.t0}, {s.t0}, 7
            s_add_u32 {s.t0}, {s.t0}, {32<<20}
            v_lshl_add_u32 v0, {s.l}, 2, {s.t0}
            s_mov_b64 exec, 0xffffffff
            global_store_dword v0, {s._sv}, {s.sws[0:2]}""")
        A("L_end:\n s_endpgm"); A(s.tail); A("L_codeend:")

def main(cls):
    k = cls(); k.build(); b = k.A.finish()
    if opt('kill', ''):
        pats = opt('kill', '').split(','); Ls = b.split("\n")
        for i, l in enumerate(Ls):
            m = re.search(r';@(\w+)', l)
            if m and l.strip().startswith('buffer_') and m.group(1) != 'xr' and any(re.fullmatch(p, m.group(1)) for p in pats): Ls[i] = re.sub(r's\[\d+:\d+\], (s\d+|0) ', 's[4:7], 0 ', l)
            if ';@K' in l: Ls[i] = l + f"\n    s_mov_b32 s4, {k.sws[0]}\n    s_mov_b32 s5, {k.sws[1]}\n    s_mov_b32 s6, 0\n    s_mov_b32 s7, 0x20000"
        b = "\n".join(Ls)
    o = open("recurrent_scan__spectral_gfnet__dense_activation_relu__prompt.s.ref").read().split("; Override launch")[0]
    o += f"; @launch grid=(256,1,1) block=(256,1,1) lds={LDS}\n" + '.amdgcn_target "amdgcn-amd-amdhsa--gfx950"\n.text\n'
    o += f".globl {KN}\n.p2align 8\n.type {KN},@function\n{KN}:\n" + b + '.section .rodata,"a"\n.p2align 6\n'
    o += f""".amdhsa_kernel {KN}
  .amdhsa_next_free_vgpr 512
  .amdhsa_next_free_sgpr 102
  .amdhsa_accum_offset 256
  .amdhsa_group_segment_fixed_size 0
  .amdhsa_kernarg_size 72
  .amdhsa_user_sgpr_count 2
  .amdhsa_user_sgpr_kernarg_segment_ptr 1
  .amdhsa_system_sgpr_workgroup_id_x 1
.end_amdhsa_kernel
""" + k.tb.text("tbl")
    open(sys.argv[1], "w").write(o)
    print("v", k.V.hw, "a", k.AC.hw, "s", k.S.hw, "instrs", len(k.A.lines), "nops", k.A.nops)
    if STAMPS: open(sys.argv[1] + ".tags", "w").write(" ".join(k.tags))
if __name__ == "__main__": main(Kern)
```

```python
s = open("c4.s").read()
KN = "recurrent_scan__spectral_gfnet__dense_activation_relu__prompt_kernel"
def mk(name, grid, vg, lds, egrid=1, evg=16, elds=0):
    red = "".join(f"    global_load_dword v{4+k}, v1, s[4:5] offset:{256*k}\n" for k in range(4))
    red += "    s_waitcnt vmcnt(0)\n    v_min_u32 v4, v4, v5\n    v_min_u32 v6, v6, v7\n    v_min_u32 v4, v4, v6\n    s_mov_b32 s8, -1\n    s_nop 1\n"
    if grid == 1: red = "    global_load_dword v4, v1, s[4:5]\n    s_waitcnt vmcnt(0)\n    v_readfirstlane_b32 s8, v4\n"
    else: red += "".join(f"    v_readlane_b32 s10, v4, {l}\n    s_min_u32 s8, s8, s10\n" for l in range(64))
    body = f""".globl t_kernel
.p2align 8
.type t_kernel,@function
t_kernel:
    s_memrealtime s[10:11]
    s_load_dwordx2 s[4:5], s[0:1], 64
    s_cmp_ge_u32 s2, {grid}
    s_cbranch_scc1 L_t_end
    s_lshl_b32 s3, s2, 2
    s_add_u32 s3, s3, {40 << 20}
    v_mov_b32 v1, s3
    s_waitcnt lgkmcnt(0)
    v_mov_b32 v2, s10
    v_cmp_eq_u32 vcc, 0, v0
    s_and_saveexec_b64 s[6:7], vcc
    s_cbranch_execz L_t_end
    global_store_dword v1, v2, s[4:5]
L_t_end:
    s_endpgm
.globl e_kernel
.p2align 8
.type e_kernel,@function
e_kernel:
    s_load_dwordx2 s[4:5], s[0:1], 64
    s_cmp_ge_u32 s2, {egrid}
    s_cbranch_scc1 L_e_end
    v_and_b32 v1, 63, v0
    v_lshlrev_b32 v1, 2, v1
    v_add_u32 v1, {40 << 20}, v1
    s_waitcnt lgkmcnt(0)
{red}
    s_mov_b32 s12, 0
L_e_loop:
    s_memrealtime s[10:11]
    s_waitcnt lgkmcnt(0)
    s_sub_u32 s10, s10, s8
    s_add_u32 s12, s12, 1
    s_cmp_ge_u32 s12, 20000
    s_cbranch_scc1 L_e_end
    s_cmp_lt_u32 s10, 6000
    s_cbranch_scc1 L_e_loop
L_e_end:
    s_endpgm
"""
    d = lambda nm, v: f""".p2align 6
.amdhsa_kernel {nm}
  .amdhsa_next_free_vgpr {v}
  .amdhsa_next_free_sgpr 102
  .amdhsa_accum_offset {min(v, 256)}
  .amdhsa_group_segment_fixed_size 0
  .amdhsa_kernarg_size 72
  .amdhsa_user_sgpr_count 2
  .amdhsa_user_sgpr_kernarg_segment_ptr 1
  .amdhsa_system_sgpr_workgroup_id_x 1
.end_amdhsa_kernel
"""
    t = s.replace('.section .rodata,"a"\n', body + '.section .rodata,"a"\n') + d("t_kernel", vg) + d("e_kernel", evg)
    t = t.replace("; @launch grid", f"; @launch kernel=t_kernel grid=({grid},1,1) block=(256,1,1) lds={lds}\n; @launch kernel={KN} grid")
    t = t.replace('.amdgcn_target', f"; @launch kernel=e_kernel grid=({egrid},1,1) block=(256,1,1) lds={elds}\n" + '.amdgcn_target')
    open(name, 'w').write(t)
mk("probe_a.s", 256, 16, 0); mk("probe_b.s", 256, 512, 161280); mk("probe_c.s", 1, 16, 0); mk("probe_d.s", 256, 512, 161280, 256, 512, 161280); mk("probe_e.s", 256, 16, 0, 256, 16, 0)
```

```python
import sys, re
import numpy as np
from asmlib import *
import tables as TB
from comp import fl, M16, M32
KN = "recurrent_scan__spectral_gfnet__dense_activation_relu__prompt_kernel"
OPT = dict(a.split('=') for a in sys.argv[2:] if '=' in a)
def opt(k, d): return type(d)(OPT.get(k, d))
STAMPS = 'stamps' in sys.argv[2:]
WS_X1 = 0; WS_Y1 = 4 << 20; WS_H = 6 << 20; WS_S = 12 << 20; F1 = 14 << 20; WS_SIZE = 31 << 20; BIG = 16 << 20
F3 = F1 + 4096; REPS = 8192; WS_R = F1 + 65536; F2 = F1 + 98304; F4 = F2 + 4096; EP = F2 + 8192
LB = 131072; EH = 4288; XOS = 544; RED_S = 8704
L_TB = 98304; L_E = L_UO = LB; L_XR = L_XO = L_U = LB + 8704; L_XCH = LB + 26112; LDS = L_XCH + 4096
SWZ = opt('swz', 0)
LOG2E = 1.4426950408889634
def sprinkle(base, ins, first, every):
    out = []; ins = list(ins); due = 0
    for i, x in enumerate(base):
        out.append(x)
        if i >= first and (i - first) % every == 0: due += 1
        nxt = base[i+1] if i + 1 < len(base) else ''
        if due and ins and not nxt.startswith(('s_cselect', 's_addc', 's_subb', 's_cbranch')):
            out.append(ins.pop(0)); due -= 1
    return out + ins
def glue(lst):
    out = []; pend = []
    for x in lst:
        pend.append(x)
        if not x.startswith('s_') or 'buffer_' in x: out.append("\n".join(pend)); pend = []
    if pend: out.append("\n".join(pend))
    return out
def L(text): return [x.strip() for x in text.split('\n') if x.strip()]
def cat(it): return sum(it, [])

class Kern:
    def __init__(s):
        s.A = Asm(); s.V = Regs('v', 1, 256); s.AC = Regs('a', 0, 240); s.S = Regs('s', 3, 102); s.tail = []; s.tb = TB.Table()
        if opt('kill', ''): s.S.alloc('_kill', 4, 4)
    def v(s, name, n=1): r = s.V.alloc(name, n); setattr(s, name, r); return r
    def a(s, name, n=1): r = s.AC.alloc(name, n); setattr(s, name, r); return r
    def sg(s, name, n=1, align=None): r = s.S.alloc(name, n, align); setattr(s, name, r); return r
    def vs(s, names): return [s.v(x) for x in names.split()]
    def ss(s, names): return [s.sg(x) for x in names.split()]
    def vfree(s, names): s.V.release(*names.split())
    def afree(s, names): s.AC.release(*names.split())
    def sfree(s, names): s.S.release(*names.split())
    def stamp(s, tag):
        if not STAMPS: return
        fine = opt('fine', '')
        if fine == 'none' and tag not in ('start', 'end'): return
        if tag.startswith('.'):
            if not fine or not tag.startswith('.' + fine): return
        elif fine and tag not in ('start', 'end', 'in0', 'g1main', 'g1epi', 'b', 'f2', 'h0', 'g2main', 'xin'): return
        if not hasattr(s, 'tags'): s.tags = []; s.sg('_sp', 4, 2); s.v('_sv')
        s.tags.append(tag); i = len(s.tags) - 1
        s.A(f"{'s_memtime' if opt('cyc', 0) else 's_memrealtime'} {s._sp[2*(i%2):2*(i%2)+2]}")
        if i > 0: s.A(f"v_writelane_b32 {s._sv}, {s._sp[2*((i-1)%2)]}, {i-1}")
    SRDS = [('sx', 0, 2097152), ('sw1', 32, 1409024), ('sw2', 40, 1409024), ('sws', 64, WS_SIZE), ('swr', 8, 2048*514), ('swi', 16, 2048*514), ('sout', 48, 2097152)]
    NT = 6
    def entry(s):
        A = s.A; s.stamp('start')
        for nm, off, sz in s.SRDS: s.sg(nm, 4, 4); A(f"s_load_dwordx2 {getattr(s, nm)[0:2]}, s[0:1], {off}")
        s.sg('sx1', 4, 4); s.sg('hso', 11, 2); s.sg('stb', 2); s.sg('spc', 2); s.vs('l n q l16 cpf'); s.ss('w rb fs p t0 t1 t2 xcd j rb1 fs1 spin2 m0b')
        s.cnt = STAMPS and opt('fine', '') != 'none'
        if s.cnt: s.sg('spin')
        t = s.v('_t')
        A(f"""v_lshrrev_b32 {s.q}, 6, v0
        s_cmp_ge_u32 s2, 256
        s_cbranch_scc1 L_end
        s_getpc_b64 {s.spc}
        L_pc:
        s_add_u32 {s.stb[0]}, {s.spc[0]}, tbl@rel32@lo+4
        s_addc_u32 {s.stb[1]}, {s.spc[1]}, tbl@rel32@hi+12
        v_readfirstlane_b32 {s.w}, {s.q}
        v_and_b32 {s.l}, 63, v0
        v_lshlrev_b32 {s.l16}, 4, {s.l}
        s_mul_i32 {s.t0}, {s.w}, {1024*s.NT}
        s_add_u32 m0, {s.t0}, {L_TB}
        v_add_u32 {t}, {s.t0}, {s.l16}""")
        for z in range(4): A(f"global_load_lds_dwordx4 {t}, {s.stb} offset:{1024*z} ;@tb")
        A(f"s_add_u32 m0, {s.t0}, {L_TB + 4096}\n v_add_u32 {t}, 4096, {t}\n s_lshr_b32 {s.j}, s2, 3\n s_and_b32 {s.t0}, {s.j}, 3\n s_lshl_b32 {s.t1}, {s.t0}, 12")
        for z in range(s.NT - 4): A(f"global_load_lds_dwordx4 {t}, {s.stb} offset:{1024*z} ;@tb")
        A(f"""v_lshrrev_b32 {t}, 3, v0
        v_lshl_add_u32 {t}, {t}, 7, {s.t1}
        v_min_u32 {t}, L_codeend-L_pc-4, {t}
        global_load_dword {s.cpf}, {t}, {s.spc} ;@cpf
        v_and_b32 {s.n}, 15, v0
        v_lshrrev_b32 {s.q}, 4, {s.l}
        s_and_b32 {s.xcd}, s2, 7
        s_lshl2_add_u32 {s.rb}, {s.xcd}, {s.t0}
        s_lshr_b32 {s.fs}, s2, 5
        s_lshl3_add_u32 {s.p}, {s.rb}, {s.fs}
        s_lshr_b32 {s.t1}, {s.xcd}, 1
        s_lshl2_add_u32 {s.rb1}, {s.t1}, {s.t0}
        s_xor_b32 {s.t0}, {s.t0}, {s.xcd}
        s_and_b32 {s.t0}, {s.t0}, 1
        s_sub_u32 {s.t0}, 15, {s.t0}
        s_and_b32 {s.t1}, {s.xcd}, 1
        s_mul_i32 {s.t1}, {s.t1}, 7
        s_add_u32 {s.fs1}, {s.t1}, {s.fs}
        s_cmp_eq_u32 {s.fs}, 7
        s_cselect_b32 {s.fs1}, {s.t0}, {s.fs1}
        s_lshl_b32 {s.m0b}, {s.w}, 13""")
        if opt('g1m', 0): A(f"s_lshr_b32 {s.rb1}, {s.rb}, 1\n s_and_b32 {s.t0}, {s.j}, 1\n s_lshl1_add_u32 {s.fs1}, {s.fs}, {s.t0}")
        if opt('g2map', 0):
            assert not SWZ and not opt('rl', 0) & 4
            A(f"""s_lshr_b32 {s.t0}, {s.xcd}, 1
            s_and_b32 {s.t1}, {s.j}, 7
            s_lshl3_add_u32 {s.rb}, {s.t0}, {s.t1}
            s_and_b32 {s.t0}, {s.xcd}, 1
            s_lshr_b32 {s.t1}, s2, 6
            s_lshl{2 if opt('g2map', 0) == 1 else 1}_add_u32 {s.fs}, {s.t0 if opt('g2map', 0) == 1 else s.t1}, {s.t1 if opt('g2map', 0) == 1 else s.t0}""")
        s.vfree('_t'); s.sfree('stb spc')
        for nm, off, sz in s.SRDS:
            r = getattr(s, nm); A(f"s_mov_b32 {r[2]}, {sz}\n s_mov_b32 {r[3]}, 0x20000")
        s.sg('xo', 2)
        A(f"""s_lshl_b32 {s.t0}, {s.w}, 11
        s_add_u32 m0, {s.t0}, {L_XR}
        s_lshl_b32 {s.xo[0]}, {s.w}, 9
        s_add_u32 {s.xo[0]}, {s.xo[0]}, {s.p}
        s_lshl_b32 {s.xo[0]}, {s.xo[0]}, 10
        s_add_u32 {s.xo[1]}, {s.xo[0]}, {262144-1024}""")
        vx = s.v('g1vx', 4); t, u = s.vs('_t _u'); s.sg('sox', 8, 1); s.sg('sow', 8, 1); bx, bw, mw, rot = s.ss('_bx _bw _mw _rot')
        A(f"""v_lshrrev_b32 {u}, 3, {s.l}
        v_and_b32 {t}, 7, {s.l}
        v_xor_b32 {t}, {t}, {s.q}
        v_lshlrev_b32 {u}, 10, {u}
        v_lshl_add_u32 {vx[0]}, {t}, 4, {u}
        v_xor_b32 {vx[1]}, 64, {vx[0]}
        v_add_u32 {vx[1]}, {262144-1024}, {vx[1]}
        v_add_u32 {vx[2]}, {2*(262144-1024)}, {vx[0]}
        v_add_u32 {vx[3]}, {2*(262144-1024)}, {vx[1]}
        s_and_b32 {s.t1}, {s.w}, 1
        s_lshr_b32 {s.t0}, {s.w}, 1
        s_lshl1_add_u32 {bx}, {s.rb1}, {s.t0}
        s_lshl_b32 {s.t2}, {s.t1}, 7
        s_add_u32 {bx}, {bx}, {s.t2}
        s_lshl_b32 {bx}, {bx}, 13
        s_lshl3_add_u32 {bw}, {s.t0}, {s.t1}
        s_mul_i32 {bw}, {bw}, {4*2752}
        s_mul_i32 {s.t2}, {s.fs1}, 192
        s_add_u32 {bw}, {bw}, {s.t2}
        s_mul_i32 {s.t0}, {s.rb1}, {86*1024}
        s_mul_i32 {s.t1}, {s.w}, 3072
        s_add_u32 {s.t0}, {s.t0}, {s.t1}
        s_mov_b32 {mw}, {64*2752}
        s_mov_b32 {s.sx1[3]}, 0x20000
        s_cmp_eq_u32 {s.fs1}, 15
        s_cselect_b32 {bw}, {s.t0}, {bw}
        s_cselect_b32 {mw}, 12288, {mw}
        s_cselect_b32 {s.sx1[2]}, 0, {s.sx[2]}""")
        if opt('vwc', 0):
            vw = s.v('g1vc', 3); k = s.v('_k'); A("s_cselect_b64 vcc, -1, 0")
            for z in range(3):
                A(f"""v_add_u32 {t}, {64*z}, {s.l}
                v_mul_u32_u24 {u}, 5462, {t}
                v_lshrrev_b32 {u}, 16, {u}
                v_mad_i32_i24 {t}, {u}, -12, {t}
                v_lshrrev_b32 {k}, 1, {u}
                v_and_b32 {k}, 2, {k}
                v_xor_b32 {t}, {t}, {k}
                v_and_b32 {k}, 12, {u}
                v_add_u32 {u}, {u}, {k}
                v_mul_u32_u24 {u}, 2752, {u}
                v_lshl_add_u32 {t}, {t}, 4, {u}""")
                if z: A(f"v_subrev_u32 {t}, {1024*z}, {t}")
                A(f"v_cndmask_b32 {vw[z]}, {t}, {s.l16}, vcc")
            s.vfree('_k')
        r1 = opt('rot1', 'x1')
        if r1 == 'x': A(f"s_mov_b32 {rot}, {s.xcd}")
        elif r1 == 'xh': A(f"s_and_b32 {s.t0}, {s.j}, 1\n s_lshl2_add_u32 {rot}, {s.t0}, {s.xcd}")
        elif r1 == 'x1': A(f"s_and_b32 {s.t0}, {s.j}, 1\n s_add_u32 {rot}, {s.t0}, {s.xcd}")
        elif r1 == 'x2': A(f"s_bfe_u32 {s.t0}, {s.j}, 0x10001\n s_add_u32 {rot}, {s.t0}, {s.xcd}")
        elif r1 == 'x4': A(f"s_bfe_u32 {s.t0}, {s.j}, 0x10001\n s_lshl2_add_u32 {rot}, {s.t0}, {s.xcd}")
        elif r1[0] == 'k': A(f"s_xor_b32 {rot}, {s.j}, {s.fs if 'f' in r1 else 0}\n s_and_b32 {rot}, {rot}, {r1[-1]}")
        s.vfree('_t _u')
    def so_calc(s, c0, c1):
        o = []
        for st in range(c0, c1):
            if opt('rot1', 'x1')[0] == 'k':
                o += L(f"""s_xor_b32 {s.t0}, {s._rot}, {st}
                s_add_u32 {s.t0}, {s.t0}, {s.xcd}
                s_and_b32 {s.t0}, {s.t0}, 7
                s_lshl_b32 {s.t1}, {s.t0}, 7
                s_add_u32 {s.sox[st]}, {s._bx}, {s.t1}
                s_mul_i32 {s.t1}, {s.t0}, {s._mw}
                s_add_u32 {s.sow[st]}, {s._bw}, {s.t1}"""); continue
            o += L(f"""s_and_b32 {s._rot}, {s._rot}, 7
            s_lshl_b32 {s.t1}, {s._rot}, 7
            s_add_u32 {s.sox[st]}, {s._bx}, {s.t1}
            s_mul_i32 {s.t1}, {s._rot}, {s._mw}
            s_add_u32 {s.sow[st]}, {s._bw}, {s.t1}
            s_add_u32 {s._rot}, {s._rot}, 1""")
        if c1 == 8: s.sfree('_bx _bw _rot _mw')
        return o
    def g1_halves(s, st):
        base = (st % 4) * 32768; vw = s.g1vc if opt('vwc', 0) else s.g1vw
        hv = [[f"s_add_u32 m0, {s.m0b}, {base+4096}"] + [f"buffer_load_dwordx4 {s.g1vx[z]}, {s.sx1}, {s.sox[st]} offen offset:{1024*z} lds ;@st{st}" for z in range(4)],
                [f"s_add_u32 m0, {s.m0b}, {base}"] + [f"buffer_load_dwordx4 {vw[z]}, {s.sw1}, {s.sow[st]} offen offset:{1024*z} lds ;@st{st}" for z in range(3)]]
        return hv[::-1] if opt('vwc', 0) else hv
    def tables(s):
        l, n, q = TB.l, TB.n, TB.q
        b1 = TB.B1(); t5 = TB.T(512); f = TB.F16(); sa = TB.SA(); t2 = TB.T(256); c1 = TB.C1(); sc = TB.SC()
        u8, c8, i5, hh = l >> 3, l & 7, l & 31, l >> 5
        ast = lambda t: L_XO + XOS*(n >> 1) + 64*(4*t + q) + 16*((n & 1) ^ (2*t + (q >> 1)))
        def vw(z):
            Lz = 64*z + l; row = Lz // 12; ch = (Lz % 12) ^ (2*((row >> 2) & 1)); return (row + (row & 12)) * 2752 + 16*ch - 1024*z
        tl = [('g1vw', [vw(0), vw(1), vw(2), 514*u8 + 16*c8], ''),
              ('B1r', b1[0], ''), ('B1i', b1[1], ''),
              ('m', [0x3f80 + 0*l, L_XR + 8*l, TB.u32(np.where(n == 0, 1.0, 0.0)), TB.u32(np.where(n < 8, 1.0, -1.0))], 'sel0 a_trad mn0 sgn'),
              ('T512c', t5[0], ''), ('T512s', t5[1], ''), ('FWr', f['FWr'], ''), ('FWi', f['FWi'], ''), ('SAr', sa[0], ''), ('SAi', sa[1], ''),
              ('a_wr', [L_E + 16 * TB.sig_unit(k, n) for k in TB.kk], ''),
              ('m', [L_XO + XOS*u8 + 64*c8 + 16*(3 ^ (c8 >> 1)), L_XO + XOS*u8 + 64*c8 + 16*(2 ^ (c8 >> 1)), ast(0), ast(1)], 'wso2 wso a_st0 a_st1'),
              ('m', [L_E + 16 * (8*(n >> 2) + 4*(q >> 1) + (n & 3)) + EH * (q & 1), L_XO + XOS*hh + 16*i5, 2048*hh + 64*(i5 >> 2) + 16*((i5 & 3) ^ (i5 >> 3)),
                     WS_R + np.where(l & 1, 32 + 16*hh, 16*hh)], 'a_rd xord xost rms'),
              ('m', [192*(l >> 2) + 8*(l & 3) + 32*(q & 1), 4096 + 128*n + 16*((n >> 1) ^ q), WS_R + 128*(n & 7) + 32 + 16*(n >> 3), 16384*(l >> 2) + 16*((l ^ q) & 3) + SWZ*128*((l >> 2) & 7)], 'wa0 xa0 mla b_ga'),
              ('m', [L_U + 4096*q + 64*n + 16*(n >> 2), L_UO + 2048*q + 32*n + 16*(n >> 3), 32*(l >> 1) + 16*((l ^ q) & 1), 32*i5 + 16*hh], 'b_ua b_uo b_st s_st'),
              ('m', [1024*u8 + 16*(c8 ^ (4*(q & 1))), 128*(8*hh + ((l >> 2) & 3)) + 64*((l >> 3) & 1) + 32*(q & 1) + 8*(l & 3), 272*i5 + 16*hh, 272*u8 + 32*c8], 'vo2 ra2 g2rw g2rr'),
              ('m', [1024*u8 + 16*c8, 65536*(l >> 1) + 16*(l & 1) + SWZ*128*((l >> 1) & 7), L_U + 8*i5 + 4096*hh, L_E + EH*hh + 32*n + 33*16*(q & 1)], 'g2st c_ga c_ua c_ew'),
              ('c_er', [L_E + 16 * TB.sig_unit(n, k) for k in TB.kk], ''),
              ('T256c', t2[0], ''), ('T256s', t2[1], ''),
              ('C1x', c1[0], 'A'), ('C1y', c1[1], 'A'), ('SCr', sc[0], 'A'), ('SCi', sc[1], 'A')]
        assert len(tl) == 4 * s.NT
        ad = s.v('_tad'); s.A(f"v_add_u32 {ad}, {L_TB}, {s.l16}"); na = 0; out = []
        for nm, quad, sub in tl:
            i = s.tb.add(quad)
            if sub == 'A': r = R('a', 240 + 4*na, 4); na += 1; setattr(s, nm, r)
            else:
                r = s.v(nm, 4)
                if sub:
                    b, _ = s.V.names.pop(nm)
                    for k, x in enumerate(sub.split()): s.V.names[x] = (b + k, 1); setattr(s, x, r[k])
            out.append(f"ds_read_b128 {r}, {ad} offset:{1024*i}")
        return out
    def trig3(s, name, fwd, pre):
        co = s.v('_co', 4); si = s.v('_si', 4); m, t = s.vs('_m _t'); rr = s.v(name + 'r', 4); ii = s.v(name + 'i', 4)
        o = L(pre(co[0], t, m))
        o += [f"v_mul_f32 {si[0]}, {fl(1/2048)}, {co[0]}", f"v_mul_f32 {t}, {fl(1/2048)}, {t}"]
        o += [f"v_add_f32 {si[c]}, {si[c-1]}, {t}" for c in (1, 2, 3)]
        o += [f"v_cos_f32 {co[c]}, {si[c]}" for c in range(4)] + [f"v_sin_f32 {si[c]}, {si[c]}" for c in range(4)]
        for c in range(4): o += [f"v_cndmask_b32 {co[c]}, 0, {co[c]}, vcc", f"v_cndmask_b32 {si[c]}, 0, {si[c]}, vcc"]
        for c in range(4): o += [f"v_cvt_pk_bf16_f32 {rr[c]}, {co[c]}, {'' if fwd else '-'}{si[c]}", f"v_cvt_pk_bf16_f32 {ii[c]}, {'-' if fwd else ''}{si[c]}, {co[c]}"]
        s.vfree('_co _si _m _t'); return o
    def const_A3(s):
        return s.trig3('A3', True, lambda c0, t, m: f"""v_and_b32 {t}, 1, {s.q}
        v_lshl_add_u32 {t}, {t}, 10, {s.p}
        v_lshrrev_b32 {m}, 1, {s.n}
        v_mul_u32_u24 {c0}, {m}, {t}
        v_lshlrev_b32 {t}, 8, {m}
        v_lshrrev_b32 {m}, 5, {s.l}
        v_xor_b32 {m}, {m}, {s.l}
        v_and_b32 {m}, 1, {m}
        v_cmp_eq_u32 vcc, 0, {m}
        v_cvt_f32_u32 {c0}, {c0}
        v_cvt_f32_u32 {t}, {t}""")
    def const_C3(s):
        return s.trig3('C3', False, lambda c0, t, m: f"""v_lshrrev_b32 {t}, 3, {s.n}
        v_and_b32 {m}, 3, {s.n}
        v_lshl_add_u32 {t}, {t}, 2, {m}
        v_lshl_add_u32 {t}, {t}, 8, {s.p}
        v_lshrrev_b32 {m}, 5, {s.l}
        v_mul_u32_u24 {c0}, {m}, {t}
        v_lshlrev_b32 {c0}, 2, {c0}
        v_lshrrev_b32 {m}, 2, {s.l}
        v_xor_b32 {m}, {m}, {s.q}
        v_and_b32 {m}, 1, {m}
        v_cmp_eq_u32 vcc, 0, {m}
        v_cvt_f32_u32 {c0}, {c0}
        v_cvt_f32_u32 {t}, {t}""")
    def fwarm(s):
        t = s.v('_t')
        o = L(f"""v_lshlrev_b32 {t}, 15, {s.l}
        s_lshl_b32 {s.t0}, s2, 7
        s_add_u32 {s.t0}, {s.t0}, {F1}
        s_cmp_lt_u32 s2, 32
        s_cselect_b32 {s.t1}, 15, 7
        s_cmp_eq_u32 {s.w}, 1
        s_cselect_b32 {s.t0}, {s.t0}, {WS_SIZE}""")
        o.append(f"s_mov_b32 exec_hi, 0\n s_mov_b32 exec_lo, {s.t1}\n buffer_store_dword {t}, {t}, {s.sws}, {s.t0} offen offset:124 sc1 ;@fw\n s_mov_b64 exec, -1")
        s.vfree('_t'); return o
    def flags_setup(s):
        s.vs('pa pg2 pv fra'); s.ss('fo fo2 tag')
        return L(f"""s_lshl_b32 {s.t0}, {s.xcd}, 13
        s_add_u32 {s.t0}, {s.t0}, {F1}
        v_lshl_add_u32 {s.pa}, v0, 4, {s.t0}
        v_lshlrev_b32 {s.fra}, 13, {s.l}
        s_lshl_b32 {s.t0}, {s.rb}, 7
        s_add_u32 {s.t0}, {s.t0}, {F2}
        s_and_b32 {s.t0}, {s.t0}, -256
        v_lshl_add_u32 {s.pg2}, {s.n}, 4, {s.t0}
        s_lshl4_add_u32 {s.fo}, {s.p}, {F1}
        s_lshl4_add_u32 {s.fo2}, {s.rb1}, {s.fs1}
        s_lshl4_add_u32 {s.fo2}, {s.fo2}, {F2}
        s_cmp_eq_u32 {s.w}, 0
        s_cselect_b32 {s.fo}, {s.fo}, {WS_SIZE}
        s_cselect_b32 {s.fo2}, {s.fo2}, {WS_SIZE}
        {f"s_mov_b32 {s.spin}, 0" if s.cnt else ""}
        s_mov_b32 {s.spin2}, 0""")
    def tag_fix(s): return ["@wait tag", f"v_readfirstlane_b32 {s.tag}, {s.vtag}", f"s_mul_i32 {s.tag}, {s.tag}, 1664525", f"s_add_u32 {s.tag}, {s.tag}, 1013904223", f"v_mov_b32 {s.vtag}, {s.tag}"]
    def flag(s, nm, so, add=0):
        pre = f"s_add_u32 {s.t0}, {so}, {add}\n " if add else ""; so = s.t0 if add else so
        if nm in ('f1', 'f3'): return [pre + f"s_mov_b64 exec, 255\n buffer_store_dword {s.vtag}, {s.fra}, {s.sws}, {so} offen sc1 ;@{nm}\n s_mov_b64 exec, -1"]
        return [pre + f"s_mov_b64 exec, 1\n buffer_store_dword {s.vtag}, off, {s.sws}, {so} sc1 ;@{nm}\n s_mov_b64 exec, -1"]
    def poll(s, nm, ad, so):
        ins = f"buffer_load_dword {s.pv}, {ad}, {s.sws}, {so} offen sc1"
        s.tail += L(f"""L_retry{nm}:
        {f"s_add_u32 {s.spin}, {s.spin}, {1 << (8*(int(nm[1])-1))}" if s.cnt else ""}
        s_add_u32 {s.spin2}, {s.spin2}, 1
        s_cmp_ge_u32 {s.spin2}, 400000
        s_cbranch_scc1 L_out{nm}
        s_mov_b64 exec, vcc
        s_sleep {opt('ps', 3)}
        {ins}
        s_waitcnt vmcnt(0)
        v_cmp_ne_u32 vcc, {s.tag}, {s.pv}
        s_cbranch_vccnz L_retry{nm}
        L_out{nm}:
        s_mov_b64 exec, -1
        s_branch L_back{nm}""")
        return [ins + f" ;@{nm}"], [f"@wait {nm}\n v_cmp_ne_u32 vcc, {s.tag}, {s.pv}\n s_cbranch_vccnz L_retry{nm}\n L_back{nm}:"]
    def reloc_prod(s, reg, key, lo, hi, cond=None):
        t = s.v('_r')
        o = L(f"s_and_b32 {s.t0}, {key}, 3\n s_lshl_b32 {s.t0}, {s.t0}, 7\n s_add_u32 {s.t0}, {s.t0}, {BIG + 128}")
        if cond: o += L(f"{cond}\n s_cselect_b32 {s.t0}, {s.t0}, 0")
        o += L(f"v_add_u32 {t}, {s.t0}, {reg}\n s_mov_b32 vcc_lo, {hex(lo)}\n s_mov_b32 vcc_hi, {hex(hi)}\n v_cndmask_b32 {reg}, {reg}, {t}, vcc")
        s.vfree('_r'); return o
    def reloc_cons(s, reg, key, sh, lanesh):
        t = s.v('_r')
        o = L(f"""v_bfe_u32 {t}, {s.l}, {lanesh}, 2
        v_lshl_add_u32 {t}, {t}, 7, {reg}
        v_add_u32 {t}, {BIG + 128}, {t}
        s_bfe_u32 {s.t0}, {key}, {hex(0x30000 + sh)}
        s_cmp_eq_u32 {s.t0}, 3
        s_cselect_b64 vcc, -1, 0
        v_cndmask_b32 {reg}, {reg}, {t}, vcc""")
        s.vfree('_r'); return o
    def cmul(s, dr, di, co, si, tmp, conj):
        o = []; neg = " neg_lo:[0,0,1] neg_hi:[0,0,1]"
        for h in (0, 2):
            P = lambda r: r[h:h+2]
            o += [f"v_pk_mul_f32 {tmp[0:2]}, {P(di)}, {P(si)}", f"v_pk_mul_f32 {tmp[2:4]}, {P(dr)}, {P(si)}",
                  f"v_pk_fma_f32 {P(dr)}, {P(dr)}, {P(co)}, {tmp[0:2]}" + (neg if conj else ""), f"v_pk_fma_f32 {P(di)}, {P(di)}, {P(co)}, {tmp[2:4]}" + ("" if conj else neg)]
        return o
    def pack(s, dst, dr, di): return [f"v_cvt_pk_bf16_f32 {dst(c)}, {dr[c]}, {di[c]}" for c in range(4)]
    def a_scalars(s):
        s.sg('mq0', 2); s.sg('ab', 4, 1); s.ss('wl x1o'); b = s.ab
        return L(f"""s_mov_b64 {s.mq0}, 0xffff
        s_lshr_b32 {s.t0}, {s.w}, 1
        s_mul_i32 {s.t0}, {s.t0}, {EH}
        s_and_b32 {s.t1}, {s.w}, 1
        s_lshl3_add_u32 {b[0]}, {s.t1}, {s.t0}
        s_mul_i32 {b[1]}, {s.w}, {66*16}
        s_mul_i32 {b[2]}, {s.w}, {8*XOS}
        s_lshl_b32 {b[3]}, {s.w}, 11
        s_mul_i32 {s.wl}, {s.p}, 4112
        s_lshl_b32 {s.t0}, {s.w}, 7
        s_add_u32 {s.wl}, {s.wl}, {s.t0}
        s_add_u32 {s.wl}, {s.wl}, 2
        s_lshl_b32 {s.x1o}, {s.p}, 14
        s_lshl2_add_u32 {s.x1o}, {s.t0}, {s.x1o}
        s_and_b32 {s.t0}, {s.fs}, {4*SWZ}
        s_lshl_b32 {s.t0}, {s.t0}, 7
        s_xor_b32 {s.x1o}, {s.x1o}, {s.t0}""")
    def a_fix(s):
        b = s.ab
        return [f"v_add_u32 {s.a_wr[c]}, {b[0]}, {s.a_wr[c]}" for c in range(4)] + [f"v_add_u32 {s.a_rd}, {b[1]}, {s.a_rd}"] + \
               [f"v_add_u32 {r}, {b[2]}, {r}" for r in (s.a_st0, s.a_st1, s.wso, s.wso2, s.xord)] + \
               L(f"s_and_b32 {s.t0}, {s.fs}, {3*SWZ}\n s_lshl_b32 {s.t0}, {s.t0}, 7\n v_xor_b32 {s.xost}, {s.t0}, {s.xost}")
    def a_part1(s, early):
        F = [s.v('aF0', 4), s.v('aF1', 4)]; s.aD = D = [[s.v(f'aD{i}{x}', 4) for x in 'ri'] for i in range(2)]
        Sp = [[s.v(f'aS{i}{x}', 4) for x in 'ri'] for i in range(2)]
        d = s.v('ad', 8); st = s.v('ast', 4); tmp = s.v('atmp', 4); P = s.v('aP', 8); sel1 = s.v('sel1')
        r01 = s.hso[0:4]; piv = s.sg('apiv', 2); pv2 = s.hso[4:6]; o = []
        for i in range(2): o += [f"ds_read_b64_tr_b16 {F[i][2*h:2*h+2]}, {s.a_trad} offset:{1024*i+512*h}" for h in range(2)]
        o += [f"v_mov_b32 {sel1}, 1.0"] + early
        for i in range(2):
            o += [f"s_waitcnt lgkmcnt({2-2*i})", f"{M16} {D[i][0]}, {F[i]}, {s.B1r}, 0", f"v_readfirstlane_b32 {piv[i]}, {F[i][0]}", f"{M16} {D[i][1]}, {F[i]}, {s.B1i}, 0",
                  f"s_lshl_b32 {piv[i]}, {piv[i]}, 16", f"s_xor_b32 {piv[i]}, {piv[i]}, 0x80000000"]
        for i in range(2):
            for c in range(4): o += [f"v_dot2_f32_bf16 {d[2*c]}, {F[i][c]}, {s.sel0}, {piv[i]}", f"v_dot2_f32_bf16 {d[2*c+1]}, {F[i][c]}, {sel1}, {piv[i]}"]
            o += L(f"""v_pk_mul_f32 {tmp[0:2]}, {d[0:2]}, {d[0:2]}
            v_pk_add_f32 {tmp[2:4]}, {d[0:2]}, {d[2:4]}
            v_pk_fma_f32 {tmp[0:2]}, {d[2:4]}, {d[2:4]}, {tmp[0:2]}
            v_pk_add_f32 {tmp[2:4]}, {tmp[2:4]}, {d[4:6]}
            v_pk_fma_f32 {tmp[0:2]}, {d[4:6]}, {d[4:6]}, {tmp[0:2]}
            v_pk_add_f32 {tmp[2:4]}, {tmp[2:4]}, {d[6:8]}
            v_pk_fma_f32 {tmp[0:2]}, {d[6:8]}, {d[6:8]}, {tmp[0:2]}
            v_add_f32 {st[i]}, {tmp[2]}, {tmp[3]}
            v_add_f32 {st[2+i]}, {tmp[0]}, {tmp[1]}""")
        o += [f"v_readfirstlane_b32 {pv2[i]}, {D[i][0][0]}" for i in range(2)]
        o += L(f"""v_permlane32_swap_b32 {st[0]}, {st[1]}
        v_permlane32_swap_b32 {st[2]}, {st[3]}
        v_add_f32 {st[0]}, {st[0]}, {st[1]}
        v_add_f32 {st[2]}, {st[2]}, {st[3]}""")
        o += [f"v_mul_f32 {d[2*i]}, {pv2[i]}, {s.mn0}" for i in range(2)]
        o += [f"v_permlane16_swap_b32 {st[0]}, {st[2]}", f"v_add_f32 {st[0]}, {st[0]}, {st[2]}"]
        red = [f"v_add_f32_dpp {st[0]}, {st[0]}, {st[0]} row_ror:{k} row_mask:0xf bank_mask:0xf" for k in (8, 4, 2, 1)]
        for i in range(2):
            o += [f"v_pk_add_f32 {D[i][0][h:h+2]}, {D[i][0][h:h+2]}, {d[2*i:2*i+2]} op_sel_hi:[1,0] neg_lo:[0,1] neg_hi:[0,1]" for h in (0, 2)]
            o += [red[2*i]] + s.cmul(D[i][0], D[i][1], s.T512c, s.T512s, tmp, False) + [red[2*i+1]] + s.pack(lambda c: F[i][c], D[i][0], D[i][1])
        o.append(f"v_mov_b32 {st[1]}, {st[0]}")
        fin = L(f"""v_permlane16_swap_b32 {st[0]}, {st[1]}
        v_mul_f32 {st[0]}, {fl(1/512)}, {st[0]}
        v_mul_f32 {st[1]}, {fl(1/512)}, {st[1]}
        v_fma_f32 {st[1]}, -{st[0]}, {st[0]}, {st[1]}
        v_max_f32 {st[1]}, 0, {st[1]}
        v_cvt_pk_bf16_f32 {st[1]}, {st[1]}, {st[1]}
        v_lshlrev_b32 {st[1]}, 16, {st[1]}
        v_add_f32 {st[1]}, {fl(1e-5)}, {st[1]}
        v_cvt_pk_bf16_f32 {st[1]}, {st[1]}, {st[1]}
        v_lshlrev_b32 {st[1]}, 16, {st[1]}
        v_sqrt_f32 {st[1]}, {st[1]}
        v_cvt_pk_bf16_f32 {st[1]}, {st[1]}, {st[1]}
        v_lshlrev_b32 {st[1]}, 16, {st[1]}
        v_rcp_f32 {st[1]}, {st[1]}
        v_readlane_b32 {r01[0]}, {st[1]}, 0
        v_readlane_b32 {r01[2]}, {st[1]}, 32""")
        mf = cat([f"{M16} {D[i][0]}, {F[i]}, {s.FWr}, 0", f"{M16} {D[i][1]}, {F[i]}, {s.FWi}, 0", f"{M16} {Sp[i][0]}, {F[i]}, {s.SAr}, 0", f"{M16} {Sp[i][1]}, {F[i]}, {s.SAi}, 0"] for i in range(2))
        for k in range(8): o += [mf[k], fin[2*k], fin[2*k+1]]
        o += [f"v_mul_f32 {d[2*i]}, {r01[2*i]}, {s.sgn}" for i in range(2)]
        for i in range(2):
            o += [f"v_cndmask_b32 {D[i][x][0]}, {D[i][x][0]}, {Sp[i][x][0]}, {s.mq0}" for x in range(2)]
            for h in (0, 2): o += [f"v_pk_mul_f32 {D[i][0][h:h+2]}, {D[i][0][h:h+2]}, {r01[2*i:2*i+2]} op_sel_hi:[1,0]", f"v_pk_mul_f32 {D[i][1][h:h+2]}, {D[i][1][h:h+2]}, {d[2*i:2*i+2]} op_sel_hi:[1,0]"]
            o += s.pack(lambda c: P[2*c+i], D[i][0], D[i][1])
        o += [f"ds_write_b64 {s.a_wr[c]}, {P[2*c:2*c+2]}" for c in range(4)]
        s.vfree('aS0r aS0i aS1r aS1i ad atmp aP sel1'); return o
    def a_part2(s):
        F = [s.aF0, s.aF1]; D = s.aD; st = s.ast; piv = s.apiv
        o = [f"ds_read_b128 {F[t]}, {s.a_rd} offset:{t*33*16}" for t in range(2)]
        o += L(f"""v_sub_f32 {st[2]}, {piv[0]}, {st[0]}
        v_sub_f32 {st[3]}, {piv[1]}, {st[0]}
        v_cvt_pk_bf16_f32 {st[2]}, {st[2]}, {st[3]}
        v_lshlrev_b32 {st[3]}, 16, {st[2]}
        v_and_b32 {st[2]}, 0xffff0000, {st[2]}
        s_lshl_b32 {s.t0}, {s.p}, 7
        s_lshl2_add_u32 {s.xo2}, {s.w}, {s.t0}""")
        o.append(f"s_mov_b64 exec, 2\n v_mov_b32 {st[1]}, {st[3]}\n s_mov_b32 exec_lo, 0\n s_mov_b32 exec_hi, 2\n v_mov_b32 {st[1]}, {st[2]}\n s_mov_b64 exec, -1")
        for t in range(2): o += [f"s_waitcnt lgkmcnt({1-t})", f"{M16} {D[t][0]}, {F[t]}, {s.A3r}, 0", f"{M16} {D[t][1]}, {F[t]}, {s.A3i}, 0"]
        wst = ["@wait W", f"ds_write_b128 {s.wso}, {s.wraw[0:4]}", f"ds_write_b128 {s.wso2}, {s.wraw[4:8]}"]
        pk = cat(s.pack(lambda c: F[t][c], D[t][0], D[t][1]) + [f"ds_write_b128 {(s.a_st0, s.a_st1)[t]}, {F[t]}"] for t in range(2))
        Q = [D[0][0], D[0][1], D[1][0], D[1][1]]
        rd = [f"ds_read_b128 {Q[z]}, {s.xord} offset:{2*XOS*z}" for z in range(4)]
        sts = [f"s_mov_b32 exec_lo, 3\n s_mov_b32 exec_hi, 3\n buffer_store_dword {st[1]}, {s.rms}, {s.sws}, {s.xo2} offen sc1 ;@x1\n s_mov_b64 exec, -1"]
        sts += [(f"s_add_u32 {s.x1o}, {s.x1o}, 4096\n " if z else "") + f"buffer_store_dwordx4 {Q[z]}, {s.xost}, {s.sws}, {s.x1o} offen sc1 ;@x1" for z in range(4)]
        return o, wst, pk, rd, sts
    def g1_rd_setup(s):
        wa = s.v('g1wa', 6); xa = s.v('g1xa', 4); s.ss('tau0 dtau'); s.a('ones', 4); s.a('xf', 32); s.a('wf', 24); s.vs('xw xr_')
        sc = L(f"""s_and_b32 {s.t0}, {s.w}, 1
        s_mul_i32 {s.tau0}, {s.t0}, 3
        s_and_b32 {s.t1}, {s.w}, 2
        s_add_u32 {s.tau0}, {s.tau0}, {s.t1}
        s_sub_u32 {s.dtau}, 1, {s.t1}
        v_mov_b32 {s.xw}, 0x3f803f80""") + [f"v_accvgpr_write_b32 {s.ones[c]}, {s.xw}" for c in range(4)] + L(f"""s_lshl_b32 {s.t0}, {s.w}, 10
        s_add_u32 {s.t0}, {s.t0}, {L_XCH}
        v_add_u32 {s.xw}, {s.t0}, {s.l16}
        s_xor_b32 {s.t0}, {s.w}, 2
        s_lshl_b32 {s.t0}, {s.t0}, 10
        s_add_u32 {s.t0}, {s.t0}, {L_XCH}
        v_add_u32 {s.xr_}, {s.t0}, {s.l16}""")
        fix = [f"s_mov_b32 {s.t0}, {s.tau0}"]
        for i in range(3):
            fix += L(f"""s_and_b32 {s.t1}, {s.t0}, 1
            s_lshl_b32 {s.t1}, {s.t1}, 5
            v_xor_b32 {wa[i]}, {s.t1}, {s.wa0}
            s_lshr_b32 {s.t1}, {s.t0}, 1
            v_lshl_add_u32 {wa[i]}, {s.t1}, 6, {wa[i]}
            v_add_u32 {wa[3+i]}, 65536, {wa[i]}
            s_add_u32 {s.t0}, {s.t0}, {s.dtau}""")
        fix += L(f"""s_and_b32 {s.t0}, {s.m0b}, 16384
        v_add_u32 {xa[0]}, {s.t0}, {s.xa0}
        v_xor_b32 {xa[1]}, 64, {xa[0]}
        v_add_u32 {xa[2]}, 65536, {xa[0]}
        v_add_u32 {xa[3]}, 65536, {xa[1]}""")
        return sc, fix
    def g1_reads(s, step):
        st = step // 2; ks = step % 2; sl = st % 4; hi = sl // 2; base = (sl % 2) * 32768; b = step % 2
        xr = [f"ds_read_b128 {s.xf[16*b+4*a:16*b+4*a+4]}, {s.g1xa[2*hi+ks]} offset:{base + (a//2)*8192 + (a%2)*2048}" for a in range(4)]
        wr = [[f"ds_read_b64_tr_b16 {s.wf[12*b+4*i+2*h:12*b+4*i+2*h+2]}, {s.g1wa[3*hi+i]} offset:{base + (2*ks+h)*8192}" for h in range(2)] for i in range(3)]
        return wr[0] + xr + wr[1] + wr[2]
    def g1_mfmas(s, step):
        b = step % 2; o = []; z = lambda acc: acc if step else 0
        for i in range(3):
            wf = s.wf[12*b+4*i:12*b+4*i+4]
            if i < 2 and (step < 2 or not opt('xc', 0)): acc = s.accc[4*i:4*i+4]; o.append(f"{M16} {acc}, {wf}, {s.ones}, {z(acc)}")
            for a in range(4): acc = s.acc1[16*i+4*a:16*i+4*a+4]; o.append(f"{M16} {acc}, {wf}, {s.xf[16*b+4*a:16*b+4*a+4]}, {z(acc)}")
        return o
    def g1_step(s, step, P):
        A = s.A; A(P['head'][step])
        nx = step // 2 + 1
        A("@wait lgkm=0 " + (f"st{nx} " if step % 2 and nx < 8 else "") + P['also'][step])
        if step % 2 or step in P['bar']: A("s_barrier")
        if step in (4, 8): s.stamp(f's{step}')
        s.stamp(f'.g{step}')
        r = s.g1_reads(step + 1) if step < 15 else []; e = glue(P['extra'][step]); fill = list(P['first'][step]); k = 0
        while r or e:
            fill.append(e.pop(0) if e and (k % 3 == 2 or not r) else r.pop(0)); k += 1
        fill += P['last'][step]
        mf = s.g1_mfmas(step)
        for i, m in enumerate(mf):
            A(m); left = len(mf) - i; k = -(-len(fill) // left) if len(fill) > left else 1
            A(fill[:k]); fill = fill[k:]
    def h_offsets(s):
        so = s.sg('hst', 3, 1)
        o = L(f"""s_lshr_b32 {s.t0}, {s.w}, 1
        s_lshl1_add_u32 {s.t0}, {s.rb1}, {s.t0}
        s_lshl_b32 {s.mlo}, {s.t0}, 10
        s_mul_i32 {s.t0}, {s.t0}, {86*2048}
        s_add_u32 {s.t0}, {s.t0}, {WS_H}
        s_mul_i32 {s.t1}, {s.fs1}, 6
        s_add_u32 {s.t1}, {s.t1}, {s.tau0}""")
        for i in range(3):
            o += L(f"s_lshl_b32 {so[i]}, {s.t1}, 11\n s_add_u32 {so[i]}, {so[i]}, {s.t0}\n s_cmp_lt_u32 {s.t1}, 86\n s_cselect_b32 {so[i]}, {so[i]}, {WS_SIZE}")
            if i < 2: o.append(f"s_add_u32 {s.t1}, {s.t1}, {s.dtau}")
        return o
    def g1_epilogue(s):
        mm = s.g1m; P = s.v('g1P', 24); o = []
        for n, (i, M) in enumerate(((0, 0), (0, 1), (1, 0), (1, 1), (2, 0), (2, 1))):
            if n == 2: o += ["s_waitcnt lgkmcnt(0)", "s_barrier", f"ds_read_b128 {s.accc[8:12]}, {s.xr_}"]
            if n == 4: o.append("s_waitcnt lgkmcnt(0)")
            Q = P[4*n:4*n+4]; acc = [s.acc1[16*i+4*(2*M+e):16*i+4*(2*M+e)+4] for e in range(2)]
            for e in range(2):
                mo = 2*M + 4*e
                o += [f"v_pk_fma_f32 {acc[e][h:h+2]}, {s.accc[4*i+h:4*i+h+2]}, {mm[mo:mo+2]}, {acc[e][h:h+2]} op_sel_hi:[1,0,1]" for h in (0, 2)]
            o += [f"v_cvt_pk_bf16_f32 {Q[2*e+h]}, {acc[e][2*h]}, {acc[e][2*h+1]}" for e in range(2) for h in range(2)]
            o += [f"v_pk_max_i16 {Q[c]}, {Q[c]}, 0" for c in (0, 2, 1, 3)]
            o += [f"v_permlane16_swap_b32 {Q[0]}, {Q[2]}", f"v_permlane16_swap_b32 {Q[1]}, {Q[3]}", f"buffer_store_dwordx4 {Q}, {s.hla}, {s.sws}, {s.hst[i]} offen offset:{1024*M} sc1 ;@h"]
        return o
    def b_setup(s):
        s.v('b_lin'); s.v('b_wa', 2); s.v('IVr', 4); s.v('IVi', 4); s.ss('go y1o')
        g = L(f"""s_lshl_b32 {s.go}, {s.w}, 9
        s_add_u32 {s.go}, {s.go}, {s.xcd}
        s_lshl_b32 {s.go}, {s.go}, 11
        s_lshl_b32 {s.t0}, {s.j}, 6
        v_xor_b32 {s.b_ga}, {s.t0}, {s.b_ga}""")
        o = L(f"""s_add_u32 {s.t0}, {s.ab[3]}, {L_UO}
        v_add_u32 {s.b_lin}, {s.t0}, {s.l16}
        s_lshl_b32 {s.y1o}, s2, 13
        s_add_u32 {s.y1o}, {s.y1o}, {s.ab[3]}
        s_add_u32 {s.y1o}, {s.y1o}, {WS_Y1}
        s_lshl_b32 {s.t0}, {s.w}, 3
        s_lshl2_add_u32 {s.t1}, {s.w}, 32
        v_xor_b32 {s.b_wa[0]}, {s.t1}, {s.b_ua}
        v_xor_b32 {s.b_ua}, {s.t0}, {s.b_ua}
        v_xor_b32 {s.b_uo}, {s.t0}, {s.b_uo}
        v_xor_b32 {s.b_wa[1]}, 16, {s.b_wa[0]}
        s_and_b32 {s.t0}, {s.j}, {7*SWZ}
        s_lshl_b32 {s.t0}, {s.t0}, 7
        v_xor_b32 {s.b_st}, {s.t0}, {s.b_st}""")
        o += cat([f"v_xor_b32 {s.IVr[c]}, 0x80000000, {s.FWr[c]}", f"v_xor_b32 {s.IVi[c]}, 0x8000, {s.FWi[c]}"] for c in range(4))
        return g, o
    def b_gather(s):
        return [f"s_lshl1_add_u32 m0, {s.ab[3]}, {L_U}"] + \
               [(f"s_add_u32 {s.go}, {s.go}, {16*16384-1024}\n " if z else "") + f"buffer_load_dwordx4 {s.b_ga}, {s.sws}, {s.go} offen offset:{1024*z} sc1 lds ;@gx" for z in range(4)]
    def b_parts(s):
        F = s.v('bF', 8); W = s.v('bW', 8); D = [[s.v(f'bD{i}{x}', 4) for x in 'ri'] for i in range(2)]; tmp = s.v('btmp', 4); X = s.v('bX', 16); O = W
        U = [F[0:4], F[4:8]]
        rd = [f"ds_read_b64 {F[2*pos:2*pos+2]}, {s.b_ua} offset:{1024*c}" for pos, c in enumerate((0, 2, 1, 3))]
        rd += [f"ds_read2st64_b32 {W[4*x+2*h:4*x+2*h+2]}, {s.b_wa[x]} offset0:{8*h} offset1:{8*h+4}" for x in range(2) for h in range(2)]
        sw = [f"v_swap_b32 {F[1]}, {F[4]}", f"v_swap_b32 {F[3]}, {F[6]}"]
        u0 = [f"v_lshlrev_b32 {X[k]}, 16, {W[k]}" for k in range(8)]; u1 = [f"v_and_b32 {X[8+k]}, 0xffff0000, {W[k]}" for k in range(8)]
        stages = [(True, s.FWr, s.FWi), (False, s.FWr, s.FWi), (True, s.IVr, s.IVi), (False, s.IVr, s.IVi)]
        def mm(k, i):
            dA, cr, ci = stages[k]; return [f"{M16} {D[i][x]}, {U[i]}, {cc}, 0" if dA else f"{M16} {D[i][x]}, {cc}, {U[i]}, 0" for x, cc in enumerate((cr, ci))]
        def vv(k, i):
            t = [(s.T256c, s.T256s, False), (X[8*i:8*i+4], X[8*i+4:8*i+8], True), (s.T256c, s.T256s, True)]
            return (s.cmul(D[i][0], D[i][1], t[k][0], t[k][1], tmp, t[k][2]) if k < 3 else []) + s.pack(lambda c: U[i][c] if k < 3 else O[2*c+i], D[i][0], D[i][1])
        o = u0[:2] + mm(0, 0) + mm(0, 1) + u0[2:8] + vv(0, 0) + u1[:2] + mm(1, 0) + u1[2:4] + vv(0, 1) + u1[4:6] + mm(1, 1) + u1[6:8] + vv(1, 0)
        for k in (2, 3): o += mm(k, 0) + vv(k-1, 1) + mm(k, 1) + vv(k, 0)
        o += vv(3, 1) + [f"ds_write_b64 {s.b_uo}, {O[2*c:2*c+2]} offset:{512*c}" for c in range(4)]
        rd2 = [f"ds_read_b128 {F[4*t:4*t+4]}, {s.b_lin} offset:{1024*t}" for t in range(2)]
        st = [f"buffer_store_dwordx4 {F[4*t:4*t+4]}, {s.b_st}, {s.sws}, {s.y1o} offen offset:{1024*t} sc1 ;@y1" for t in range(2)]
        return rd, sw, o, rd2, st
    def w2_setup(s):
        vo = s.v('g2vo', 3); so = s.hso; s.sg('sw2o'); s.vs('pfo pfd')
        o = [f"v_add_u32 {vo[z]}, {(z+1)*(8192-1024)}, {s.vo2}" for z in range(3)]
        o += L(f"s_mul_i32 {s.sw2o}, {s.w}, {352*1024}\n s_lshl_b32 {s.t0}, {s.fs}, 7\n s_add_u32 {s.sw2o}, {s.sw2o}, {s.t0}")
        if opt('rot2', 'x') == '0': o += [f"s_mov_b32 {so[i]}, {4096*i}" for i in range(11)]
        elif opt('rot2', 'x')[0] == 'k':
            r2 = opt('rot2', 'x'); mk = int(r2[-1])
            o += L(f"s_xor_b32 {s.t0}, {s.j if 'j' in r2 else 0}, {s.fs if 'f' in r2 else 0}\n s_and_b32 {s.t0}, {s.t0}, {mk}\n s_and_b32 {s.t1}, {s.t0}, 1")
            for i in range(11):
                o.append(f"s_xor_b32 {so[i]}, {s.t0 if i < 8 else s.t1}, {i}" if i < 10 else f"s_mov_b32 {so[i]}, 10")
                if 'x' in r2: o += L(f"s_add_u32 {so[i]}, {so[i]}, {s.xcd}\n s_sub_u32 {s.t2}, {so[i]}, 11\n s_min_u32 {so[i]}, {so[i]}, {s.t2}")
                o.append(f"s_lshl_b32 {so[i]}, {so[i]}, 12")
        else:
            o.append(f"s_lshl_b32 {so[0]}, {s.xcd}, 12")
            for i in range(1, 11):
                o.append(f"s_add_u32 {so[i]}, {so[i-1]}, 4096")
                if i >= 4: o += [f"s_cmp_eq_u32 {so[i]}, {11*4096}", f"s_cselect_b32 {so[i]}, 0, {so[i]}"]
        pf = L(f"""s_mul_i32 {s.t0}, {s.j}, 43
        s_mul_i32 {s.t1}, {s.w}, 11
        s_add_u32 {s.t0}, {s.t0}, {s.t1}
        v_min_u32 {s.pfo}, 10, {s.n}
        v_add_lshl_u32 {s.pfo}, {s.t0}, {s.pfo}, 10""")
        if opt('g2map', 0): pf += L(f"s_and_b32 {s.t0}, {s.xcd}, 1\n s_xor_b32 {s.t0}, {s.t0}, {opt('g2map', 0) - 1}\n s_lshl_b32 {s.t0}, {s.t0}, 24\n v_add_u32 {s.pfo}, {s.t0}, {s.pfo}")
        return o, pf
    def pf3(s): return [f"s_mov_b64 exec, 0xffff\n buffer_load_dword {s.pfd}, {s.pfo}, {s.sw2}, 0 offen offset:384 ;@pf\n s_mov_b64 exec, -1"]
    def w2dma(s, hb):
        pos = hb % 8
        return [f"s_add_u32 m0, {s.m0b}, {(pos//2)*32768 + (pos%2)*4096}", f"s_lshl3_add_u32 {s.t2}, {s.hso[hb]}, {s.sw2o}"] + \
               [f"buffer_load_dwordx4 {s.g2vo[z-1] if z else s.vo2}, {s.sw2}, {s.t2} offen offset:{1024*z} lds ;@wb{hb}" for z in range(4)]
    def w2read(s, hb):
        pos = hb % 8; slot = pos // 2; dst = s.w2f[16*hb:16*hb+16]
        return [f"ds_read_b64_tr_b16 {dst[8*ks+4*nt+2*i:8*ks+4*nt+2*i+2]}, {s.g2ra[2*(slot//2)+nt]} offset:{(slot%2)*32768 + (pos%2)*4096 + ks*2048 + i*512}"
                for ks in range(2) for nt in range(2) for i in range(2)]
    def g2_setup(s):
        ra = s.v('g2ra', 4); s.v('rv', 4); s.v('rn', 4); s.sg('rowo', 2); s.sg('so_', 2); r = s.sg('sh', 4, 4); m = s.v('_m'); s.v('CGr', 4); s.v('CGi', 4); s.sg('gyo', 2)
        first = L(f"v_add_u32 {ra[0]}, {s.m0b}, {s.ra2}\n v_xor_b32 {ra[1]}, 64, {ra[0]}\n v_add_u32 {ra[2]}, 65536, {ra[0]}\n v_add_u32 {ra[3]}, 65536, {ra[1]}")
        o = L(f"""s_lshl_b32 {s.t0}, {s.w}, 14
        s_lshl_b32 {s.t1}, {s.p}, 5
        v_xor_b32 {s.c_ga}, {s.t1}, {s.c_ga}
        s_add_u32 {s.gyo[0]}, {s.t0}, {WS_Y1}
        s_add_u32 {s.gyo[1]}, {s.gyo[0]}, {8192-1024}
        s_lshl_b32 {s.t0}, {s.w}, 8
        v_add_u32 {s.c_ua}, {s.t0}, {s.c_ua}
        v_add_u32 {s.c_ew}, {s.ab[1]}, {s.c_ew}""") + [f"v_add_u32 {s.c_er[c]}, {s.ab[0]}, {s.c_er[c]}" for c in range(4)]
        o += L(f"v_lshlrev_b32 {m}, 30, {s.q}\n v_and_b32 {m}, 0x80000000, {m}")
        o += cat([f"v_xor_b32 {s.CGr[c]}, {s.IVr[c]}, {m}", f"v_xor_b32 {s.CGi[c]}, {s.IVi[c]}, {m}"] for c in range(4))
        o += L(f"""s_mul_i32 {s.t0}, {s.w}, {RED_S}
        v_add_u32 {s.g2rw}, {s.t0}, {s.g2rw}
        s_mul_i32 {s.t0}, {s.w}, {8*272}
        v_add_u32 {s.g2rr}, {s.t0}, {s.g2rr}
        s_lshl_b32 {s.t0}, {s.rb}, 10
        s_and_b32 {s.t1}, {s.w}, 1
        s_lshl4_add_u32 {s.t0}, {s.t1}, {s.t0}
        s_lshr_b32 {s.t1}, {s.w}, 1
        s_lshl2_add_u32 {s.t0}, {s.t1}, {s.t0}
        s_add_u32 {s.t0}, {s.t0}, {WS_R}
        v_lshrrev_b32 {m}, 3, {s.l}
        v_lshl_add_u32 {s.rn[0]}, {m}, 7, {s.t0}
        s_lshl_b32 {s.t0}, {s.w}, 5
        s_add_u32 {s.t0}, {s.t0}, {s.rb}
        s_lshl_b32 {s.t0}, {s.t0}, 6
        s_add_u32 {s.t0}, {s.t0}, {s.fs}
        s_lshl_b32 {s.rowo[0]}, {s.t0}, 7
        s_add_u32 {s.rowo[1]}, {s.rowo[0]}, {4*262144}
        s_add_u32 {s.so_[0]}, {s.rowo[0]}, {WS_S}
        s_add_u32 {s.so_[1]}, {s.rowo[1]}, {WS_S}
        s_mul_i32 {s.t0}, {s.rb}, 86
        s_mul_i32 {s.t1}, {s.w}, 22
        s_add_u32 {s.t0}, {s.t0}, {s.t1}
        s_lshl_b32 {s.t0}, {s.t0}, 11
        s_add_u32 {s.t0}, {s.t0}, {WS_H}
        s_add_u32 {r[0]}, {s.sws[0]}, {s.t0}
        s_addc_u32 {r[1]}, {s.sws[1]}, 0
        s_cmp_eq_u32 {s.w}, 3
        s_cselect_b32 {r[2]}, 20, 22
        s_lshl_b32 {r[2]}, {r[2]}, 11
        s_mov_b32 {r[3]}, 0x20000""")
        s.vfree('_m'); return first, o
    def hload(s, idx):
        mt, i = divmod(idx, 22); sl = idx % s.NH
        return f"buffer_load_dwordx4 {s.hf[4*sl:4*sl+4]}, {s.hla}, {s.sh}, {s.hso[i//2]} offen offset:{(i%2)*2048 + mt*1024} sc1 ;@h{idx}"
    def red_write(s, mt): return [f"ds_write_b128 {s.g2rw}, {s.acc2[32*mt+4*k:32*mt+4*k+4]} offset:{mt*4*RED_S + 32*k}" for k in range(8)]
    def red_read(s, mt): return [f"ds_read_b128 {s.acc2[32*mt+4*k:32*mt+4*k+4]}, {s.g2rr} offset:{mt*4*RED_S + (k//2)*RED_S + (k%2)*16}" for k in range(8)]
    def unpack(s, dst, src): return cat([f"v_lshlrev_b32 {dst[2*c]}, 16, {src[c]}", f"v_and_b32 {dst[2*c+1]}, 0xffff0000, {src[c]}"] for c in range(src.n))
    def finish(s, mt, pk, sr):
        a = s.acc2[32*mt:32*mt+32]; xf = s.fx[8*mt:8*mt+8]; sf = s.fs_[8*mt:8*mt+8]
        def op(name, d, x, y, z=None, bc=False):
            if pk: return [f"v_pk_{name}_f32 {d[h:h+2]}, {x[h:h+2]}, {y if bc else y[h:h+2]}" + (f", {z[h:h+2]}" if z else "") + (" op_sel_hi:[1,0]" if bc else "") for h in range(0, 8, 2)]
            yy = lambda c: (y if isinstance(y, str) else y[0]) if bc else y[c]
            return [f"v_{name}_f32 {d[c]}, {yy(c)}, {x[c]}" + (f", {z[c]}" if z else "") for c in range(8)]
        o, e = a[0:8], a[8:16]
        p1 = op('add', o, o, e) + op('add', a[16:24], a[16:24], a[24:32]) + op('add', o, o, a[16:24]) + op('mul', e, o, s.rn[2*mt:2*mt+2], bc=True)
        p1 += [f"v_exp_f32 {e[c]}, {e[c]}" for c in range(8)]
        p1 += op('mul', o, o, sf) if sr else op('mul', o, o, s.rv[2*mt:2*mt+2], bc=True)
        p1 += op('add', e, e, '1.0', bc=True) + [f"v_rcp_f32 {e[c]}, {e[c]}" for c in range(8)]
        if not sr: p1 += op('mul', o, o, e)
        p3 = op('fma', o, o, e if sr else sf, xf) + [f"v_cvt_pk_bf16_f32 {a[16+c]}, {o[2*c]}, {o[2*c+1]}" for c in range(4)]
        p3.append(f"buffer_store_dwordx4 {a[16:20]}, {s.g2st}, {s.sout}, {s.rowo[mt]} offen sc1 ;@out")
        return p1, p3
    def s_fetch(s, S):
        ld = [f"buffer_load_dwordx4 {S[4*m:4*m+4]}, {s.g2st}, {s.sws}, {s.so_[m]} offen sc1" for m in range(2)]
        ck = [f"v_max3_u32 {s.pv}, {S[0]}, {S[1]}, {S[2]}", f"v_max3_u32 {s.pv2}, {S[3]}, {S[4]}, {S[5]}", f"v_max3_u32 {s.pv}, {s.pv}, {S[6]}, {S[7]}", f"v_max_u32 {s.pv}, {s.pv}, {s.pv2}",
              f"v_cmp_eq_u32 vcc, -1, {s.pv}"]
        s.tail += L(f"""L_retryS:
        {f"s_add_u32 {s.spin}, {s.spin}, {1 << 24}" if s.cnt else ""}
        s_add_u32 {s.spin2}, {s.spin2}, 1
        s_cmp_ge_u32 {s.spin2}, 400000
        s_cbranch_scc1 L_outS
        s_mov_b64 exec, vcc
        s_sleep {opt('ps', 3)}""") + ld + ["s_waitcnt vmcnt(0)"] + ck + L("s_cbranch_vccnz L_retryS\n L_outS:\n s_mov_b64 exec, -1\n s_branch L_backS")
        return [x + " ;@sl" for x in ld], ["@wait sl"] + ck[:4] + [ck[4] + "\n s_cbranch_vccnz L_retryS\n L_backS:"]
    def c_gather(s):
        return [f"s_add_u32 m0, {s.ab[3]}, {L_U}"] + [f"buffer_load_dwordx4 {s.c_ga}, {s.sws}, {s.gyo[t]} offen offset:{1024*t} sc1 lds ;@gy" for t in range(2)]
    def c_parts(s):
        F = s.v('cF', 8); D = [[s.v(f'cD{i}{x}', 4) for x in 'ri'] for i in range(2)]; Sp = [[s.v(f'cS{i}{x}', 4) for x in 'ri'] for i in range(2)]; tmp = s.v('ctmp', 4)
        U = [F[0:4], F[4:8]]; sw = ["s_waitcnt lgkmcnt(0)", f"v_swap_b32 {F[1]}, {F[4]}", f"v_swap_b32 {F[3]}, {F[6]}"]
        o = [f"ds_read_b64 {F[2*pos:2*pos+2]}, {s.c_ua} offset:{1024*c}" for pos, c in enumerate((0, 2, 1, 3))] + ['@1'] + sw
        o += cat([f"{M16} {D[i][0]}, {s.C3r}, {U[i]}, 0", f"{M16} {D[i][1]}, {s.C3i}, {U[i]}, 0"] for i in range(2)) + ['@2']
        o += cat(s.pack(lambda c: U[i][c], D[i][0], D[i][1]) + [f"ds_write_b128 {s.c_ew}, {U[i]} offset:{16*i}"] for i in range(2))
        o += ['@3', "s_waitcnt lgkmcnt(0)", "s_barrier"]
        o += [f"ds_read_b64 {F[2*pos:2*pos+2]}, {s.c_er[c]}" for pos, c in enumerate((0, 2, 1, 3))] + ['@4'] + sw
        o += cat([f"{M16} {D[i][0]}, {U[i]}, {s.CGr}, 0", f"{M16} {D[i][1]}, {U[i]}, {s.CGi}, 0", f"{M16} {Sp[i][0]}, {U[i]}, {s.SCr}, 0", f"{M16} {Sp[i][1]}, {U[i]}, {s.SCi}, 0"] for i in range(2)) + ['@5']
        for i in range(2):
            o += [f"v_cndmask_b32 {D[i][x][0]}, {D[i][x][0]}, {Sp[i][x][0]}, {s.mq0}" for x in range(2)]
            if i: o += [f"{M16} {D[0][0]}, {U[0]}, {s.C1x}, 0", f"{M16} {D[0][1]}, {U[0]}, {s.C1y}, 0"]
            o += s.cmul(D[i][0], D[i][1], s.T512c, s.T512s, tmp, True) + s.pack(lambda c: U[i][c], D[i][0], D[i][1])
        Q = [Sp[0][0], Sp[1][0]]
        cv = lambda i: [f"v_cvt_pk_bf16_f32 {Q[i][2*y+h]}, {D[i][y][2*h]}, {D[i][y][2*h+1]}" for y in range(2) for h in range(2)]
        stt = lambda i: [f"v_min_u32 {Q[i][c]}, -2, {Q[i][c]}" for c in (0, 2, 1, 3)] + [f"v_permlane16_swap_b32 {Q[i][0]}, {Q[i][2]}", f"v_permlane16_swap_b32 {Q[i][1]}, {Q[i][3]}", f"buffer_store_dwordx4 {Q[i]}, {s.s_st}, {s.sws}, {s.xo[i]} offen sc1 ;@s"]
        c0 = cv(0)
        o += c0[:2] + [f"{M16} {D[1][0]}, {U[1]}, {s.C1x}, 0", f"{M16} {D[1][1]}, {U[1]}, {s.C1y}, 0"] + c0[2:] + ['@6'] + stt(0) + cv(1) + stt(1)
        return o
    def build(s):
        A = s.A
        s.entry(); nso = opt('nso', 3); A(s.so_calc(0, nso))
        A(f"""s_waitcnt lgkmcnt(0)
        buffer_load_dwordx4 {s.l16}, {s.sx}, {s.xo[0]} offen lds ;@xr
        buffer_load_dwordx4 {s.l16}, {s.sx}, {s.xo[1]} offen offset:1024 lds ;@xr
        s_mov_b64 {s.sx1[0:2]}, {s.sx[0:2]}
        s_cmp_eq_u32 {s.fs1}, 15
        s_cselect_b64 {s.sw1[0:2]}, {s.sw2[0:2]}, {s.sw1[0:2]} ;@K""")
        s.stamp('karg'); s.S.free = [0, 1] + s.S.free
        tr = s.tables(); W = s.v('wraw', 8); s.v('vtag'); s.ss('xo2 mlo')
        halves = cat(s.g1_halves(st) for st in range(8)); npre = opt('npre', 6)
        asc = s.a_scalars()
        wl = [f"buffer_load_dwordx4 {W[0:4]}, {s.g1vw[3]}, {s.swr}, {s.wl} offen ;@W", f"buffer_load_dwordx4 {W[4:8]}, {s.g1vw[3]}, {s.swi}, {s.wl} offen ;@W"]
        q = glue(cat(halves[:npre])); wpos = opt('wpos', 7); q = q[:wpos] + wl + q[wpos:]
        n0 = opt('n0', 4); assert n0 <= (wpos if opt('vwc', 0) else 4); A(q[:n0]); q = q[n0:]
        A(s.fwarm()); A(f"s_mov_b32 {s.t0}, {EP}\n buffer_load_dword {s.vtag}, off, {s.sws}, {s.t0} sc1 ;@tag")
        rsc, rfix = s.g1_rd_setup()
        su = asc + s.const_A3() + s.so_calc(nso, 8) + rsc + s.flags_setup(); k = min(opt('sb', 60), len(su)); assert k >= len(asc)
        while k < len(su) and su[k].startswith('s_cselect'): k += 1
        A(su[:k]); su = su[k:]
        A("@wait tb\n s_barrier"); s.stamp('tb')
        A(tr[:12])
        A(f"""s_waitcnt lgkmcnt(8)
        v_add_u32 {s.a_trad}, {s.ab[3]}, {s.a_trad}
""")
        if not opt('vwc', 0):
            A(f"s_cmp_eq_u32 {s.fs1}, 15\n s_cselect_b64 {s.mq0}, -1, 0"); A([f"v_cndmask_b32 {s.g1vw[z]}, {s.g1vw[z]}, {s.l16}, {s.mq0}" for z in range(3)]); A(f"s_mov_b64 {s.mq0}, 0xffff")
        n1 = opt('n1', 5)
        A(sprinkle(tr[12:] + su, q[:n1], 0, opt('e0', 8))); q = q[n1:]
        wdone = 'W' in A.vmlog and not any(';@W' in x for x in q)
        if wdone: s.sfree('swr swi wl')
        s.vfree('cpf _tad')
        RL = opt('rl', 0)
        A("@wait xr lgkm=0"); s.stamp('xin')
        na = opt('na', 6)
        A(sprinkle(s.a_part1(s.a_fix()), q[:na], opt('f1a', 50), opt('e1', 18))); q = q[na:]
        assert 'st3' not in A.vmlog
        A(rfix[:opt('rf', 12)]); A("s_waitcnt lgkmcnt(0)\n s_barrier"); s.stamp('a1')
        rf2 = rfix[opt('rf', 12):]
        p2, wst_, pk, xrd, xst = s.a_part2()
        if RL & 1: rf2 = rf2 + s.reloc_prod(s.xost, s.p, 0xff000000, 0xff000000, f"s_bitcmp0_b32 {s.w}, 0")
        A(p2[:2] + rf2); A(sprinkle(p2[2:], q[:opt('na2', 3)], 4, 3)); q = q[opt('na2', 3):]
        P = dict(head={t: [] for t in range(16)}, also={t: '' for t in range(16)}, extra={t: [] for t in range(16)}, first={t: [] for t in range(16)}, last={t: [] for t in range(16)}, bar=set())
        head, also, extra = P['head'], P['also'], P['extra']
        f1 = opt('f1', 4); p1 = opt('p1', 9); c1s = opt('c1', 12); pf3 = opt('pf3', 6)
        gsc, bsu = s.b_setup(); wsu, pfs = s.w2_setup()
        if RL & 1: gsc += s.reloc_cons(s.b_ga, s.j, 1, 2)
        if RL & 2: wsu += s.reloc_prod(s.b_st, s.j, 0xff000000, 0)
        if RL & 8:
            s.v('hla'); wsu += [f"v_mov_b32 {s.hla}, {s.l16}"] + L(f"s_lshr_b32 {s.t1}, {s.w}, 1\n s_lshl1_add_u32 {s.t1}, {s.rb1}, {s.t1}") + s.reloc_prod(s.hla, s.t1, 0xff000000, 0)
        else: s.hla = s.l16
        if RL: s.v('_keep')
        wst = [int(x) for x in opt('wst', '11,12,14,15').split(',') if x]
        hA, hB, hC = opt('hA', -2), opt('hB', -2), opt('hC', -2); head[-1] = []; head[-2] = []
        head[opt('hT', f1)] += s.tag_fix(); head[hA] += pfs + gsc + s.h_offsets(); head[hB] += wsu
        if hC != 15: head[hC] += bsu
        assert hA <= min(c1s, pf3 or 99, hB) and hB <= min(wst + [15])
        xin = opt('xin', 3)
        if xin == 0: A(pk + head[-2] + wst_ + xrd + q + xst[:1] + cat([f"s_waitcnt lgkmcnt({3-z})", xst[1+z]] for z in range(4)) + head[-1])
        elif xin == 3: A(pk + sprinkle(head[-2], q, 0, opt('e6', 12)) + wst_ + xrd + xst[:1] + cat([f"s_waitcnt lgkmcnt({3-z})", xst[1+z]] for z in range(4)) + head[-1])
        elif xin == 1: A(pk + head[-2] + wst_ + xrd + q + head[-1]); extra[0] += xst
        else:
            xs = opt('xs', 0); A(pk + sprinkle(head[-2] + head[-1], q, 0, opt('e6', 12)))
            also[xs] += ' W'; P['first'][xs] += wst_[1:]; P['last'][xs] += xrd; extra[xs+1] += xst; assert f1 > xs + 1
        if not wdone: s.sfree('swr swi wl')
        s.vfree('aF0 aF1 a_trad sel0 a_wr B1r B1i SAr SAi A3r A3i mn0 sgn a_rd a_st0 a_st1 wa0 xa0'); s.sfree('apiv')
        s.v('acc1', 48); s.v('accc', 12); mm = s.v('g1m', 8)
        s.stamp('a2')
        t = opt('o3', 0)
        for h in range(npre, 16):
            t = max(t, 2*(h//2 - 4) + 1)
            if t == c1s and opt('gfirst', 1): t += 1
            if xin == 2 and t == opt('xs', 0) + 1 and opt('xfirst', 1): t += 1
            assert t <= 2*(h//2) - 2, (h, t)
            extra[t] += halves[h]; t += 1
        also[f1] += ' x1'; extra[f1] = s.flag('f1', s.fo) + extra[f1]
        if pf3: extra[pf3] += s.pf3()
        i1, c1 = s.poll('p1', s.pa, 0)
        head[c1s] += c1; extra[c1s] = [f"buffer_load_dwordx4 {mm[0:4]}, {s.mla}, {s.sws}, {s.mlo} offen sc1 ;@m"] + s.b_gather() + extra[c1s]; P['bar'].add(c1s); P['bar'].add(f1)
        extra[p1] = i1 + extra[p1]
        for hb, st in enumerate(wst):
            assert st >= 9 + 2*(hb//2); extra[st] += s.w2dma(hb)
        P['last'][15] += [''] * max(0, 9 - len(glue(extra[15]))) + [f"ds_write_b128 {s.xw}, {s.accc[0:4]}", "@wait m", f"v_mov_b32 {mm[4]}, {mm[1]}", f"v_mov_b32 {mm[6]}, {mm[3]}"]
        if hC == 15: P['first'][15] += bsu
        A("@wait st0\n s_barrier"); s.stamp('in0'); A(s.g1_reads(0))
        for step in range(16):
            s.g1_step(step, P)
            if step == opt('xs', 0) + 2: s.vfree('aD0r aD0i aD1r aD1i ast wraw wso wso2 xord xost rms'); s.sfree('x1o xo2')
        s.stamp('g1main')
        brd, bsw, bmain, brd2, bst = s.b_parts()
        nb = len(wst); e0 = opt('ne', 0); nbb = opt('nbb', 2); nd = opt('nd', 1); assert nb + e0 + nbb <= 8 and nb + e0 >= 3
        epi = s.g1_epilogue()
        if opt('gxe', 1):
            k = epi.index('s_barrier'); epi[k-1] = "@wait gx lgkm=0"; epi[k+2:k+2] = brd
        A(sprinkle(epi, glue(cat(s.w2dma(h) for h in range(nb, nb + e0))), opt('ef', 2), opt('ee', 15)))
        clr = s.g1m[0:4]
        sclr = [f"v_mov_b32 {clr[c]}, -1" for c in range(4)] + [f"s_add_u32 {s.xo[0]}, {s.xo[0]}, {WS_S}", f"s_add_u32 {s.xo[1]}, {s.xo[0]}, 262144"] + \
               [f"buffer_store_dwordx4 {clr}, {s.l16}, {s.sws}, {s.xo[i]} offen sc1 ;@sc" for i in range(2)]
        if opt('scp', 1) == 0: A(sclr)
        s.stamp('g1epi')
        if not opt('gxe', 1): A("@wait gx\n s_barrier"); A(brd); A("s_waitcnt lgkmcnt(0)")
        A(bsw); A(sprinkle(bmain, glue(cat(s.w2dma(h) for h in range(nb + e0, nb + e0 + nbb))), opt('bf', 40), opt('e2', 16)))
        if opt('scp', 1) == 1: A(sclr)
        s.vfree('g1m g1P acc1 accc g1wa g1xa g1vx g1vw xw xr_ pfo pfd mla'); s.afree('ones xf wf'); s.sfree('sox sow tau0 dtau sx1 sw1 go mlo')
        hb_ = opt('hearly', 1)
        A(("@wait h lgkm=0" if hb_ == 1 else "s_waitcnt lgkmcnt(0)") + "\n s_barrier"); A(brd2)
        if hb_ == 1: A(s.flag('f2', s.fo2))
        ht = s.v('ht', 2)
        touch = [f"v_lshlrev_b32 {ht[0]}, 7, {s.l}", "s_mov_b64 exec, 0xffff\n" + "\n".join(f"buffer_load_dword {ht[1]}, {ht[0]}, {s.sws}, {s.hst[i]} offen sc1 ;@ht" for i in range(3)) + "\n s_mov_b64 exec, -1"]
        HT = opt('ht', 0); assert not HT or hb_ == 1
        if HT == 1: A(touch)
        s.v('acc2', 64); s.a('w2f', 176); NH = s.NH = opt('nh', 16); s.a('hf', 4*NH)
        X = s.v('fX', 8); S = s.v('fS', 8); pv2 = s.v('pv2')
        g0, g1 = s.g2_setup(); A(g0)
        if RL & 2: g1 += s.reloc_cons(s.c_ga, s.p, 2, 1)
        if RL & 8: g1 += [f"v_mov_b32 {s.hla}, {s.l16}"] + s.reloc_prod(s.hla, s.rb, 0xff000000, 0) + [f"s_mov_b32 {s.sh[2]}, {BIG + 65536}"]
        A("s_waitcnt lgkmcnt(0)"); A(bst); s.stamp('b')
        if HT == 2: A(touch)
        s.vfree('bD0r bD0i bD1r bD1i btmp bX bW b_ua b_wa b_uo T256c T256s b_lin b_ga FWr FWi IVr IVi ra2'); s.sfree('y1o')
        g1.append(f'v_add_u32 {s.pa}, 4096, {s.pa}'); i3, c3 = s.poll('p3', s.pa, 0); pv = s.pv; s.pv = pv2; i2, c2 = s.poll('p2', s.pg2, 0); s.pv = pv
        n1_ = nb + e0 + nbb; rest = list(range(n1_, 11))
        cc = [f"@wait wb{nb-1}"] + sprinkle(g1 + s.const_C3(), cat(s.w2read(h) for h in range(nb)), 0, 2)
        k = min(opt('ca', 70), len(cc))
        while k < len(cc) and cc[k].startswith(('s_cselect', 's_addc')): k += 1
        assert n1_ + nd <= 8
        A(cat(s.w2dma(h) for h in rest[:nd])); A(cc[:k]); s.stamp('pre')
        t0 = s.t0; s.t0 = s.t2
        A("@wait y1\n s_barrier"); A(s.flag('f3', s.fo, F3 - F1)); s.t0 = t0
        if hb_ == 0: A(s.flag('f2', s.fo2))
        s.stamp('ack'); s.vfree('bF b_st')
        xl = [f"buffer_load_dword {s.rv[0]}, {s.rn[0]}, {s.sws}, 0 offen sc1 ;@r", f"buffer_load_dword {s.rv[2]}, {s.rn[0]}, {s.sws}, 0 offen offset:8 sc1 ;@r"] + \
             [f"buffer_load_dwordx4 {X[4*m:4*m+4]}, {s.g2st}, {s.sx}, {s.rowo[m]} offen ;@xt" for m in range(2)]
        cpos = opt('cpos', 18); nlate = opt('nlate', 0); ev = {i: [] for i in range(45)}; xi = opt('xi', -1)
        lo = [h for h in rest[nd:] if h < 8]; hi = [h for h in rest[nd:] if h >= 8]; lateh = hi[len(hi)-nlate:] if nlate else []; hi = hi[:len(hi)-nlate]
        A(sprinkle(cc[k:] + cat(s.w2read(h) for h in range(nb, n1_)), glue(cat(s.w2dma(h) for h in lo)), 0, opt('e5', 8))); A("s_waitcnt lgkmcnt(0)")
        wq = glue(cat(s.w2dma(h) for h in hi)) + (xl if xi == -1 else []); nw = opt('nw', 4)
        A(wq[:nw]); wq = wq[nw:]
        if opt('d2', 0): A(f"s_sleep {opt('d2', 0)}")
        s.stamp('pre3'); A(i2); A(wq)
        if RL & 8:
            assert not nlate
            A(f"s_cmp_eq_u32 {s.w}, 3\n s_cselect_b32 {s.t0}, {9*4096}, -1"); A([f"s_min_u32 {s.hso[i]}, {s.hso[i]}, {s.t0}" for i in range(3 if opt('rot2', 'x') == 'x' else 10, 11)])
        A(c2); s.stamp('f2')
        now = [h for h in rest if h not in lateh]
        early = [h for h in now if A.vmlog.index('p2') > max(i for i, t in enumerate(A.vmlog) if t == f'wb{h}')]
        lead = min(NH, opt('lead', 10)); hq = [s.hload(i) for i in range(lead)]; p3 = opt('p3', -4); c3i = opt('c3', 6)
        if p3 < 0: hq[lead+p3:lead+p3] = i3
        else: ev[p3] += i3
        A(sprinkle(cat(s.w2read(h) for h in early), hq, 0, 3))
        if len(early) < len(now): A(f"@wait wb{now[-1]}"); A(cat(s.w2read(h) for h in now if h not in early))
        ev[c3i] += [f"s_cmp_eq_u32 {s.p}, 0\n s_cselect_b32 {s.t1}, {s.fo}, {WS_SIZE}"] + c3 + ["s_barrier"] + glue(s.c_gather()) + s.flag('ep', s.t1, EP - F1)
        li = opt('li', c3i + 1); assert li > c3i
        for n, x in enumerate(glue(cat(s.w2dma(h) for h in lateh))): ev[min(cpos - 1, li + n // opt('lr', 2))].append(x)
        top = ['@T'] * (NH - lead) + (xl if xi == -2 else [])
        per = [int(x) for x in opt('cq', '1,1,1,1,1,9').split(',')]; cblk = ["@wait gy", "s_barrier"]
        gap = [int(x) for x in opt('gap', '1,0,1,1,0,0').split(',')]; blk = {}; at = cpos; cend = cpos + sum(gap); assert not (lateh and sum(gap))
        for x in s.c_parts():
            if x[0] == '@' and len(x) == 2:
                k = int(x[1]); cblk += top[:per[k-1]]; top = top[per[k-1]:]
                if gap[k-1]: blk[at] = cblk; cblk = []; at += gap[k-1]
                if k == opt('lk', 5) and lateh: cblk += [f"@wait wb{lateh[-1]}"] + cat(s.w2read(h) for h in lateh)
            else: cblk.append(x)
        cblk += top + (["s_waitcnt lgkmcnt(0)"] if lateh else []); blk[at] = cblk
        assert p3 < c3i < cpos <= min([30] + [2*h for h in lateh])
        s.vfree('cF cD0r cD0i cD1r cD1i cS0i cS1i ctmp C3r C3i CGr CGi c_er c_ua c_ew c_ga T512c T512s vo2 g2vo')
        s.v('fx', 16); s.v('fs_', 16)
        if xi >= 0:
            for k in range(4): ev[xi + k] += [xl[k]]
        sli = opt('sl', 36); sw = opt('sw', 60); assert cend < sli < sw
        sld, sck = s.s_fetch(S); ev[sli] += sld
        w0 = max(23, cend); assert not lateh or opt('lk', 5) <= 2
        for k in range(8): ev[w0 + k*opt('rw', 7)//8] += [s.red_write(0)[k]]
        r0 = w0 + 1 + opt('rw', 7); ev[r0] += ["s_waitcnt lgkmcnt(0)\n s_barrier"] + s.red_read(0)
        SR = sw < 100
        a1, a3 = s.finish(0, False, False)
        if sw > 44: _, a3 = s.finish(0, True, False)
        s1 = s.unpack(s.fs_[8:16], S[4:8])
        if SR: s1 += [f"v_pk_mul_f32 {s.fs_[c:c+2]}, {s.fs_[c:c+2]}, {s.rv[2:4]} op_sel_hi:[1,0]" for c in range(8, 16, 2)] if sw > 44 else [f"v_mul_f32 {s.fs_[c]}, {s.rv[2]}, {s.fs_[c]}" for c in range(8, 16)]
        streams = [(max(18, cend + (6 if xi == -2 else 0)), ["@wait xt"] + [f"v_mul_f32 {s.rn[2*m]}, {fl(-LOG2E)}, {s.rv[2*m]}" for m in range(2)] + s.unpack(s.fx, X)),
                   (r0 + 2, ["s_waitcnt lgkmcnt(0)"] + a1), (sw, sck + s.unpack(s.fs_[0:8], S[0:4]) + a3 + s1)]
        perm = opt('per', 6); nlast = opt('nl', 5); late = []; nxt = [lead]
        def take(idx, n):
            o = []
            while streams and n > 0 and streams[0][0] <= idx:
                x = streams[0][1][:n]; del streams[0][1][:n]; o += x; n -= len(x)
                if not streams[0][1]: streams.pop(0)
            return o
        def hnext():
            if nxt[0] >= 44: return []
            nxt[0] += 1; return [s.hload(nxt[0] - 1)]
        for idx in range(44):
            mt, i = divmod(idx, 22); sl = idx % NH
            if idx == cpos: s.stamp('gy')
            for x in blk.get(idx, []): A(hnext() if x == '@T' else x)
            if idx == cend: s.stamp('c')
            A(f"@wait h{idx}" + (" lgkm=0" if idx == 0 else ""))
            if idx == 0: s.stamp('h0')
            if idx and idx % 3 == 0: s.stamp(f'.h{idx}')
            mf = []
            for nt in range(2):
                acc = s.acc2[32*mt+16*nt:32*mt+16*nt+16]
                mf.append(f"{M32} {acc}, {s.w2f[8*i+4*nt:8*i+4*nt+4]}, {s.hf[4*sl:4*sl+4]}, {acc if i else 0}")
            if idx >= 44 - nlast:
                assert nxt[0] == 44
                late.append(mf[1]); A(mf[0]); A(ev[idx] + take(idx, perm // 2 - len(ev[idx]))); continue
            fill = list(ev[idx]); fill += take(idx, perm - len(fill)); h = (len(fill) + 1) // 2
            A(mf[0]); A(fill[:h]); A(mf[1]); A(hnext() + fill[h:]); assert nxt[0] <= idx + 1 + NH
        rw = s.red_write(1)
        for k, m in enumerate(late):
            A(m); A(take(50, perm // 2))
            if k >= 2 and len(rw) > 4: A(rw[:2]); rw = rw[2:]
        s.stamp('g2main'); A(ev[44])
        A(rw[:len(rw)-4]); A(take(60, 10)); A(rw[len(rw)-4:]); A(take(70, 20))
        A("s_waitcnt lgkmcnt(0)\n s_barrier"); A(s.red_read(1)); A(take(99, 999))
        a1, a3 = s.finish(1, True, SR)
        A("s_waitcnt lgkmcnt(4)"); A(a1[:4]); A("s_waitcnt lgkmcnt(0)"); A(a1[4:]); A(take(999, 999)); A(a3)
        s.stamp('fin')
        if STAMPS:
            A("s_waitcnt vmcnt(0)"); s.stamp('end'); n = len(s.tags)
            A(f"""s_waitcnt lgkmcnt(0)
            v_writelane_b32 {s._sv}, {s._sp[2*((n-1)%2)]}, {n-1}
            v_writelane_b32 {s._sv}, {s.spin if s.cnt else s.spin2}, 31
            s_lshl2_add_u32 {s.t0}, s2, {s.w}
            s_lshl_b32 {s.t0}, {s.t0}, 7
            s_add_u32 {s.t0}, {s.t0}, {32<<20}
            v_lshl_add_u32 v0, {s.l}, 2, {s.t0}
            s_mov_b64 exec, 0xffffffff
            global_store_dword v0, {s._sv}, {s.sws[0:2]}""")
        A("L_end:\n s_endpgm"); A(s.tail); A("L_codeend:")

def main(cls):
    k = cls(); k.build(); b = k.A.finish()
    if opt('kill', ''):
        pats = opt('kill', '').split(','); Ls = b.split("\n")
        for i, l in enumerate(Ls):
            m = re.search(r';@(\w+)', l)
            if m and l.strip().startswith('buffer_') and m.group(1) != 'xr' and any(re.fullmatch(p, m.group(1)) for p in pats): Ls[i] = re.sub(r's\[\d+:\d+\], (s\d+|0) ', 's[4:7], 0 ', l)
            if ';@K' in l: Ls[i] = l + f"\n    s_mov_b32 s4, {k.sws[0]}\n    s_mov_b32 s5, {k.sws[1]}\n    s_mov_b32 s6, 0\n    s_mov_b32 s7, 0x20000"
        b = "\n".join(Ls)
    o = open("recurrent_scan__spectral_gfnet__dense_activation_relu__prompt.s.ref").read().split("; Override launch")[0]
    o += f"; @launch grid=(256,1,1) block=(256,1,1) lds={LDS}\n" + '.amdgcn_target "amdgcn-amd-amdhsa--gfx950"\n.text\n'
    o += f".globl {KN}\n.p2align 8\n.type {KN},@function\n{KN}:\n" + b + '.section .rodata,"a"\n.p2align 6\n'
    o += f""".amdhsa_kernel {KN}
  .amdhsa_next_free_vgpr 512
  .amdhsa_next_free_sgpr 102
  .amdhsa_accum_offset 256
  .amdhsa_group_segment_fixed_size 0
  .amdhsa_kernarg_size 72
  .amdhsa_user_sgpr_count 2
  .amdhsa_user_sgpr_kernarg_segment_ptr 1
  .amdhsa_system_sgpr_workgroup_id_x 1
.end_amdhsa_kernel
""" + k.tb.text("tbl")
    open(sys.argv[1], "w").write(o)
    print("v", k.V.hw, "a", k.AC.hw, "s", k.S.hw, "instrs", len(k.A.lines), "nops", k.A.nops)
    if STAMPS: open(sys.argv[1] + ".tags", "w").write(" ".join(k.tags))
if __name__ == "__main__": main(Kern)
```

```python
import sys, re
import numpy as np
from asmlib import *
import tables as TB
from comp import fl, M16, M32
KN = "recurrent_scan__spectral_gfnet__dense_activation_relu__prompt_kernel"
OPT = dict(a.split('=') for a in sys.argv[2:] if '=' in a)
def opt(k, d): return type(d)(OPT.get(k, d))
STAMPS = 'stamps' in sys.argv[2:]
WS_X1 = 0; WS_Y1 = 4 << 20; WS_H = 6 << 20; WS_S = 12 << 20; F1 = 14 << 20; WS_SIZE = 31 << 20; BIG = 16 << 20
EV = opt('ev', 1)
F3 = F1 + (4096 << EV); WS_R = F1 + (65536 << EV); F2 = F1 + (98304 << EV); EP = F2 + (8192 << EV)
LB = 131072; EH = 4288; XOS = 544; RED_S = 8704
L_TB = 98304; L_E = L_UO = LB; L_XR = L_XO = L_U = LB + 8704; L_XCH = LB + 26112; LDS = L_XCH + 4096
SWZ = 0
XT = opt('xt', 0)
LOG2E = 1.4426950408889634
def sprinkle(base, ins, first, every):
    out = []; ins = list(ins); due = 0
    for i, x in enumerate(base):
        out.append(x)
        if i >= first and (i - first) % every == 0: due += 1
        nxt = base[i+1] if i + 1 < len(base) else ''
        if due and ins and not nxt.startswith(('s_cselect', 's_addc', 's_subb', 's_cbranch')):
            out.append(ins.pop(0)); due -= 1
    return out + ins
def glue(lst):
    out = []; pend = []
    for x in lst:
        pend.append(x)
        if not x.startswith('s_') or 'buffer_' in x: out.append("\n".join(pend)); pend = []
    if pend: out.append("\n".join(pend))
    return out
def L(text): return [x.strip() for x in text.split('\n') if x.strip()]
def cat(it): return sum(it, [])

LAG = opt('lag', 22)
ORDER = [(0, i) for i in range(LAG)] + cat([(1, i), (0, i + LAG)] for i in range(22 - LAG)) + [(1, i) for i in range(22 - LAG, 22)]
class Kern:
    def __init__(s):
        s.A = Asm(); s.V = Regs('v', 1, 256); s.AC = Regs('a', 0, 240); s.S = Regs('s', 3, 102); s.tail = []; s.tb = TB.Table()
        if opt('kill', ''): s.S.alloc('_kill', 4, 4)
    def v(s, name, n=1): r = s.V.alloc(name, n); setattr(s, name, r); return r
    def a(s, name, n=1): r = s.AC.alloc(name, n); setattr(s, name, r); return r
    def sg(s, name, n=1, align=None): r = s.S.alloc(name, n, align); setattr(s, name, r); return r
    def vs(s, names): return [s.v(x) for x in names.split()]
    def ss(s, names): return [s.sg(x) for x in names.split()]
    def vfree(s, names): s.V.release(*names.split())
    def afree(s, names): s.AC.release(*names.split())
    def sfree(s, names): s.S.release(*names.split())
    def stamp(s, tag):
        if not STAMPS: return
        fine = opt('fine', '')
        if fine == 'none' and tag not in ('start', 'end'): return
        if tag.startswith('.'):
            if not fine or not tag.startswith('.' + fine): return
        elif fine and tag not in ('start', 'end', 'in0', 'g1main', 'g1epi', 'b', 'f2', 'h0', 'g2main', 'xin'): return
        if not hasattr(s, 'tags'): s.tags = []; s.sg('_sp', 4, 2); s.v('_sv')
        s.tags.append(tag); i = len(s.tags) - 1
        s.A(f"{'s_memtime' if opt('cyc', 0) else 's_memrealtime'} {s._sp[2*(i%2):2*(i%2)+2]}")
        if i > 0: s.A(f"v_writelane_b32 {s._sv}, {s._sp[2*((i-1)%2)]}, {i-1}")
    SRDS = [('sx', 0, 2097152), ('sw1', 32, 1409024), ('sw2', 40, 1409024), ('sws', 64, WS_SIZE), ('swr', 8, 2048*514), ('swi', 16, 2048*514), ('sout', 48, 2097152)]
    NT = 6
    def entry(s):
        A = s.A; s.stamp('start')
        if STAMPS and opt('skew', 0):
            A(f"s_and_b32 s90, s2, 7\n s_cmp_eq_u32 s90, 0\n s_cbranch_scc1 L_skd\n L_sk:\n s_sleep {opt('skew', 0)}\n s_sub_u32 s90, s90, 1\n s_cmp_lg_u32 s90, 0\n s_cbranch_scc1 L_sk\n L_skd:")
        for nm, off, sz in s.SRDS: s.sg(nm, 4, 4); A(f"s_load_dwordx2 {getattr(s, nm)[0:2]}, s[0:1], {off}")
        s.sg('sx1', 4, 4); s.sg('hso', 11, 2); s.sg('stb', 2); s.sg('spc', 2); s.vs('l n q l16 cpf'); s.ss('w rb fs p t0 t1 t2 xcd j rb1 fs1 spin2 m0b')
        s.cnt = STAMPS and opt('fine', '') != 'none'
        if s.cnt: s.sg('spin')
        t = s.v('_t')
        A(f"""v_lshrrev_b32 {s.q}, 6, v0
        s_cmp_ge_u32 s2, 256
        s_cbranch_scc1 L_end
        s_getpc_b64 {s.spc}
        L_pc:
        s_add_u32 {s.stb[0]}, {s.spc[0]}, tbl@rel32@lo+4
        s_addc_u32 {s.stb[1]}, {s.spc[1]}, tbl@rel32@hi+12
        v_readfirstlane_b32 {s.w}, {s.q}
        v_and_b32 {s.l}, 63, v0
        v_lshlrev_b32 {s.l16}, 4, {s.l}
        s_mul_i32 {s.t0}, {s.w}, {1024*s.NT}
        s_add_u32 m0, {s.t0}, {L_TB}
        v_add_u32 {t}, {s.t0}, {s.l16}""")
        for z in range(4): A(f"global_load_lds_dwordx4 {t}, {s.stb} offset:{1024*z} ;@tb")
        A(f"s_add_u32 m0, {s.t0}, {L_TB + 4096}\n v_add_u32 {t}, 4096, {t}\n s_lshr_b32 {s.j}, s2, 3\n s_and_b32 {s.t0}, {s.j}, 3\n s_lshl_b32 {s.t1}, {s.t0}, 12")
        for z in range(s.NT - 4): A(f"global_load_lds_dwordx4 {t}, {s.stb} offset:{1024*z} ;@tb")
        A(f"""v_lshrrev_b32 {t}, 3, v0
        v_lshl_add_u32 {t}, {t}, 7, {s.t1}
        v_min_u32 {t}, L_codeend-L_pc-4, {t}
        global_load_dword {s.cpf}, {t}, {s.spc} ;@cpf
        v_and_b32 {s.n}, 15, v0
        v_lshrrev_b32 {s.q}, 4, {s.l}
        s_and_b32 {s.xcd}, s2, 7
        s_lshl2_add_u32 {s.rb}, {s.xcd}, {s.t0}
        s_lshr_b32 {s.fs}, s2, 5
        s_lshl3_add_u32 {s.p}, {s.rb}, {s.fs}
        s_lshr_b32 {s.t1}, {s.xcd}, 1
        s_lshl2_add_u32 {s.rb1}, {s.t1}, {s.t0}
        s_xor_b32 {s.t0}, {s.t0}, {s.xcd}
        s_and_b32 {s.t0}, {s.t0}, 1
        s_sub_u32 {s.t0}, 15, {s.t0}
        s_and_b32 {s.t1}, {s.xcd}, 1
        s_mul_i32 {s.t1}, {s.t1}, 7
        s_add_u32 {s.fs1}, {s.t1}, {s.fs}
        s_cmp_eq_u32 {s.fs}, 7
        s_cselect_b32 {s.fs1}, {s.t0}, {s.fs1}
        s_lshl_b32 {s.m0b}, {s.w}, 13""")
        if opt('g1m', 0): A(f"s_lshr_b32 {s.rb1}, {s.rb}, 1\n s_and_b32 {s.t0}, {s.j}, 1\n s_lshl1_add_u32 {s.fs1}, {s.fs}, {s.t0}")
        if opt('g2map', 0):
            assert not SWZ and not opt('rl', 0) & 4
            A(f"""s_lshr_b32 {s.t0}, {s.xcd}, 1
            s_and_b32 {s.t1}, {s.j}, 7
            s_lshl3_add_u32 {s.rb}, {s.t0}, {s.t1}
            s_and_b32 {s.t0}, {s.xcd}, 1
            s_lshr_b32 {s.t1}, s2, 6
            s_lshl{2 if opt('g2map', 0) == 1 else 1}_add_u32 {s.fs}, {s.t0 if opt('g2map', 0) == 1 else s.t1}, {s.t1 if opt('g2map', 0) == 1 else s.t0}""")
        s.vfree('_t'); s.sfree('stb spc')
        for nm, off, sz in s.SRDS:
            r = getattr(s, nm); A(f"s_mov_b32 {r[2]}, {sz}\n s_mov_b32 {r[3]}, 0x20000")
        s.sg('xo', 2)
        A(f"""s_lshl_b32 {s.t0}, {s.w}, 11
        s_add_u32 m0, {s.t0}, {L_XR}
        s_lshl_b32 {s.xo[0]}, {s.w}, 9
        s_add_u32 {s.xo[0]}, {s.xo[0]}, {s.p}
        s_lshl_b32 {s.xo[0]}, {s.xo[0]}, 10
        s_add_u32 {s.xo[1]}, {s.xo[0]}, {262144-1024}""")
        vx = s.v('g1vx', 4); t, u = s.vs('_t _u'); s.sg('sox', 8, 1); s.sg('sow', 8, 1); bx, bw, mw, rot = s.ss('_bx _bw _mw _rot')
        A(f"""v_lshrrev_b32 {u}, 3, {s.l}
        v_and_b32 {t}, 7, {s.l}
        v_xor_b32 {t}, {t}, {s.q}
        v_lshlrev_b32 {u}, 10, {u}
        v_lshl_add_u32 {vx[0]}, {t}, 4, {u}
        v_xor_b32 {vx[1]}, 64, {vx[0]}
        v_add_u32 {vx[1]}, {262144-1024}, {vx[1]}
        v_add_u32 {vx[2]}, {2*(262144-1024)}, {vx[0]}
        v_add_u32 {vx[3]}, {2*(262144-1024)}, {vx[1]}
        s_and_b32 {s.t1}, {s.w}, 1
        s_lshr_b32 {s.t0}, {s.w}, 1
        s_lshl1_add_u32 {bx}, {s.rb1}, {s.t0}
        s_lshl_b32 {s.t2}, {s.t1}, 7
        s_add_u32 {bx}, {bx}, {s.t2}
        s_lshl_b32 {bx}, {bx}, 13
        s_lshl3_add_u32 {bw}, {s.t0}, {s.t1}
        s_mul_i32 {bw}, {bw}, {4*2752}
        s_mul_i32 {s.t2}, {s.fs1}, 192
        s_add_u32 {bw}, {bw}, {s.t2}
        s_mul_i32 {s.t0}, {s.rb1}, {86*1024}
        s_mul_i32 {s.t1}, {s.w}, 3072
        s_add_u32 {s.t0}, {s.t0}, {s.t1}
        s_mov_b32 {mw}, {64*2752}
        s_mov_b32 {s.sx1[3]}, 0x20000
        s_cmp_eq_u32 {s.fs1}, 15
        s_cselect_b32 {bw}, {s.t0}, {bw}
        s_cselect_b32 {mw}, 12288, {mw}
        s_cselect_b32 {s.sx1[2]}, 0, {s.sx[2]}""")
        if opt('vwc', 0):
            vw = s.v('g1vc', 3); k = s.v('_k'); A("s_cselect_b64 vcc, -1, 0")
            for z in range(3):
                A(f"""v_add_u32 {t}, {64*z}, {s.l}
                v_mul_u32_u24 {u}, 5462, {t}
                v_lshrrev_b32 {u}, 16, {u}
                v_mad_i32_i24 {t}, {u}, -12, {t}
                v_lshrrev_b32 {k}, 1, {u}
                v_and_b32 {k}, 2, {k}
                v_xor_b32 {t}, {t}, {k}
                v_and_b32 {k}, 12, {u}
                v_add_u32 {u}, {u}, {k}
                v_mul_u32_u24 {u}, 2752, {u}
                v_lshl_add_u32 {t}, {t}, 4, {u}""")
                if z: A(f"v_subrev_u32 {t}, {1024*z}, {t}")
                A(f"v_cndmask_b32 {vw[z]}, {t}, {s.l16}, vcc")
            s.vfree('_k')
        r1 = opt('rot1', 'x1')
        if r1 == 'x': A(f"s_mov_b32 {rot}, {s.xcd}")
        elif r1 == 'xh': A(f"s_and_b32 {s.t0}, {s.j}, 1\n s_lshl2_add_u32 {rot}, {s.t0}, {s.xcd}")
        elif r1 == 'x1': A(f"s_and_b32 {s.t0}, {s.j}, 1\n s_add_u32 {rot}, {s.t0}, {s.xcd}")
        elif r1 == 'x2': A(f"s_bfe_u32 {s.t0}, {s.j}, 0x10001\n s_add_u32 {rot}, {s.t0}, {s.xcd}")
        elif r1 == 'x4': A(f"s_bfe_u32 {s.t0}, {s.j}, 0x10001\n s_lshl2_add_u32 {rot}, {s.t0}, {s.xcd}")
        elif r1[0] == 'k': A(f"s_xor_b32 {rot}, {s.j}, {s.fs if 'f' in r1 else 0}\n s_and_b32 {rot}, {rot}, {r1[-1]}")
        s.vfree('_t _u')
    def so_calc(s, c0, c1):
        o = []
        for st in range(c0, c1):
            if opt('rot1', 'x1')[0] == 'k':
                o += L(f"""s_xor_b32 {s.t0}, {s._rot}, {st}
                s_add_u32 {s.t0}, {s.t0}, {s.xcd}
                s_and_b32 {s.t0}, {s.t0}, 7
                s_lshl_b32 {s.t1}, {s.t0}, 7
                s_add_u32 {s.sox[st]}, {s._bx}, {s.t1}
                s_mul_i32 {s.t1}, {s.t0}, {s._mw}
                s_add_u32 {s.sow[st]}, {s._bw}, {s.t1}"""); continue
            o += L(f"""s_and_b32 {s._rot}, {s._rot}, 7
            s_lshl_b32 {s.t1}, {s._rot}, 7
            s_add_u32 {s.sox[st]}, {s._bx}, {s.t1}
            s_mul_i32 {s.t1}, {s._rot}, {s._mw}
            s_add_u32 {s.sow[st]}, {s._bw}, {s.t1}
            s_add_u32 {s._rot}, {s._rot}, 1""")
        if c1 == 8: s.sfree('_bx _bw _rot _mw')
        return o
    def g1_halves(s, st):
        base = (st % 4) * 32768; vw = s.g1vc if opt('vwc', 0) else s.g1vw
        hv = [[f"s_add_u32 m0, {s.m0b}, {base+4096}"] + [f"buffer_load_dwordx4 {s.g1vx[z]}, {s.sx1}, {s.sox[st]} offen offset:{1024*z} lds ;@st{st}" for z in range(4)],
                [f"s_add_u32 m0, {s.m0b}, {base}"] + [f"buffer_load_dwordx4 {vw[z]}, {s.sw1}, {s.sow[st]} offen offset:{1024*z} lds ;@st{st}" for z in range(3)]]
        return hv[::-1] if opt('vwc', 0) else hv
    def tables(s):
        l, n, q = TB.l, TB.n, TB.q
        b1 = TB.B1(); t5 = TB.T(512); f = TB.F16(); sa = TB.SA(); t2 = TB.T(256); c1 = TB.C1(); sc = TB.SC()
        u8, c8, i5, hh = l >> 3, l & 7, l & 31, l >> 5
        ast = lambda t: L_XO + XOS*(n >> 1) + 64*(4*t + q) + 16*((n & 1) ^ (2*t + (q >> 1)))
        def vw(z):
            Lz = 64*z + l; row = Lz // 12; ch = (Lz % 12) ^ (2*((row >> 2) & 1)); return (row + (row & 12)) * 2752 + 16*ch - 1024*z
        tl = [('g1vw', [vw(0), vw(1), vw(2), 514*u8 + 16*c8], ''),
              ('B1r', b1[0], ''), ('B1i', b1[1], ''),
              ('m', [0x3f80 + 0*l, L_XR + 8*l, TB.u32(np.where(n == 0, 1.0, 0.0)), TB.u32(np.where(n < 8, 1.0, -1.0))], 'sel0 a_trad mn0 sgn'),
              ('T512c', t5[0], ''), ('T512s', t5[1], ''), ('FWr', f['FWr'], ''), ('FWi', f['FWi'], ''), ('SAr', sa[0], ''), ('SAi', sa[1], ''),
              ('a_wr', [L_E + 16 * TB.sig_unit(k, n) for k in TB.kk], ''),
              ('m', [L_XO + XOS*u8 + 64*c8 + 16*(3 ^ (c8 >> 1)), L_XO + XOS*u8 + 64*c8 + 16*(2 ^ (c8 >> 1)), ast(0), ast(1)], 'wso2 wso a_st0 a_st1'),
              ('m', [L_E + 16 * (8*(n >> 2) + 4*(q >> 1) + (n & 3)) + EH * (q & 1), L_XO + XOS*hh + 16*i5, (16384*hh + 131072*(i5 >> 2) if XT else 2048*hh + 64*(i5 >> 2)) + 16*((i5 & 3) ^ (i5 >> 3)),
                     WS_R + np.where(l & 1, 32 + 16*hh, 16*hh)], 'a_rd xord xost rms'),
              ('m', [192*(l >> 2) + 8*(l & 3) + 32*(q & 1), 4096 + 128*n + 16*((n >> 1) ^ q), WS_R + (128 << EV)*(n & 7) + 32 + 16*(n >> 3), (64 if XT else 16384)*(l >> 2) + 16*((l ^ q) & 3) + SWZ*128*((l >> 2) & 7)], 'wa0 xa0 mla b_ga'),
              ('m', [L_U + 4096*q + 64*n + 16*(n >> 2), L_UO + 2048*q + 32*n + 16*(n >> 3), 32*(l >> 1) + 16*((l ^ q) & 1), 32*i5 + 16*hh], 'b_ua b_uo b_st s_st'),
              ('m', [1024*u8 + 16*(c8 ^ (4*(q & 1))), 128*(8*hh + ((l >> 2) & 3)) + 64*((l >> 3) & 1) + 32*(q & 1) + 8*(l & 3), 65536 + 272*i5 + 16*hh, 65536 + 272*u8 + 32*c8], 'vo2 ra2 g2rw g2rr'),
              ('m', [1024*u8 + 16*c8, 65536*(l >> 1) + 16*(l & 1) + SWZ*128*((l >> 1) & 7), L_U + 8*i5 + 4096*hh, L_E + EH*hh + 32*n + 33*16*(q & 1)], 'g2st c_ga c_ua c_ew'),
              ('c_er', [L_E + 16 * TB.sig_unit(n, k) for k in TB.kk], ''),
              ('T256c', t2[0], ''), ('T256s', t2[1], ''),
              ('C1x', c1[0], 'A'), ('C1y', c1[1], 'A'), ('SCr', sc[0], 'A'), ('SCi', sc[1], 'A')]
        assert len(tl) == 4 * s.NT
        ad = s.v('_tad'); s.A(f"v_add_u32 {ad}, {L_TB}, {s.l16}"); na = 0; out = []
        for nm, quad, sub in tl:
            i = s.tb.add(quad)
            if sub == 'A': r = R('a', 240 + 4*na, 4); na += 1; setattr(s, nm, r)
            else:
                r = s.v(nm, 4)
                if sub:
                    b, _ = s.V.names.pop(nm)
                    for k, x in enumerate(sub.split()): s.V.names[x] = (b + k, 1); setattr(s, x, r[k])
            out.append(f"ds_read_b128 {r}, {ad} offset:{1024*i}")
        return out
    def trig3(s, name, fwd, pre):
        co = s.v('_co', 4); si = s.v('_si', 4); m, t = s.vs('_m _t'); rr = s.v(name + 'r', 4); ii = s.v(name + 'i', 4)
        o = L(pre(co[0], t, m))
        o += [f"v_mul_f32 {si[0]}, {fl(1/2048)}, {co[0]}", f"v_mul_f32 {t}, {fl(1/2048)}, {t}"]
        o += [f"v_add_f32 {si[c]}, {si[c-1]}, {t}" for c in (1, 2, 3)]
        o += [f"v_cos_f32 {co[c]}, {si[c]}" for c in range(4)] + [f"v_sin_f32 {si[c]}, {si[c]}" for c in range(4)]
        for c in range(4): o += [f"v_cndmask_b32 {co[c]}, 0, {co[c]}, vcc", f"v_cndmask_b32 {si[c]}, 0, {si[c]}, vcc"]
        for c in range(4): o += [f"v_cvt_pk_bf16_f32 {rr[c]}, {co[c]}, {'' if fwd else '-'}{si[c]}", f"v_cvt_pk_bf16_f32 {ii[c]}, {'-' if fwd else ''}{si[c]}, {co[c]}"]
        s.vfree('_co _si _m _t'); return o
    def const_A3(s):
        return s.trig3('A3', True, lambda c0, t, m: f"""v_and_b32 {t}, 1, {s.q}
        v_lshl_add_u32 {t}, {t}, 10, {s.p}
        v_lshrrev_b32 {m}, 1, {s.n}
        v_mul_u32_u24 {c0}, {m}, {t}
        v_lshlrev_b32 {t}, 8, {m}
        v_lshrrev_b32 {m}, 5, {s.l}
        v_xor_b32 {m}, {m}, {s.l}
        v_and_b32 {m}, 1, {m}
        v_cmp_eq_u32 vcc, 0, {m}
        v_cvt_f32_u32 {c0}, {c0}
        v_cvt_f32_u32 {t}, {t}""")
    def const_C3(s):
        return s.trig3('C3', False, lambda c0, t, m: f"""v_lshrrev_b32 {t}, 3, {s.n}
        v_and_b32 {m}, 3, {s.n}
        v_lshl_add_u32 {t}, {t}, 2, {m}
        v_lshl_add_u32 {t}, {t}, 8, {s.p}
        v_lshrrev_b32 {m}, 5, {s.l}
        v_mul_u32_u24 {c0}, {m}, {t}
        v_lshlrev_b32 {c0}, 2, {c0}
        v_lshrrev_b32 {m}, 2, {s.l}
        v_xor_b32 {m}, {m}, {s.q}
        v_and_b32 {m}, 1, {m}
        v_cmp_eq_u32 vcc, 0, {m}
        v_cvt_f32_u32 {c0}, {c0}
        v_cvt_f32_u32 {t}, {t}""")
    def fwarm(s):
        t = s.v('_t')
        o = L(f"""v_lshlrev_b32 {t}, {15 + EV}, {s.l}
        s_lshl_b32 {s.t0}, s2, {7 + EV}
        s_add_u32 {s.t0}, {s.t0}, {F1}
        s_cmp_lt_u32 s2, 32
        s_cselect_b32 {s.t1}, 15, 7
        s_cmp_eq_u32 {s.w}, 1
        s_cselect_b32 {s.t0}, {s.t0}, {WS_SIZE}""")
        o.append(f"s_mov_b32 exec_hi, 0\n s_mov_b32 exec_lo, {s.t1}\n buffer_store_dword {t}, {t}, {s.sws}, {s.t0} offen offset:124 sc1 ;@fw\n s_mov_b64 exec, -1")
        s.vfree('_t'); return o
    def flags_setup(s):
        s.vs('pa pg2 pv fra'); s.ss('fo fo2 tag')
        return L(f"""s_lshl_b32 {s.t0}, {s.xcd}, {13 + EV}
        s_add_u32 {s.t0}, {s.t0}, {F1}
        v_and_b32 {s.pv}, {0xf8 * EV}, v0
        v_add_u32 {s.pv}, v0, {s.pv}
        v_lshl_add_u32 {s.pa}, {s.pv}, 4, {s.t0}
        v_lshlrev_b32 {s.fra}, {13 + EV}, {s.l}
        s_lshr_b32 {s.t0}, {s.rb}, 1
        s_lshl_b32 {s.t0}, {s.t0}, {8 + EV}
        s_add_u32 {s.t0}, {s.t0}, {F2}
        v_and_b32 {s.pv}, {23 if EV else 15}, {s.pv}
        v_lshl_add_u32 {s.pg2}, {s.pv}, 4, {s.t0}
        s_and_b32 {s.t0}, {s.p}, {0xf8 * EV}
        s_add_u32 {s.t0}, {s.t0}, {s.p}
        s_lshl4_add_u32 {s.fo}, {s.t0}, {F1}
        s_lshl4_add_u32 {s.fo2}, {s.rb1}, {s.fs1}
        s_and_b32 {s.t0}, {s.fo2}, {0xf8 * EV}
        s_add_u32 {s.fo2}, {s.fo2}, {s.t0}
        s_lshl4_add_u32 {s.fo2}, {s.fo2}, {F2}
        s_cmp_eq_u32 {s.w}, 0
        s_cselect_b32 {s.fo}, {s.fo}, {WS_SIZE}
        s_cselect_b32 {s.fo2}, {s.fo2}, {WS_SIZE}
        {f"s_mov_b32 {s.spin}, 0" if s.cnt else ""}
        s_mov_b32 {s.spin2}, 0""")
    def tag_fix(s): return ["@wait tag", f"v_readfirstlane_b32 {s.tag}, {s.vtag}", f"s_mul_i32 {s.tag}, {s.tag}, 1664525", f"s_add_u32 {s.tag}, {s.tag}, 1013904223", f"v_mov_b32 {s.vtag}, {s.tag}"]
    def flag(s, nm, so, add=0):
        pre = f"s_add_u32 {s.t0}, {so}, {add}\n " if add else ""; so = s.t0 if add else so
        if nm in ('f1', 'f3'): return [pre + f"s_mov_b64 exec, 255\n buffer_store_dword {s.vtag}, {s.fra}, {s.sws}, {so} offen sc1 ;@{nm}\n s_mov_b64 exec, -1"]
        return [pre + f"s_mov_b64 exec, 1\n buffer_store_dword {s.vtag}, off, {s.sws}, {so} sc1 ;@{nm}\n s_mov_b64 exec, -1"]
    def poll(s, nm, ad, so):
        ins = f"buffer_load_dword {s.pv}, {ad}, {s.sws}, {so} offen sc1"
        s.tail += L(f"""L_retry{nm}:
        {f"s_add_u32 {s.spin}, {s.spin}, {1 << (8*(int(nm[1])-1))}" if s.cnt else ""}
        s_add_u32 {s.spin2}, {s.spin2}, 1
        s_cmp_ge_u32 {s.spin2}, 400000
        s_cbranch_scc1 L_out{nm}
        s_mov_b64 exec, vcc
        s_sleep {opt('ps', 3)}
        {ins}
        s_waitcnt vmcnt(0)
        v_cmp_ne_u32 vcc, {s.tag}, {s.pv}
        s_cbranch_vccnz L_retry{nm}
        L_out{nm}:
        s_mov_b64 exec, -1
        s_branch L_back{nm}""")
        return [ins + f" ;@{nm}"], [f"@wait {nm}\n v_cmp_ne_u32 vcc, {s.tag}, {s.pv}\n s_cbranch_vccnz L_retry{nm}\n L_back{nm}:"]
    def reloc_prod(s, reg, key, lo, hi, cond=None):
        t = s.v('_r')
        o = L(f"s_and_b32 {s.t0}, {key}, 3\n s_lshl_b32 {s.t0}, {s.t0}, 7\n s_add_u32 {s.t0}, {s.t0}, {BIG + 128}")
        if cond: o += L(f"{cond}\n s_cselect_b32 {s.t0}, {s.t0}, 0")
        o += L(f"v_add_u32 {t}, {s.t0}, {reg}\n s_mov_b32 vcc_lo, {hex(lo)}\n s_mov_b32 vcc_hi, {hex(hi)}\n v_cndmask_b32 {reg}, {reg}, {t}, vcc")
        s.vfree('_r'); return o
    def reloc_cons(s, reg, key, sh, lanesh):
        t = s.v('_r')
        o = L(f"""v_bfe_u32 {t}, {s.l}, {lanesh}, 2
        v_lshl_add_u32 {t}, {t}, 7, {reg}
        v_add_u32 {t}, {BIG + 128}, {t}
        s_bfe_u32 {s.t0}, {key}, {hex(0x30000 + sh)}
        s_cmp_eq_u32 {s.t0}, 3
        s_cselect_b64 vcc, -1, 0
        v_cndmask_b32 {reg}, {reg}, {t}, vcc""")
        s.vfree('_r'); return o
    def cmul(s, dr, di, co, si, tmp, conj):
        o = []; neg = " neg_lo:[0,0,1] neg_hi:[0,0,1]"
        for h in (0, 2):
            P = lambda r: r[h:h+2]
            o += [f"v_pk_mul_f32 {tmp[0:2]}, {P(di)}, {P(si)}", f"v_pk_mul_f32 {tmp[2:4]}, {P(dr)}, {P(si)}",
                  f"v_pk_fma_f32 {P(dr)}, {P(dr)}, {P(co)}, {tmp[0:2]}" + (neg if conj else ""), f"v_pk_fma_f32 {P(di)}, {P(di)}, {P(co)}, {tmp[2:4]}" + ("" if conj else neg)]
        return o
    def pack(s, dst, dr, di): return [f"v_cvt_pk_bf16_f32 {dst(c)}, {dr[c]}, {di[c]}" for c in range(4)]
    def a_scalars(s):
        s.sg('mq0', 2); s.sg('ab', 4, 1); s.ss('wl x1o'); b = s.ab
        return L(f"""s_mov_b64 {s.mq0}, 0xffff
        s_lshr_b32 {s.t0}, {s.w}, 1
        s_mul_i32 {s.t0}, {s.t0}, {EH}
        s_and_b32 {s.t1}, {s.w}, 1
        s_lshl3_add_u32 {b[0]}, {s.t1}, {s.t0}
        s_mul_i32 {b[1]}, {s.w}, {66*16}
        s_mul_i32 {b[2]}, {s.w}, {8*XOS}
        s_lshl_b32 {b[3]}, {s.w}, 11
        s_mul_i32 {s.wl}, {s.p}, 4112
        s_lshl_b32 {s.t0}, {s.w}, 7
        s_add_u32 {s.wl}, {s.wl}, {s.t0}
        s_add_u32 {s.wl}, {s.wl}, 2
        s_lshl_b32 {s.x1o}, {s.p}, 14
        s_lshl2_add_u32 {s.x1o}, {s.t0}, {s.x1o}""") + (L(f"s_lshl_b32 {s.x1o}, {s.w}, 14\n s_add_u32 {s.x1o}, {s.x1o}, {s.p}\n s_lshl_b32 {s.x1o}, {s.x1o}, 6") if XT else [])
    def a_fix(s):
        b = s.ab
        return [f"v_add_u32 {s.a_wr[c]}, {b[0]}, {s.a_wr[c]}" for c in range(4)] + [f"v_add_u32 {s.a_rd}, {b[1]}, {s.a_rd}"] + \
               [f"v_add_u32 {r}, {b[2]}, {r}" for r in (s.a_st0, s.a_st1, s.wso, s.wso2, s.xord)]
    def a_part1(s, early):
        F = [s.v('aF0', 4), s.v('aF1', 4)]; s.aD = D = [[s.v(f'aD{i}{x}', 4) for x in 'ri'] for i in range(2)]
        Sp = [[s.v(f'aS{i}{x}', 4) for x in 'ri'] for i in range(2)]
        d = s.v('ad', 8); st = s.v('ast', 4); tmp = s.v('atmp', 4); P = s.v('aP', 8); sel1 = s.v('sel1')
        r01 = s.hso[0:4]; piv = s.sg('apiv', 2); pv2 = s.hso[4:6]; o = []
        for i in range(2): o += [f"ds_read_b64_tr_b16 {F[i][2*h:2*h+2]}, {s.a_trad} offset:{1024*i+512*h}" for h in range(2)]
        o += [f"v_mov_b32 {sel1}, 1.0"] + early
        for i in range(2):
            o += [f"s_waitcnt lgkmcnt({2-2*i})", f"{M16} {D[i][0]}, {F[i]}, {s.B1r}, 0", f"v_readfirstlane_b32 {piv[i]}, {F[i][0]}", f"{M16} {D[i][1]}, {F[i]}, {s.B1i}, 0",
                  f"s_lshl_b32 {piv[i]}, {piv[i]}, 16", f"s_xor_b32 {piv[i]}, {piv[i]}, 0x80000000"]
        for i in range(2):
            for c in range(4): o += [f"v_dot2_f32_bf16 {d[2*c]}, {F[i][c]}, {s.sel0}, {piv[i]}", f"v_dot2_f32_bf16 {d[2*c+1]}, {F[i][c]}, {sel1}, {piv[i]}"]
            o += L(f"""v_pk_mul_f32 {tmp[0:2]}, {d[0:2]}, {d[0:2]}
            v_pk_add_f32 {tmp[2:4]}, {d[0:2]}, {d[2:4]}
            v_pk_fma_f32 {tmp[0:2]}, {d[2:4]}, {d[2:4]}, {tmp[0:2]}
            v_pk_add_f32 {tmp[2:4]}, {tmp[2:4]}, {d[4:6]}
            v_pk_fma_f32 {tmp[0:2]}, {d[4:6]}, {d[4:6]}, {tmp[0:2]}
            v_pk_add_f32 {tmp[2:4]}, {tmp[2:4]}, {d[6:8]}
            v_pk_fma_f32 {tmp[0:2]}, {d[6:8]}, {d[6:8]}, {tmp[0:2]}
            v_add_f32 {st[i]}, {tmp[2]}, {tmp[3]}
            v_add_f32 {st[2+i]}, {tmp[0]}, {tmp[1]}""")
        o += [f"v_readfirstlane_b32 {pv2[i]}, {D[i][0][0]}" for i in range(2)]
        o += L(f"""v_permlane32_swap_b32 {st[0]}, {st[1]}
        v_permlane32_swap_b32 {st[2]}, {st[3]}
        v_add_f32 {st[0]}, {st[0]}, {st[1]}
        v_add_f32 {st[2]}, {st[2]}, {st[3]}""")
        o += [f"v_mul_f32 {d[2*i]}, {pv2[i]}, {s.mn0}" for i in range(2)]
        o += [f"v_permlane16_swap_b32 {st[0]}, {st[2]}", f"v_add_f32 {st[0]}, {st[0]}, {st[2]}"]
        red = [f"v_add_f32_dpp {st[0]}, {st[0]}, {st[0]} row_ror:{k} row_mask:0xf bank_mask:0xf" for k in (8, 4, 2, 1)]
        for i in range(2):
            o += [f"v_pk_add_f32 {D[i][0][h:h+2]}, {D[i][0][h:h+2]}, {d[2*i:2*i+2]} op_sel_hi:[1,0] neg_lo:[0,1] neg_hi:[0,1]" for h in (0, 2)]
            o += [red[2*i]] + s.cmul(D[i][0], D[i][1], s.T512c, s.T512s, tmp, False) + [red[2*i+1]] + s.pack(lambda c: F[i][c], D[i][0], D[i][1])
        o.append(f"v_mov_b32 {st[1]}, {st[0]}")
        fin = L(f"""v_permlane16_swap_b32 {st[0]}, {st[1]}
        v_mul_f32 {st[0]}, {fl(1/512)}, {st[0]}
        v_mul_f32 {st[1]}, {fl(1/512)}, {st[1]}
        v_fma_f32 {st[1]}, -{st[0]}, {st[0]}, {st[1]}
        v_max_f32 {st[1]}, 0, {st[1]}
        v_cvt_pk_bf16_f32 {st[1]}, {st[1]}, {st[1]}
        v_lshlrev_b32 {st[1]}, 16, {st[1]}
        v_add_f32 {st[1]}, {fl(1e-5)}, {st[1]}
        v_cvt_pk_bf16_f32 {st[1]}, {st[1]}, {st[1]}
        v_lshlrev_b32 {st[1]}, 16, {st[1]}
        v_sqrt_f32 {st[1]}, {st[1]}
        v_cvt_pk_bf16_f32 {st[1]}, {st[1]}, {st[1]}
        v_lshlrev_b32 {st[1]}, 16, {st[1]}
        v_rcp_f32 {st[1]}, {st[1]}
        v_readlane_b32 {r01[0]}, {st[1]}, 0
        v_readlane_b32 {r01[2]}, {st[1]}, 32""")
        mf = cat([f"{M16} {D[i][0]}, {F[i]}, {s.FWr}, 0", f"{M16} {D[i][1]}, {F[i]}, {s.FWi}, 0", f"{M16} {Sp[i][0]}, {F[i]}, {s.SAr}, 0", f"{M16} {Sp[i][1]}, {F[i]}, {s.SAi}, 0"] for i in range(2))
        for k in range(8): o += [mf[k], fin[2*k], fin[2*k+1]]
        o += [f"v_mul_f32 {d[2*i]}, {r01[2*i]}, {s.sgn}" for i in range(2)]
        for i in range(2):
            o += [f"v_cndmask_b32 {D[i][x][0]}, {D[i][x][0]}, {Sp[i][x][0]}, {s.mq0}" for x in range(2)]
            for h in (0, 2): o += [f"v_pk_mul_f32 {D[i][0][h:h+2]}, {D[i][0][h:h+2]}, {r01[2*i:2*i+2]} op_sel_hi:[1,0]", f"v_pk_mul_f32 {D[i][1][h:h+2]}, {D[i][1][h:h+2]}, {d[2*i:2*i+2]} op_sel_hi:[1,0]"]
            o += s.pack(lambda c: P[2*c+i], D[i][0], D[i][1])
        o += [f"ds_write_b64 {s.a_wr[c]}, {P[2*c:2*c+2]}" for c in range(4)]
        s.vfree('aS0r aS0i aS1r aS1i ad atmp aP sel1'); return o
    def a_part2(s):
        F = [s.aF0, s.aF1]; D = s.aD; st = s.ast; piv = s.apiv
        o = [f"ds_read_b128 {F[t]}, {s.a_rd} offset:{t*33*16}" for t in range(2)]
        o += L(f"""v_sub_f32 {st[2]}, {piv[0]}, {st[0]}
        v_sub_f32 {st[3]}, {piv[1]}, {st[0]}
        v_cvt_pk_bf16_f32 {st[2]}, {st[2]}, {st[3]}
        v_lshlrev_b32 {st[3]}, 16, {st[2]}
        v_and_b32 {st[2]}, 0xffff0000, {st[2]}
        s_lshl_b32 {s.t0}, {s.p}, {7 + EV}
        s_lshl2_add_u32 {s.xo2}, {s.w}, {s.t0}""")
        o.append(f"s_mov_b64 exec, 2\n v_mov_b32 {st[1]}, {st[3]}\n s_mov_b32 exec_lo, 0\n s_mov_b32 exec_hi, 2\n v_mov_b32 {st[1]}, {st[2]}\n s_mov_b64 exec, -1")
        for t in range(2): o += [f"s_waitcnt lgkmcnt({1-t})", f"{M16} {D[t][0]}, {F[t]}, {s.A3r}, 0", f"{M16} {D[t][1]}, {F[t]}, {s.A3i}, 0"]
        wst = ["@wait W", f"ds_write_b128 {s.wso}, {s.wraw[0:4]}", f"ds_write_b128 {s.wso2}, {s.wraw[4:8]}"]
        pk = cat(s.pack(lambda c: F[t][c], D[t][0], D[t][1]) + [f"ds_write_b128 {(s.a_st0, s.a_st1)[t]}, {F[t]}"] for t in range(2))
        Q = [D[0][0], D[0][1], D[1][0], D[1][1]]
        rd = [f"ds_read_b128 {Q[z]}, {s.xord} offset:{2*XOS*z}" for z in range(4)]
        sts = [f"s_mov_b32 exec_lo, 3\n s_mov_b32 exec_hi, 3\n buffer_store_dword {st[1]}, {s.rms}, {s.sws}, {s.xo2} offen sc1 ;@x1\n s_mov_b64 exec, -1"]
        sts += [(f"s_add_u32 {s.x1o}, {s.x1o}, {32768 if XT else 4096}\n " if z else "") + f"buffer_store_dwordx4 {Q[z]}, {s.xost}, {s.sws}, {s.x1o} offen sc1 ;@x1" for z in range(4)]
        return o, wst, pk, rd, sts
    def g1_rd_setup(s):
        wa = s.v('g1wa', 6); xa = s.v('g1xa', 4); s.ss('tau0 dtau'); s.a('ones', 4); s.a('xf', 32); s.a('wf', 24); s.vs('xw xr_')
        sc = L(f"""s_and_b32 {s.t0}, {s.w}, 1
        s_mul_i32 {s.tau0}, {s.t0}, 3
        s_and_b32 {s.t1}, {s.w}, 2
        s_add_u32 {s.tau0}, {s.tau0}, {s.t1}
        s_sub_u32 {s.dtau}, 1, {s.t1}
        v_mov_b32 {s.xw}, 0x3f803f80""") + [f"v_accvgpr_write_b32 {s.ones[c]}, {s.xw}" for c in range(4)] + L(f"""s_lshl_b32 {s.t0}, {s.w}, 10
        s_add_u32 {s.t0}, {s.t0}, {L_XCH}
        v_add_u32 {s.xw}, {s.t0}, {s.l16}
        s_xor_b32 {s.t0}, {s.w}, 2
        s_lshl_b32 {s.t0}, {s.t0}, 10
        s_add_u32 {s.t0}, {s.t0}, {L_XCH}
        v_add_u32 {s.xr_}, {s.t0}, {s.l16}""")
        fix = [f"s_mov_b32 {s.t0}, {s.tau0}"]
        for i in range(3):
            fix += L(f"""s_and_b32 {s.t1}, {s.t0}, 1
            s_lshl_b32 {s.t1}, {s.t1}, 5
            v_xor_b32 {wa[i]}, {s.t1}, {s.wa0}
            s_lshr_b32 {s.t1}, {s.t0}, 1
            v_lshl_add_u32 {wa[i]}, {s.t1}, 6, {wa[i]}
            v_add_u32 {wa[3+i]}, 65536, {wa[i]}
            s_add_u32 {s.t0}, {s.t0}, {s.dtau}""")
        fix += L(f"""s_and_b32 {s.t0}, {s.m0b}, 16384
        v_add_u32 {xa[0]}, {s.t0}, {s.xa0}
        v_xor_b32 {xa[1]}, 64, {xa[0]}
        v_add_u32 {xa[2]}, 65536, {xa[0]}
        v_add_u32 {xa[3]}, 65536, {xa[1]}""")
        return sc, fix
    def g1_reads(s, step):
        st = step // 2; ks = step % 2; sl = st % 4; hi = sl // 2; base = (sl % 2) * 32768; b = step % 2
        xr = [f"ds_read_b128 {s.xf[16*b+4*a:16*b+4*a+4]}, {s.g1xa[2*hi+ks]} offset:{base + (a//2)*8192 + (a%2)*2048}" for a in range(4)]
        wr = [[f"ds_read_b64_tr_b16 {s.wf[12*b+4*i+2*h:12*b+4*i+2*h+2]}, {s.g1wa[3*hi+i]} offset:{base + (2*ks+h)*8192}" for h in range(2)] for i in range(3)]
        return wr[0] + xr + wr[1] + wr[2]
    def g1_mfmas(s, step):
        b = step % 2; o = []; z = lambda acc: acc if step else 0
        for i in range(3):
            wf = s.wf[12*b+4*i:12*b+4*i+4]
            if i < 2 and (step < 2 or not opt('xc', 0)): acc = s.accc[4*i:4*i+4]; o.append(f"{M16} {acc}, {wf}, {s.ones}, {z(acc)}")
            for a in range(4): acc = s.acc1[16*i+4*a:16*i+4*a+4]; o.append(f"{M16} {acc}, {wf}, {s.xf[16*b+4*a:16*b+4*a+4]}, {z(acc)}")
        return o
    def g1_step(s, step, P):
        A = s.A; A(P['head'][step])
        nx = step // 2 + 1
        A("@wait lgkm=0 " + (f"st{nx} " if step % 2 and nx < 8 else "") + P['also'][step])
        if step % 2 or step in P['bar']: A("s_barrier")
        if step in (4, 8): s.stamp(f's{step}')
        s.stamp(f'.g{step}')
        r = s.g1_reads(step + 1) if step < 15 else []; e = glue(P['extra'][step]); fill = list(P['first'][step]); k = 0
        while r or e:
            fill.append(e.pop(0) if e and (k % 3 == 2 or not r) else r.pop(0)); k += 1
        fill += P['last'][step]
        mf = s.g1_mfmas(step)
        for i, m in enumerate(mf):
            A(m); left = len(mf) - i; k = -(-len(fill) // left) if len(fill) > left else 1
            A(fill[:k]); fill = fill[k:]
    def h_offsets(s):
        so = s.sg('hst', 3, 1)
        o = L(f"""s_lshr_b32 {s.t0}, {s.w}, 1
        s_lshl1_add_u32 {s.t0}, {s.rb1}, {s.t0}
        s_lshl_b32 {s.mlo}, {s.t0}, {10 + EV}
        s_mul_i32 {s.t0}, {s.t0}, {86*2048}
        s_add_u32 {s.t0}, {s.t0}, {WS_H}
        s_mul_i32 {s.t1}, {s.fs1}, 6
        s_add_u32 {s.t1}, {s.t1}, {s.tau0}""")
        for i in range(3):
            o += L(f"s_lshl_b32 {so[i]}, {s.t1}, 11\n s_add_u32 {so[i]}, {so[i]}, {s.t0}\n s_cmp_lt_u32 {s.t1}, 86\n s_cselect_b32 {so[i]}, {so[i]}, {WS_SIZE}")
            if i < 2: o.append(f"s_add_u32 {s.t1}, {s.t1}, {s.dtau}")
        return o
    def g1_epilogue(s):
        mm = s.g1m; P = s.v('g1P', 24); o = []
        for n, (i, M) in enumerate(((0, 0), (0, 1), (1, 0), (1, 1), (2, 0), (2, 1))):
            if n == 2: o += ["s_waitcnt lgkmcnt(0)", "s_barrier", f"ds_read_b128 {s.accc[8:12]}, {s.xr_}"]
            if n == 4: o.append("s_waitcnt lgkmcnt(0)")
            Q = P[4*n:4*n+4]; acc = [s.acc1[16*i+4*(2*M+e):16*i+4*(2*M+e)+4] for e in range(2)]
            for e in range(2):
                mo = 2*M + 4*e
                o += [f"v_pk_fma_f32 {acc[e][h:h+2]}, {s.accc[4*i+h:4*i+h+2]}, {mm[mo:mo+2]}, {acc[e][h:h+2]} op_sel_hi:[1,0,1]" for h in (0, 2)]
            o += [f"v_cvt_pk_bf16_f32 {Q[2*e+h]}, {acc[e][2*h]}, {acc[e][2*h+1]}" for e in range(2) for h in range(2)]
            o += [f"v_pk_max_i16 {Q[c]}, {Q[c]}, 0" for c in (0, 2, 1, 3)]
            o += [f"v_permlane16_swap_b32 {Q[0]}, {Q[2]}", f"v_permlane16_swap_b32 {Q[1]}, {Q[3]}", f"buffer_store_dwordx4 {Q}, {s.hla}, {s.sws}, {s.hst[i]} offen offset:{1024*M} sc1 ;@h"]
        return o
    def b_setup(s):
        s.v('b_lin'); s.v('b_wa', 2); s.v('IVr', 4); s.v('IVi', 4); s.ss('go y1o')
        g = L(f"""s_lshl_b32 {s.go}, {s.w}, 9
        s_add_u32 {s.go}, {s.go}, {s.xcd}
        s_lshl_b32 {s.go}, {s.go}, 11
        s_lshl_b32 {s.t0}, {s.j}, 6
        v_xor_b32 {s.b_ga}, {s.t0}, {s.b_ga}""")
        if XT: g = L(f"s_lshl2_add_u32 {s.go}, s2, {s.w}\n s_lshl_b32 {s.go}, {s.go}, 12")
        o = L(f"""s_add_u32 {s.t0}, {s.ab[3]}, {L_UO}
        v_add_u32 {s.b_lin}, {s.t0}, {s.l16}
        s_lshl_b32 {s.y1o}, s2, 13
        s_add_u32 {s.y1o}, {s.y1o}, {s.ab[3]}
        s_add_u32 {s.y1o}, {s.y1o}, {WS_Y1}
        s_lshl_b32 {s.t0}, {s.w}, 3
        s_lshl2_add_u32 {s.t1}, {s.w}, 32
        v_xor_b32 {s.b_wa[0]}, {s.t1}, {s.b_ua}
        v_xor_b32 {s.b_ua}, {s.t0}, {s.b_ua}
        v_xor_b32 {s.b_uo}, {s.t0}, {s.b_uo}
        v_xor_b32 {s.b_wa[1]}, 16, {s.b_wa[0]}""")
        o += cat([f"v_xor_b32 {s.IVr[c]}, 0x80000000, {s.FWr[c]}", f"v_xor_b32 {s.IVi[c]}, 0x8000, {s.FWi[c]}"] for c in range(4))
        return g, o
    def b_gather(s):
        return [f"s_lshl1_add_u32 m0, {s.ab[3]}, {L_U}"] + \
               [(f"s_add_u32 {s.go}, {s.go}, {16*16384-1024}\n " if z and not XT else "") + f"buffer_load_dwordx4 {s.b_ga}, {s.sws}, {s.go} offen offset:{1024*z} sc1 lds ;@gx" for z in range(4)]
    def b_parts(s):
        F = s.v('bF', 8); W = s.v('bW', 8); D = [[s.v(f'bD{i}{x}', 4) for x in 'ri'] for i in range(2)]; tmp = s.v('btmp', 4); X = s.v('bX', 16); O = W
        U = [F[0:4], F[4:8]]
        rd = [f"ds_read_b64 {F[2*pos:2*pos+2]}, {s.b_ua} offset:{1024*c}" for pos, c in enumerate((0, 2, 1, 3))]
        rd += [f"ds_read2st64_b32 {W[4*x+2*h:4*x+2*h+2]}, {s.b_wa[x]} offset0:{8*h} offset1:{8*h+4}" for x in range(2) for h in range(2)]
        sw = [f"v_swap_b32 {F[1]}, {F[4]}", f"v_swap_b32 {F[3]}, {F[6]}"]
        u0 = [f"v_lshlrev_b32 {X[k]}, 16, {W[k]}" for k in range(8)]; u1 = [f"v_and_b32 {X[8+k]}, 0xffff0000, {W[k]}" for k in range(8)]
        stages = [(True, s.FWr, s.FWi), (False, s.FWr, s.FWi), (True, s.IVr, s.IVi), (False, s.IVr, s.IVi)]
        def mm(k, i):
            dA, cr, ci = stages[k]; return [f"{M16} {D[i][x]}, {U[i]}, {cc}, 0" if dA else f"{M16} {D[i][x]}, {cc}, {U[i]}, 0" for x, cc in enumerate((cr, ci))]
        def vv(k, i):
            t = [(s.T256c, s.T256s, False), (X[8*i:8*i+4], X[8*i+4:8*i+8], True), (s.T256c, s.T256s, True)]
            return (s.cmul(D[i][0], D[i][1], t[k][0], t[k][1], tmp, t[k][2]) if k < 3 else []) + s.pack(lambda c: U[i][c] if k < 3 else O[2*c+i], D[i][0], D[i][1])
        o = u0[:2] + mm(0, 0) + mm(0, 1) + u0[2:8] + vv(0, 0) + u1[:2] + mm(1, 0) + u1[2:4] + vv(0, 1) + u1[4:6] + mm(1, 1) + u1[6:8] + vv(1, 0)
        for k in (2, 3): o += mm(k, 0) + vv(k-1, 1) + mm(k, 1) + vv(k, 0)
        o += vv(3, 1) + [f"ds_write_b64 {s.b_uo}, {O[2*c:2*c+2]} offset:{512*c}" for c in range(4)]
        rd2 = [f"ds_read_b128 {F[4*t:4*t+4]}, {s.b_lin} offset:{1024*t}" for t in range(2)]
        st = [f"buffer_store_dwordx4 {F[4*t:4*t+4]}, {s.b_st}, {s.sws}, {s.y1o} offen offset:{1024*t} sc1 ;@y1" for t in range(2)]
        return rd, sw, o, rd2, st
    def w2_setup(s):
        vo = s.v('g2vo', 3); so = s.hso; s.sg('sw2o'); s.vs('pfo pfd')
        o = [f"v_add_u32 {vo[z]}, {(z+1)*(8192-1024)}, {s.vo2}" for z in range(3)]
        o += L(f"s_mul_i32 {s.sw2o}, {s.w}, {352*1024}\n s_lshl_b32 {s.t0}, {s.fs}, 7\n s_add_u32 {s.sw2o}, {s.sw2o}, {s.t0}")
        if opt('rot2', 'x') == '0': o += [f"s_mov_b32 {so[i]}, {4096*i}" for i in range(11)]
        elif opt('rot2', 'x')[0] == 'k':
            r2 = opt('rot2', 'x'); mk = int(r2[-1])
            o += L(f"s_xor_b32 {s.t0}, {s.j if 'j' in r2 else 0}, {s.fs if 'f' in r2 else 0}\n s_and_b32 {s.t0}, {s.t0}, {mk}\n s_and_b32 {s.t1}, {s.t0}, 1")
            for i in range(11):
                o.append(f"s_xor_b32 {so[i]}, {s.t0 if i < 8 else s.t1}, {i}" if i < 10 else f"s_mov_b32 {so[i]}, 10")
                if 'x' in r2: o += L(f"s_add_u32 {so[i]}, {so[i]}, {s.xcd}\n s_sub_u32 {s.t2}, {so[i]}, 11\n s_min_u32 {so[i]}, {so[i]}, {s.t2}")
                o.append(f"s_lshl_b32 {so[i]}, {so[i]}, 12")
        else:
            o.append(f"s_lshl_b32 {so[0]}, {s.xcd}, 12")
            for i in range(1, 11):
                o.append(f"s_add_u32 {so[i]}, {so[i-1]}, 4096")
                if i >= 4: o += [f"s_cmp_eq_u32 {so[i]}, {11*4096}", f"s_cselect_b32 {so[i]}, 0, {so[i]}"]
        pf = L(f"""s_mul_i32 {s.t0}, {s.j}, 43
        s_mul_i32 {s.t1}, {s.w}, 11
        s_add_u32 {s.t0}, {s.t0}, {s.t1}
        v_min_u32 {s.pfo}, 10, {s.n}
        v_add_lshl_u32 {s.pfo}, {s.t0}, {s.pfo}, 10""")
        if opt('g2map', 0): pf += L(f"s_and_b32 {s.t0}, {s.xcd}, 1\n s_xor_b32 {s.t0}, {s.t0}, {opt('g2map', 0) - 1}\n s_lshl_b32 {s.t0}, {s.t0}, 24\n v_add_u32 {s.pfo}, {s.t0}, {s.pfo}")
        return o, pf
    def pf3(s): return [f"s_mov_b64 exec, 0xffff\n buffer_load_dword {s.pfd}, {s.pfo}, {s.sw2}, 0 offen offset:384 ;@pf\n s_mov_b64 exec, -1"]
    def pf1(s): return [f"s_mov_b64 exec, 0xffff\n buffer_load_dword {s.pfe}, {s.pf1o}, {s.sw1}, 0 offen offset:384 ;@pf1\n s_mov_b64 exec, -1"]
    def pfx(s): return [f"v_lshlrev_b32 {s.pfe2}, 18, {s.l}", f"s_xor_b32 {s.t2}, {s.xo[0]}, 32768\n s_mov_b64 exec, 3\n buffer_load_dword {s.pfe2}, {s.pfe2}, {s.sx}, {s.t2} offen offset:384 ;@pfx\n s_mov_b64 exec, -1"]
    def pos(s, hb): return 3 if (hb == 7 and opt('nlate', 0) == 4) else hb % 8
    def w2dma(s, hb):
        pos = s.pos(hb)
        return [f"s_add_u32 m0, {s.m0b}, {(pos//2)*32768 + (pos%2)*4096}", f"s_lshl3_add_u32 {s.t2}, {s.hso[hb]}, {s.sw2o}"] + \
               [f"buffer_load_dwordx4 {s.g2vo[z-1] if z else s.vo2}, {s.sw2}, {s.t2} offen offset:{1024*z} lds ;@wb{hb}" for z in range(4)]
    def w2read(s, hb):
        pos = s.pos(hb); slot = pos // 2; dst = s.w2f[16*hb:16*hb+16]
        return [f"ds_read_b64_tr_b16 {dst[8*ks+4*nt+2*i:8*ks+4*nt+2*i+2]}, {s.g2ra[2*(slot//2)+nt]} offset:{(slot%2)*32768 + (pos%2)*4096 + ks*2048 + i*512}"
                for ks in range(2) for nt in range(2) for i in range(2)]
    def g2_setup(s):
        ra = s.v('g2ra', 4); s.v('rv', 4); s.v('rn', 4); s.sg('rowo', 2); s.sg('so_', 2); r = s.sg('sh', 4, 4); m = s.v('_m'); s.v('CGr', 4); s.v('CGi', 4); s.sg('gyo', 2)
        first = L(f"v_add_u32 {ra[0]}, {s.m0b}, {s.ra2}\n v_xor_b32 {ra[1]}, 64, {ra[0]}\n v_add_u32 {ra[2]}, 65536, {ra[0]}\n v_add_u32 {ra[3]}, 65536, {ra[1]}")
        o = L(f"""s_lshl_b32 {s.t0}, {s.w}, 14
        s_lshl_b32 {s.t1}, {s.p}, 5
        v_xor_b32 {s.c_ga}, {s.t1}, {s.c_ga}
        s_add_u32 {s.gyo[0]}, {s.t0}, {WS_Y1}
        s_add_u32 {s.gyo[1]}, {s.gyo[0]}, {8192-1024}
        s_lshl_b32 {s.t0}, {s.w}, 8
        v_add_u32 {s.c_ua}, {s.t0}, {s.c_ua}
        v_add_u32 {s.c_ew}, {s.ab[1]}, {s.c_ew}""") + [f"v_add_u32 {s.c_er[c]}, {s.ab[0]}, {s.c_er[c]}" for c in range(4)]
        o += L(f"v_lshlrev_b32 {m}, 30, {s.q}\n v_and_b32 {m}, 0x80000000, {m}")
        o += cat([f"v_xor_b32 {s.CGr[c]}, {s.IVr[c]}, {m}", f"v_xor_b32 {s.CGi[c]}, {s.IVi[c]}, {m}"] for c in range(4))
        o += L(f"""s_mul_i32 {s.t0}, {s.w}, {RED_S}
        v_add_u32 {s.g2rw}, {s.t0}, {s.g2rw}
        s_mul_i32 {s.t0}, {s.w}, {8*272}
        v_add_u32 {s.g2rr}, {s.t0}, {s.g2rr}
        s_lshl_b32 {s.t0}, {s.rb}, {10 + EV}
        s_and_b32 {s.t1}, {s.w}, 1
        s_lshl4_add_u32 {s.t0}, {s.t1}, {s.t0}
        s_lshr_b32 {s.t1}, {s.w}, 1
        s_lshl2_add_u32 {s.t0}, {s.t1}, {s.t0}
        s_add_u32 {s.t0}, {s.t0}, {WS_R}
        v_lshrrev_b32 {m}, 3, {s.l}
        v_lshl_add_u32 {s.rn[0]}, {m}, {7 + EV}, {s.t0}
        s_lshl_b32 {s.t0}, {s.w}, 5
        s_add_u32 {s.t0}, {s.t0}, {s.rb}
        s_lshl_b32 {s.t0}, {s.t0}, 6
        s_add_u32 {s.t0}, {s.t0}, {s.fs}
        s_lshl_b32 {s.rowo[0]}, {s.t0}, 7
        s_add_u32 {s.rowo[1]}, {s.rowo[0]}, {4*262144}
        s_add_u32 {s.so_[0]}, {s.rowo[0]}, {WS_S}
        s_add_u32 {s.so_[1]}, {s.rowo[1]}, {WS_S}
        s_mul_i32 {s.t0}, {s.rb}, 86
        s_mul_i32 {s.t1}, {s.w}, 22
        s_add_u32 {s.t0}, {s.t0}, {s.t1}
        s_lshl_b32 {s.t0}, {s.t0}, 11
        s_add_u32 {s.t0}, {s.t0}, {WS_H}
        s_add_u32 {r[0]}, {s.sws[0]}, {s.t0}
        s_addc_u32 {r[1]}, {s.sws[1]}, 0
        s_cmp_eq_u32 {s.w}, 3
        s_cselect_b32 {r[2]}, 20, 22
        s_lshl_b32 {r[2]}, {r[2]}, 11
        s_mov_b32 {r[3]}, 0x20000""")
        s.vfree('_m'); return first, o
    def hload(s, idx):
        mt, i = ORDER[idx]; sl = idx % s.NH
        return f"buffer_load_dwordx4 {s.hf[4*sl:4*sl+4]}, {s.hla}, {s.sh}, {s.hso[i//2]} offen offset:{(i%2)*2048 + mt*1024} sc1 ;@h{idx}"
    def red_write(s, mt): return [f"ds_write_b128 {s.g2rw}, {s.acc2[32*mt+4*k:32*mt+4*k+4]} offset:{mt*4*RED_S + 32*k}" for k in range(8)]
    def red_read(s, mt): return [f"ds_read_b128 {s.acc2[32*mt+4*k:32*mt+4*k+4]}, {s.g2rr} offset:{mt*4*RED_S + (k//2)*RED_S + (k%2)*16}" for k in range(8)]
    def unpack(s, dst, src): return cat([f"v_lshlrev_b32 {dst[2*c]}, 16, {src[c]}", f"v_and_b32 {dst[2*c+1]}, 0xffff0000, {src[c]}"] for c in range(src.n))
    def finish(s, mt, pk, sr):
        a = s.acc2[32*mt:32*mt+32]; xf = s.fx[8*mt:8*mt+8]; sf = s.fs_[8*mt:8*mt+8]
        def op(name, d, x, y, z=None, bc=False):
            if pk: return [f"v_pk_{name}_f32 {d[h:h+2]}, {x[h:h+2]}, {y if bc else y[h:h+2]}" + (f", {z[h:h+2]}" if z else "") + (" op_sel_hi:[1,0]" if bc else "") for h in range(0, 8, 2)]
            yy = lambda c: (y if isinstance(y, str) else y[0]) if bc else y[c]
            return [f"v_{name}_f32 {d[c]}, {yy(c)}, {x[c]}" + (f", {z[c]}" if z else "") for c in range(8)]
        o, e = a[0:8], a[8:16]
        p1 = op('add', o, o, e) + op('add', a[16:24], a[16:24], a[24:32]) + op('add', o, o, a[16:24]) + op('mul', e, o, s.rn[2*mt:2*mt+2], bc=True)
        p1 += [f"v_exp_f32 {e[c]}, {e[c]}" for c in range(8)]
        p1 += op('mul', o, o, sf) if sr else op('mul', o, o, s.rv[2*mt:2*mt+2], bc=True)
        p1 += op('add', e, e, '1.0', bc=True) + [f"v_rcp_f32 {e[c]}, {e[c]}" for c in range(8)]
        if not sr: p1 += op('mul', o, o, e)
        p3 = op('fma', o, o, e if sr else sf, xf) + [f"v_cvt_pk_bf16_f32 {a[16+c]}, {o[2*c]}, {o[2*c+1]}" for c in range(4)]
        p3.append(f"buffer_store_dwordx4 {a[16:20]}, {s.g2st}, {s.sout}, {s.rowo[mt]} offen sc1 ;@out")
        return p1, p3
    def s_fetch(s, S):
        ld = [f"buffer_load_dwordx4 {S[4*m:4*m+4]}, {s.g2st}, {s.sws}, {s.so_[m]} offen sc1" for m in range(2)]
        ck = [f"v_max3_u32 {s.pv}, {S[0]}, {S[1]}, {S[2]}", f"v_max3_u32 {s.pv2}, {S[3]}, {S[4]}, {S[5]}", f"v_max3_u32 {s.pv}, {s.pv}, {S[6]}, {S[7]}", f"v_max_u32 {s.pv}, {s.pv}, {s.pv2}",
              f"v_cmp_eq_u32 vcc, -1, {s.pv}"]
        s.tail += L(f"""L_retryS:
        {f"s_add_u32 {s.spin}, {s.spin}, {1 << 24}" if s.cnt else ""}
        s_add_u32 {s.spin2}, {s.spin2}, 1
        s_cmp_ge_u32 {s.spin2}, 400000
        s_cbranch_scc1 L_outS
        s_mov_b64 exec, vcc
        s_sleep {opt('ps', 3)}""") + ld + ["s_waitcnt vmcnt(0)"] + ck + L("s_cbranch_vccnz L_retryS\n L_outS:\n s_mov_b64 exec, -1\n s_branch L_backS")
        return [x + " ;@sl" for x in ld], ["@wait sl"] + ck[:4] + [ck[4] + "\n s_cbranch_vccnz L_retryS\n L_backS:"]
    def c_gather(s):
        return [f"s_add_u32 m0, {s.ab[3]}, {L_U}"] + [f"buffer_load_dwordx4 {s.c_ga}, {s.sws}, {s.gyo[t]} offen offset:{1024*t} sc1 lds ;@gy" for t in range(2)]
    def c_parts(s):
        F = s.v('cF', 8); D = [[s.v(f'cD{i}{x}', 4) for x in 'ri'] for i in range(2)]; Sp = [[s.v(f'cS{i}{x}', 4) for x in 'ri'] for i in range(2)]; tmp = s.v('ctmp', 4)
        U = [F[0:4], F[4:8]]; sw = ["s_waitcnt lgkmcnt(0)", f"v_swap_b32 {F[1]}, {F[4]}", f"v_swap_b32 {F[3]}, {F[6]}"]
        o = [f"ds_read_b64 {F[2*pos:2*pos+2]}, {s.c_ua} offset:{1024*c}" for pos, c in enumerate((0, 2, 1, 3))] + ['@1'] + sw
        o += cat([f"{M16} {D[i][0]}, {s.C3r}, {U[i]}, 0", f"{M16} {D[i][1]}, {s.C3i}, {U[i]}, 0"] for i in range(2)) + ['@2']
        o += cat(s.pack(lambda c: U[i][c], D[i][0], D[i][1]) + [f"ds_write_b128 {s.c_ew}, {U[i]} offset:{16*i}"] for i in range(2))
        o += ['@3', "s_waitcnt lgkmcnt(0)", "s_barrier"]
        o += [f"ds_read_b64 {F[2*pos:2*pos+2]}, {s.c_er[c]}" for pos, c in enumerate((0, 2, 1, 3))] + ['@4'] + sw
        o += cat([f"{M16} {D[i][0]}, {U[i]}, {s.CGr}, 0", f"{M16} {D[i][1]}, {U[i]}, {s.CGi}, 0", f"{M16} {Sp[i][0]}, {U[i]}, {s.SCr}, 0", f"{M16} {Sp[i][1]}, {U[i]}, {s.SCi}, 0"] for i in range(2)) + ['@5']
        for i in range(2):
            o += [f"v_cndmask_b32 {D[i][x][0]}, {D[i][x][0]}, {Sp[i][x][0]}, {s.mq0}" for x in range(2)]
            if i: o += [f"{M16} {D[0][0]}, {U[0]}, {s.C1x}, 0", f"{M16} {D[0][1]}, {U[0]}, {s.C1y}, 0"]
            o += s.cmul(D[i][0], D[i][1], s.T512c, s.T512s, tmp, True) + s.pack(lambda c: U[i][c], D[i][0], D[i][1])
        Q = [Sp[0][0], Sp[1][0]]
        cv = lambda i: [f"v_cvt_pk_bf16_f32 {Q[i][2*y+h]}, {D[i][y][2*h]}, {D[i][y][2*h+1]}" for y in range(2) for h in range(2)]
        stt = lambda i: [f"v_min_u32 {Q[i][c]}, -2, {Q[i][c]}" for c in (0, 2, 1, 3)] + [f"v_permlane16_swap_b32 {Q[i][0]}, {Q[i][2]}", f"v_permlane16_swap_b32 {Q[i][1]}, {Q[i][3]}", f"buffer_store_dwordx4 {Q[i]}, {s.s_st}, {s.sws}, {s.xo[i]} offen sc1 ;@s"]
        c0 = cv(0)
        o += c0[:2] + [f"{M16} {D[1][0]}, {U[1]}, {s.C1x}, 0", f"{M16} {D[1][1]}, {U[1]}, {s.C1y}, 0"] + c0[2:] + ['@6'] + stt(0) + cv(1) + stt(1)
        return o
    def build(s):
        A = s.A
        s.entry(); nso = opt('nso', 3); A(s.so_calc(0, nso))
        A(f"""s_waitcnt lgkmcnt(0)
        buffer_load_dwordx4 {s.l16}, {s.sx}, {s.xo[0]} offen lds ;@xr
        buffer_load_dwordx4 {s.l16}, {s.sx}, {s.xo[1]} offen offset:1024 lds ;@xr
        s_mov_b64 {s.sx1[0:2]}, {s.sx[0:2]}
        s_cmp_eq_u32 {s.fs1}, 15
        s_cselect_b64 {s.sw1[0:2]}, {s.sw2[0:2]}, {s.sw1[0:2]} ;@K""")
        s.stamp('karg'); s.S.free = [0, 1] + s.S.free
        tr = s.tables(); W = s.v('wraw', 8); s.v('vtag'); s.ss('xo2 mlo')
        halves = cat(s.g1_halves(st) for st in range(8)); npre = opt('npre', 6)
        asc = s.a_scalars()
        wl = [f"buffer_load_dwordx4 {W[0:4]}, {s.g1vw[3]}, {s.swr}, {s.wl} offen ;@W", f"buffer_load_dwordx4 {W[4:8]}, {s.g1vw[3]}, {s.swi}, {s.wl} offen ;@W"]
        q = glue(cat(halves[:npre])); wpos = opt('wpos', 7); q = q[:wpos] + wl + q[wpos:]
        PFX = opt('p1q', -1) >= 0 or opt('pxq', -1) >= 0
        if PFX: s.vs('pfe pfe2 pf1o')
        if opt('p1q', -1) >= 0:
            asc += L(f"s_mul_i32 {s.t0}, {s.j}, 43\n s_mul_i32 {s.t1}, {s.w}, 11\n s_add_u32 {s.t0}, {s.t0}, {s.t1}\n v_min_u32 {s.pf1o}, 10, {s.n}\n v_add_lshl_u32 {s.pf1o}, {s.t0}, {s.pf1o}, 10")
            assert opt('p1q', -1) >= opt('n0', 4); q.insert(opt('p1q', -1), s.pf1()[0])
        if opt('pxq', -1) >= 0: q.insert(opt('pxq', -1), "\n".join(s.pfx()))
        if opt('scp', 1) == 2:
            assert opt('pxq', -1) < 0
            clr = R('a', 200, 4); A([f"v_accvgpr_write_b32 {clr[c]}, -1" for c in range(4)] + [f"s_add_u32 {s.xo[0]}, {s.xo[0]}, {WS_S}", f"s_add_u32 {s.xo[1]}, {s.xo[0]}, 262144"])
            k = opt('scq', 0); q[k:k] = [f"buffer_store_dwordx4 {clr}, {s.l16}, {s.sws}, {s.xo[i]} offen sc1 ;@sc" for i in range(2)]
        n0 = opt('n0', 4); assert not any(str(s.sw1) in x or ';@W' in x for x in q[:n0]) or opt('vwc', 0); assert True or n0 <= (wpos if opt('vwc', 0) else 4); A(q[:n0]); q = q[n0:]
        A(s.fwarm()); A(f"s_mov_b32 {s.t0}, {EP}\n buffer_load_dword {s.vtag}, off, {s.sws}, {s.t0} sc1 ;@tag")
        rsc, rfix = s.g1_rd_setup()
        su = asc + s.const_A3() + s.so_calc(nso, 8) + rsc + s.flags_setup(); k = min(opt('sb', 60), len(su)); assert k >= len(asc)
        while k < len(su) and su[k].startswith('s_cselect'): k += 1
        A(su[:k]); su = su[k:]
        A("@wait tb\n s_barrier"); s.stamp('tb')
        A(tr[:12])
        A(f"""s_waitcnt lgkmcnt(8)
        v_add_u32 {s.a_trad}, {s.ab[3]}, {s.a_trad}
""")
        if not opt('vwc', 0):
            A(f"s_cmp_eq_u32 {s.fs1}, 15\n s_cselect_b64 {s.mq0}, -1, 0"); A([f"v_cndmask_b32 {s.g1vw[z]}, {s.g1vw[z]}, {s.l16}, {s.mq0}" for z in range(3)]); A(f"s_mov_b64 {s.mq0}, 0xffff")
        n1 = opt('n1', 5)
        A(sprinkle(tr[12:] + su, q[:n1], 0, opt('e0', 8))); q = q[n1:]
        wdone = 'W' in A.vmlog and not any(';@W' in x for x in q)
        if wdone: s.sfree('swr swi wl')
        s.vfree('cpf _tad')
        RL = opt('rl', 0)
        A("@wait xr lgkm=0"); s.stamp('xin')
        na = opt('na', 6)
        A(sprinkle(s.a_part1(s.a_fix()), q[:na], opt('f1a', 50), opt('e1', 18))); q = q[na:]
        assert 'st3' not in A.vmlog
        A(rfix[:opt('rf', 12)]); A("s_waitcnt lgkmcnt(0)\n s_barrier"); s.stamp('a1')
        rf2 = rfix[opt('rf', 12):]
        p2, wst_, pk, xrd, xst = s.a_part2()
        if RL & 1: rf2 = rf2 + s.reloc_prod(s.xost, s.p, 0xff000000, 0xff000000, f"s_bitcmp0_b32 {s.w}, 0")
        A(p2[:2] + rf2); A(sprinkle(p2[2:], q[:opt('na2', 3)], 4, 3)); q = q[opt('na2', 3):]
        P = dict(head={t: [] for t in range(16)}, also={t: '' for t in range(16)}, extra={t: [] for t in range(16)}, first={t: [] for t in range(16)}, last={t: [] for t in range(16)}, bar=set())
        head, also, extra = P['head'], P['also'], P['extra']
        f1 = opt('f1', 4); p1 = opt('p1', 9); c1s = opt('c1', 12); pf3 = opt('pf3', 6)
        gsc, bsu = s.b_setup(); wsu, pfs = s.w2_setup()
        if RL & 1: gsc += s.reloc_cons(s.b_ga, s.j, 1, 2)
        if RL & 2: wsu += s.reloc_prod(s.b_st, s.j, 0xff000000, 0)
        if RL & 8:
            s.v('hla'); wsu += [f"v_mov_b32 {s.hla}, {s.l16}"] + L(f"s_lshr_b32 {s.t1}, {s.w}, 1\n s_lshl1_add_u32 {s.t1}, {s.rb1}, {s.t1}") + s.reloc_prod(s.hla, s.t1, 0xff000000, 0)
        else: s.hla = s.l16
        if RL: s.v('_keep')
        wst = [int(x) for x in opt('wst', '11,12,14,15').split(',') if x]
        hA, hB, hC = opt('hA', -2), opt('hB', -2), opt('hC', -2); head[-1] = []; head[-2] = []
        head[opt('hT', f1)] += s.tag_fix(); head[hA] += pfs + gsc + s.h_offsets(); head[hB] += wsu
        if hC != 15: head[hC] += bsu
        assert hA <= min(c1s, pf3 or 99, hB) and hB <= min(wst + [15])
        xin = opt('xin', 3)
        if xin == 0: A(pk + head[-2] + wst_ + xrd + q + xst[:1] + cat([f"s_waitcnt lgkmcnt({3-z})", xst[1+z]] for z in range(4)) + head[-1])
        elif xin == 3: A(pk + sprinkle(head[-2], q, 0, opt('e6', 12)) + wst_ + xrd + xst[:1] + cat([f"s_waitcnt lgkmcnt({3-z})", xst[1+z]] for z in range(4)) + head[-1])
        elif xin == 1: A(pk + head[-2] + wst_ + xrd + q + head[-1]); extra[0] += xst
        else:
            xs = opt('xs', 0); A(pk + sprinkle(head[-2] + head[-1], q, 0, opt('e6', 12)))
            also[xs] += ' W'; P['first'][xs] += wst_[1:]; P['last'][xs] += xrd; extra[xs+1] += xst; assert f1 > xs + 1
        if not wdone: s.sfree('swr swi wl')
        s.vfree('aF0 aF1 a_trad sel0 a_wr B1r B1i SAr SAi A3r A3i mn0 sgn a_rd a_st0 a_st1 wa0 xa0'); s.sfree('apiv')
        s.v('acc1', 48); s.v('accc', 12); mm = s.v('g1m', 8)
        s.stamp('a2')
        t = opt('o3', 0)
        for h in range(npre, 16):
            t = max(t, 2*(h//2 - 4) + 1)
            if t == c1s and opt('gfirst', 1): t += 1
            if xin == 2 and t == opt('xs', 0) + 1 and opt('xfirst', 1): t += 1
            assert t <= 2*(h//2) - 2, (h, t)
            extra[t] += halves[h]; t += 1
        also[f1] += ' x1'; extra[f1] = s.flag('f1', s.fo) + extra[f1]
        if pf3: extra[pf3] += s.pf3()
        i1, c1 = s.poll('p1', s.pa, 0)
        head[c1s] += c1; extra[c1s] = [f"buffer_load_dwordx4 {mm[0:4]}, {s.mla}, {s.sws}, {s.mlo} offen sc1 ;@m"] + s.b_gather() + extra[c1s]; P['bar'].add(c1s); P['bar'].add(f1)
        extra[p1] = i1 + extra[p1]
        for hb, st in enumerate(wst):
            assert st >= 9 + 2*(hb//2); extra[st] += s.w2dma(hb)
        P['last'][15] += [''] * max(0, 9 - len(glue(extra[15]))) + [f"ds_write_b128 {s.xw}, {s.accc[0:4]}", "@wait m", f"v_mov_b32 {mm[4]}, {mm[1]}", f"v_mov_b32 {mm[6]}, {mm[3]}"]
        if hC == 15: P['first'][15] += bsu
        A("@wait st0\n s_barrier"); s.stamp('in0'); A(s.g1_reads(0))
        for step in range(16):
            s.g1_step(step, P)
            if step == opt('xs', 0) + 2: s.vfree('aD0r aD0i aD1r aD1i ast wraw wso wso2 xord xost rms'); s.sfree('x1o xo2')
        s.stamp('g1main')
        brd, bsw, bmain, brd2, bst = s.b_parts()
        nb = len(wst); e0 = opt('ne', 0); nbb = opt('nbb', 2); nd = opt('nd', 1); assert nb + e0 + nbb <= 8 and nb + e0 >= 3
        epi = s.g1_epilogue()
        if opt('gxe', 1):
            k = epi.index('s_barrier'); epi[k-1] = "@wait gx lgkm=0"; epi[k+2:k+2] = brd
        A(sprinkle(epi, glue(cat(s.w2dma(h) for h in range(nb, nb + e0))), opt('ef', 2), opt('ee', 15)))
        clr = s.g1m[0:4]
        sclr = [f"v_mov_b32 {clr[c]}, -1" for c in range(4)] + [f"s_add_u32 {s.xo[0]}, {s.xo[0]}, {WS_S}", f"s_add_u32 {s.xo[1]}, {s.xo[0]}, 262144"] + \
               [f"buffer_store_dwordx4 {clr}, {s.l16}, {s.sws}, {s.xo[i]} offen sc1 ;@sc" for i in range(2)]
        if opt('scp', 1) == 0: A(sclr)
        s.stamp('g1epi')
        if not opt('gxe', 1): A("@wait gx\n s_barrier"); A(brd); A("s_waitcnt lgkmcnt(0)")
        A(bsw); A(sprinkle(bmain, glue(cat(s.w2dma(h) for h in range(nb + e0, nb + e0 + nbb))), opt('bf', 40), opt('e2', 16)))
        if opt('scp', 1) == 1: A(sclr)
        s.vfree('g1m g1P acc1 accc g1wa g1xa g1vx g1vw xw xr_ pfo pfd mla' + (' pfe pfe2 pf1o' if PFX else '')); s.afree('ones xf wf'); s.sfree('sox sow tau0 dtau sx1 sw1 go mlo')
        hb_ = opt('hearly', 1)
        A(("@wait h lgkm=0" if hb_ == 1 else "s_waitcnt lgkmcnt(0)") + "\n s_barrier"); A(brd2)
        if hb_ == 1: A(s.flag('f2', s.fo2))
        ht = s.v('ht', 2)
        touch = [f"v_lshlrev_b32 {ht[0]}, 7, {s.l}", "s_mov_b64 exec, 0xffff\n" + "\n".join(f"buffer_load_dword {ht[1]}, {ht[0]}, {s.sws}, {s.hst[i]} offen sc1 ;@ht" for i in range(3)) + "\n s_mov_b64 exec, -1"]
        HT = opt('ht', 0); assert not HT or hb_ == 1
        if HT == 1: A(touch)
        s.v('acc2', 64); s.a('w2f', 176); NH = s.NH = opt('nh', 16); s.a('hf', 4*NH)
        X = s.v('fX', 8); S = s.v('fS', 8); pv2 = s.v('pv2')
        g0, g1 = s.g2_setup(); A(g0)
        if RL & 2: g1 += s.reloc_cons(s.c_ga, s.p, 2, 1)
        if RL & 8: g1 += [f"v_mov_b32 {s.hla}, {s.l16}"] + s.reloc_prod(s.hla, s.rb, 0xff000000, 0) + [f"s_mov_b32 {s.sh[2]}, {BIG + 65536}"]
        A("s_waitcnt lgkmcnt(0)"); A(bst); s.stamp('b')
        if HT == 2: A(touch)
        s.vfree('bD0r bD0i bD1r bD1i btmp bX bW b_ua b_wa b_uo T256c T256s b_lin b_ga FWr FWi IVr IVi ra2'); s.sfree('y1o')
        g1.append(f'v_add_u32 {s.pa}, {F3 - F1}, {s.pa}'); i3, c3 = s.poll('p3', s.pa, 0); pv = s.pv; s.pv = pv2; i2, c2 = s.poll('p2', s.pg2, 0); s.pv = pv
        n1_ = nb + e0 + nbb; rest = list(range(n1_, 11))
        cc = [f"@wait wb{nb-1}"] + sprinkle(g1 + s.const_C3(), cat(s.w2read(h) for h in range(nb)), 0, 2)
        k = min(opt('ca', 70), len(cc))
        while k < len(cc) and cc[k].startswith(('s_cselect', 's_addc')): k += 1
        assert n1_ + nd <= 8
        A(cat(s.w2dma(h) for h in rest[:nd])); A(cc[:k]); s.stamp('pre')
        t0 = s.t0; s.t0 = s.t2
        A("@wait y1\n s_barrier"); A(s.flag('f3', s.fo, F3 - F1)); s.t0 = t0
        if hb_ == 0: A(s.flag('f2', s.fo2))
        s.stamp('ack'); s.vfree('bF b_st')
        xl = [f"buffer_load_dwordx3 {s.rv[0:3]}, {s.rn[0]}, {s.sws}, 0 offen sc1 ;@r"] + \
             [f"buffer_load_dwordx4 {X[4*m:4*m+4]}, {s.g2st}, {s.sx}, {s.rowo[m]} offen ;@xt" for m in range(2)]
        cpos = opt('cpos', 18); nlate = opt('nlate', 0); ev = {i: [] for i in range(45)}; xi = opt('xi', -1)
        lateh = list(range(11 - nlate, 11)); assert nlate <= min(4, len(rest) - nd) and n1_ >= 4
        lo = [h for h in rest[nd:] if h < 8 and h not in lateh]; hi = [h for h in rest[nd:] if h >= 8 and h not in lateh]
        A(sprinkle(cc[k:] + cat(s.w2read(h) for h in range(nb, n1_)), glue(cat(s.w2dma(h) for h in lo)), 0, opt('e5', 8))); A("s_waitcnt lgkmcnt(0)")
        wq = glue(cat(s.w2dma(h) for h in hi)) + (xl if xi == -1 else []); nw = opt('nw', 4)
        A(wq[:nw]); wq = wq[nw:]
        if opt('d2', 0): A(f"s_sleep {opt('d2', 0)}")
        s.stamp('pre3'); A(i2); A(wq)
        if RL & 8:
            assert not nlate
            A(f"s_cmp_eq_u32 {s.w}, 3\n s_cselect_b32 {s.t0}, {9*4096}, -1"); A([f"s_min_u32 {s.hso[i]}, {s.hso[i]}, {s.t0}" for i in range(3 if opt('rot2', 'x') == 'x' else 10, 11)])
        A(c2); s.stamp('f2')
        now = [h for h in rest if h not in lateh]
        early = [h for h in now if A.vmlog.index('p2') > max(i for i, t in enumerate(A.vmlog) if t == f'wb{h}')]
        lead = min(NH, opt('lead', 10)); hq = [s.hload(i) for i in range(lead)]; p3 = opt('p3', -4); c3i = opt('c3', 6)
        if p3 < 0: hq[lead+p3:lead+p3] = i3
        else: ev[p3] += i3
        A(sprinkle(cat(s.w2read(h) for h in early), hq, 0, 3))
        if len(early) < len(now): A(f"@wait wb{now[-1]}"); A(cat(s.w2read(h) for h in now if h not in early))
        ev[c3i] += [f"s_cmp_eq_u32 {s.p}, 0\n s_cselect_b32 {s.t1}, {s.fo}, {WS_SIZE}"] + c3 + ["s_barrier"] + glue(s.c_gather()) + s.flag('ep', s.t1, EP - F1)
        pre = {i: [] for i in range(45)}; inc = []
        for h in lateh:
            use = ORDER.index((0, 2*h)); st = use - opt('la', 14); d = glue(s.w2dma(h))
            if opt('lc', 0):
                inc.extend(d); assert use - 2 >= cpos + sum(int(x) for x in opt('gap', '1,0,1,1,0,0').split(','))
                ev[use-2] += [f"@wait wb{h}"] + s.w2read(h); pre[use] += ["s_waitcnt lgkmcnt(0)"]; continue
            if st == c3i - 1: st -= 1
            assert st >= 0
            ev[st] += d[:2]; ev[st+1] = d[2:] + ev[st+1]; ev[use-2] += [f"@wait wb{h}"] + s.w2read(h); pre[use] += ["s_waitcnt lgkmcnt(0)"]
        top = (inc + ['@T'] * (NH - lead) if opt('lc', 0) == 1 else ['@T'] * (NH - lead) + inc) + (xl if xi == -2 else [])
        per = [int(x) for x in opt('cq', '1,1,1,1,1,9').split(',')]; cblk = ["@wait gy", "s_barrier"]
        gap = [int(x) for x in opt('gap', '1,0,1,1,0,0').split(',')]; blk = {}; at = cpos; cend = cpos + sum(gap)
        for x in s.c_parts():
            if x[0] == '@' and len(x) == 2:
                k = int(x[1]); cblk += top[:per[k-1]]; top = top[per[k-1]:]
                if gap[k-1]: blk[at] = cblk; cblk = []; at += gap[k-1]
            else: cblk.append(x)
        cblk += top; blk[at] = cblk
        assert p3 < c3i < cpos <= 30
        s.vfree('cF cD0r cD0i cD1r cD1i cS0i cS1i ctmp C3r C3i CGr CGi c_er c_ua c_ew c_ga T512c T512s')
        s.v('fx', 16); s.v('fs_', 16)
        if xi >= 0:
            for k in range(3): ev[xi + k] += [xl[k]]
        sli = opt('sl', 36); sw = opt('sw', 60); assert cend < sli < sw
        sld, sck = s.s_fetch(S); ev[sli] += sld
        w0 = max(45 - LAG, cend); assert w0 + 1 + opt('rw', 7) <= 43 - opt('nl', 5) and LAG >= opt('nl', 5)
        for k in range(8): ev[w0 + k*opt('rw', 7)//8] += [s.red_write(0)[k]]
        r0 = w0 + 1 + opt('rw', 7); ev[r0] += ["s_waitcnt lgkmcnt(0)\n s_barrier"] + s.red_read(0)
        SR = sw < 100
        a1, a3 = s.finish(0, False, False)
        if sw > 44: _, a3 = s.finish(0, True, False)
        s1 = s.unpack(s.fs_[8:16], S[4:8])
        if SR: s1 += [f"v_pk_mul_f32 {s.fs_[c:c+2]}, {s.fs_[c:c+2]}, {s.rv[2:4]} op_sel_hi:[1,0]" for c in range(8, 16, 2)] if sw > 44 else [f"v_mul_f32 {s.fs_[c]}, {s.rv[2]}, {s.fs_[c]}" for c in range(8, 16)]
        streams = [(max(18, cend + (6 if xi == -2 else 0)), ["@wait xt"] + [f"v_mul_f32 {s.rn[2*m]}, {fl(-LOG2E)}, {s.rv[2*m]}" for m in range(2)] + s.unpack(s.fx, X)),
                   (r0 + 2, ["s_waitcnt lgkmcnt(0)"] + a1), (sw, sck + s.unpack(s.fs_[0:8], S[0:4]) + a3 + s1)]
        perm = opt('per', 6); nlast = opt('nl', 5); late = []; nxt = [lead]
        def take(idx, n):
            o = []
            while streams and n > 0 and streams[0][0] <= idx:
                x = streams[0][1][:n]; del streams[0][1][:n]; o += x; n -= len(x)
                if not streams[0][1]: streams.pop(0)
            return o
        def hnext():
            if nxt[0] >= 44: return []
            nxt[0] += 1; return [s.hload(nxt[0] - 1)]
        for idx in range(44):
            mt, i = ORDER[idx]; sl = idx % NH
            if idx == cpos: s.stamp('gy')
            for x in blk.get(idx, []): A(hnext() if x == '@T' else x)
            if idx == cend: s.stamp('c')
            A(f"@wait h{idx}" + (" lgkm=0" if idx == 0 or pre[idx] else ""))
            if idx == 0: s.stamp('h0')
            if idx and idx % 3 == 0: s.stamp(f'.h{idx}')
            mf = []
            for nt in range(2):
                acc = s.acc2[32*mt+16*nt:32*mt+16*nt+16]
                mf.append(f"{M32} {acc}, {s.w2f[8*i+4*nt:8*i+4*nt+4]}, {s.hf[4*sl:4*sl+4]}, {acc if i else 0}")
            if idx >= 44 - nlast:
                assert nxt[0] == 44
                late.append(mf[1]); A(mf[0]); A(ev[idx] + take(idx, perm // 2 - len(ev[idx]))); continue
            fill = list(ev[idx]); fill += take(idx, perm - len(fill)); h = (len(fill) + 1) // 2
            A(mf[0]); A(fill[:h]); A(mf[1]); A(hnext() + fill[h:]); assert nxt[0] <= idx + 1 + NH
        rw = s.red_write(1)
        for k, m in enumerate(late):
            A(m); A(take(50, perm // 2))
            if k >= 2 and len(rw) > 4: A(rw[:2]); rw = rw[2:]
        s.stamp('g2main'); A(ev[44])
        A(rw[:len(rw)-4]); A(take(60, 10)); A(rw[len(rw)-4:]); A(take(70, 20))
        A("s_waitcnt lgkmcnt(0)\n s_barrier"); A(s.red_read(1)); A(take(99, 999))
        a1, a3 = s.finish(1, True, SR)
        A("s_waitcnt lgkmcnt(4)"); A(a1[:4]); A("s_waitcnt lgkmcnt(0)"); A(a1[4:]); A(take(999, 999)); A(a3)
        s.stamp('fin')
        if STAMPS:
            A("s_waitcnt vmcnt(0)"); s.stamp('end'); n = len(s.tags)
            A(f"""s_waitcnt lgkmcnt(0)
            v_writelane_b32 {s._sv}, {s._sp[2*((n-1)%2)]}, {n-1}
            v_writelane_b32 {s._sv}, {s.spin if s.cnt else s.spin2}, 31
            s_lshl2_add_u32 {s.t0}, s2, {s.w}
            s_lshl_b32 {s.t0}, {s.t0}, 7
            s_add_u32 {s.t0}, {s.t0}, {32<<20}
            v_lshl_add_u32 v0, {s.l}, 2, {s.t0}
            s_mov_b64 exec, 0xffffffff
            global_store_dword v0, {s._sv}, {s.sws[0:2]}""")
        A("L_end:\n s_endpgm"); A(s.tail); A("L_codeend:")

def main(cls):
    k = cls(); k.build(); b = k.A.finish()
    if opt('kill', ''):
        pats = opt('kill', '').split(','); Ls = b.split("\n")
        for i, l in enumerate(Ls):
            m = re.search(r';@(\w+)', l)
            if m and l.strip().startswith('buffer_') and m.group(1) != 'xr' and any(re.fullmatch(p, m.group(1)) for p in pats): Ls[i] = re.sub(r's\[\d+:\d+\], (s\d+|0) ', 's[4:7], 0 ', l)
            if ';@K' in l: Ls[i] = l + f"\n    s_mov_b32 s4, {k.sws[0]}\n    s_mov_b32 s5, {k.sws[1]}\n    s_mov_b32 s6, 0\n    s_mov_b32 s7, 0x20000"
        b = "\n".join(Ls)
    o = open("recurrent_scan__spectral_gfnet__dense_activation_relu__prompt.s.ref").read().split("; Override launch")[0]
    o += f"; @launch grid=(256,1,1) block=(256,1,1) lds={LDS}\n" + '.amdgcn_target "amdgcn-amd-amdhsa--gfx950"\n.text\n'
    o += f".globl {KN}\n.p2align 8\n.type {KN},@function\n{KN}:\n" + b + '.section .rodata,"a"\n.p2align 6\n'
    o += f""".amdhsa_kernel {KN}
  .amdhsa_next_free_vgpr 512
  .amdhsa_next_free_sgpr 102
  .amdhsa_accum_offset 256
  .amdhsa_group_segment_fixed_size 0
  .amdhsa_kernarg_size 72
  .amdhsa_user_sgpr_count 2
  .amdhsa_user_sgpr_kernarg_segment_ptr 1
  .amdhsa_system_sgpr_workgroup_id_x 1
.end_amdhsa_kernel
""" + k.tb.text("tbl")
    open(sys.argv[1], "w").write(o)
    print("v", k.V.hw, "a", k.AC.hw, "s", k.S.hw, "instrs", len(k.A.lines), "nops", k.A.nops)
    if STAMPS: open(sys.argv[1] + ".tags", "w").write(" ".join(k.tags))
if __name__ == "__main__": main(Kern)
```

```python
import sys, re
import numpy as np
from asmlib import *
import tables as TB
from comp import fl, M16, M32
KN = "recurrent_scan__spectral_gfnet__dense_activation_relu__prompt_kernel"
OPT = dict(a.split('=') for a in sys.argv[2:] if '=' in a)
def opt(k, d): return type(d)(OPT.get(k, d))
STAMPS = 'stamps' in sys.argv[2:]
WS_X1 = 0; WS_Y1 = 4 << 20; WS_H = 6 << 20; WS_S = 12 << 20; F1 = 14 << 20; WS_SIZE = 31 << 20; BIG = 16 << 20
EV = opt('ev', 1)
F3 = F1 + (4096 << EV); WS_R = F1 + (65536 << EV); F2 = F1 + (98304 << EV); EP = F2 + (8192 << EV)
LB = 131072; EH = 4288; XOS = 544; RED_S = 8704
L_TB = 98304; L_E = L_UO = LB; L_XR = L_XO = L_U = LB + 8704; L_XCH = LB + 26112; LDS = L_XCH + 4096
SWZ = 0
XT = opt('xt', 0)
LOG2E = 1.4426950408889634
def sprinkle(base, ins, first, every):
    out = []; ins = list(ins); due = 0
    for i, x in enumerate(base):
        out.append(x)
        if i >= first and (i - first) % every == 0: due += 1
        nxt = base[i+1] if i + 1 < len(base) else ''
        if due and ins and not nxt.startswith(('s_cselect', 's_addc', 's_subb', 's_cbranch')):
            out.append(ins.pop(0)); due -= 1
    return out + ins
def glue(lst):
    out = []; pend = []
    for x in lst:
        pend.append(x)
        if not x.startswith('s_') or 'buffer_' in x: out.append("\n".join(pend)); pend = []
    if pend: out.append("\n".join(pend))
    return out
def L(text): return [x.strip() for x in text.split('\n') if x.strip()]
def cat(it): return sum(it, [])

LAG = opt('lag', 18)
ORDER = [(0, i) for i in range(LAG)] + cat([(1, i), (0, i + LAG)] for i in range(22 - LAG)) + [(1, i) for i in range(22 - LAG, 22)]
class Kern:
    def __init__(s):
        s.A = Asm(); s.V = Regs('v', 1, 256); s.AC = Regs('a', 0, 240); s.S = Regs('s', 3, 102); s.tail = []; s.tb = TB.Table()
        if opt('kill', ''): s.S.alloc('_kill', 4, 4)
    def v(s, name, n=1): r = s.V.alloc(name, n); setattr(s, name, r); return r
    def a(s, name, n=1): r = s.AC.alloc(name, n); setattr(s, name, r); return r
    def sg(s, name, n=1, align=None): r = s.S.alloc(name, n, align); setattr(s, name, r); return r
    def vs(s, names): return [s.v(x) for x in names.split()]
    def ss(s, names): return [s.sg(x) for x in names.split()]
    def vfree(s, names): s.V.release(*names.split())
    def afree(s, names): s.AC.release(*names.split())
    def sfree(s, names): s.S.release(*names.split())
    def stamp(s, tag):
        if not STAMPS: return
        fine = opt('fine', '')
        if fine == 'none' and tag not in ('start', 'end'): return
        if tag.startswith('.'):
            if not fine or not tag.startswith('.' + fine): return
        elif fine and tag not in ('start', 'end', 'in0', 'g1main', 'g1epi', 'b', 'f2', 'h0', 'g2main', 'xin'): return
        if not hasattr(s, 'tags'): s.tags = []; s.sg('_sp', 4, 2); s.v('_sv')
        s.tags.append(tag); i = len(s.tags) - 1
        s.A(f"{'s_memtime' if opt('cyc', 0) else 's_memrealtime'} {s._sp[2*(i%2):2*(i%2)+2]}")
        if i > 0: s.A(f"v_writelane_b32 {s._sv}, {s._sp[2*((i-1)%2)]}, {i-1}")
    SRDS = [('sx', 0, 2097152), ('sw1', 32, 1409024), ('sw2', 40, 1409024), ('sws', 64, WS_SIZE), ('swr', 8, 2048*514), ('swi', 16, 2048*514), ('sout', 48, 2097152)]
    NT = 6
    def entry(s):
        A = s.A; s.stamp('start')
        if STAMPS and opt('skew', 0):
            A(f"s_and_b32 s90, s2, 7\n s_cmp_eq_u32 s90, 0\n s_cbranch_scc1 L_skd\n L_sk:\n s_sleep {opt('skew', 0)}\n s_sub_u32 s90, s90, 1\n s_cmp_lg_u32 s90, 0\n s_cbranch_scc1 L_sk\n L_skd:")
        for nm, off, sz in s.SRDS: s.sg(nm, 4, 4); A(f"s_load_dwordx2 {getattr(s, nm)[0:2]}, s[0:1], {off}")
        s.sg('sx1', 4, 4); s.sg('hso', 11, 2); s.sg('stb', 2); s.sg('spc', 2); s.vs('l n q l16 cpf'); s.ss('w rb fs p t0 t1 t2 xcd j rb1 fs1 spin2 m0b')
        s.cnt = STAMPS and opt('fine', '') != 'none'
        if s.cnt: s.sg('spin')
        t = s.v('_t')
        A(f"""v_lshrrev_b32 {s.q}, 6, v0
        s_cmp_ge_u32 s2, 256
        s_cbranch_scc1 L_end
        s_getpc_b64 {s.spc}
        L_pc:
        s_add_u32 {s.stb[0]}, {s.spc[0]}, tbl@rel32@lo+4
        s_addc_u32 {s.stb[1]}, {s.spc[1]}, tbl@rel32@hi+12
        v_readfirstlane_b32 {s.w}, {s.q}
        v_and_b32 {s.l}, 63, v0
        v_lshlrev_b32 {s.l16}, 4, {s.l}
        s_mul_i32 {s.t0}, {s.w}, {1024*s.NT}
        s_add_u32 m0, {s.t0}, {L_TB}
        v_add_u32 {t}, {s.t0}, {s.l16}""")
        for z in range(4): A(f"global_load_lds_dwordx4 {t}, {s.stb} offset:{1024*z} ;@tb")
        A(f"s_add_u32 m0, {s.t0}, {L_TB + 4096}\n v_add_u32 {t}, 4096, {t}\n s_lshr_b32 {s.j}, s2, 3\n s_and_b32 {s.t0}, {s.j}, 3\n s_lshl_b32 {s.t1}, {s.t0}, 12")
        for z in range(s.NT - 4): A(f"global_load_lds_dwordx4 {t}, {s.stb} offset:{1024*z} ;@tb")
        A(f"""v_lshrrev_b32 {t}, 3, v0
        v_lshl_add_u32 {t}, {t}, 7, {s.t1}
        v_min_u32 {t}, L_codeend-L_pc-4, {t}
        global_load_dword {s.cpf}, {t}, {s.spc} ;@cpf
        v_and_b32 {s.n}, 15, v0
        v_lshrrev_b32 {s.q}, 4, {s.l}
        s_and_b32 {s.xcd}, s2, 7
        s_lshl2_add_u32 {s.rb}, {s.xcd}, {s.t0}
        s_lshr_b32 {s.fs}, s2, 5
        s_lshl3_add_u32 {s.p}, {s.rb}, {s.fs}
        s_lshr_b32 {s.t1}, {s.xcd}, 1
        s_lshl2_add_u32 {s.rb1}, {s.t1}, {s.t0}
        s_xor_b32 {s.t0}, {s.t0}, {s.xcd}
        s_and_b32 {s.t0}, {s.t0}, 1
        s_sub_u32 {s.t0}, 15, {s.t0}
        s_and_b32 {s.t1}, {s.xcd}, 1
        s_mul_i32 {s.t1}, {s.t1}, 7
        s_add_u32 {s.fs1}, {s.t1}, {s.fs}
        s_cmp_eq_u32 {s.fs}, 7
        s_cselect_b32 {s.fs1}, {s.t0}, {s.fs1}
        s_lshl_b32 {s.m0b}, {s.w}, 13""")
        if opt('g1m', 0): A(f"s_lshr_b32 {s.rb1}, {s.rb}, 1\n s_and_b32 {s.t0}, {s.j}, 1\n s_lshl1_add_u32 {s.fs1}, {s.fs}, {s.t0}")
        if opt('g2map', 0):
            assert not SWZ and not opt('rl', 0) & 4
            A(f"""s_lshr_b32 {s.t0}, {s.xcd}, 1
            s_and_b32 {s.t1}, {s.j}, 7
            s_lshl3_add_u32 {s.rb}, {s.t0}, {s.t1}
            s_and_b32 {s.t0}, {s.xcd}, 1
            s_lshr_b32 {s.t1}, s2, 6
            s_lshl{2 if opt('g2map', 0) == 1 else 1}_add_u32 {s.fs}, {s.t0 if opt('g2map', 0) == 1 else s.t1}, {s.t1 if opt('g2map', 0) == 1 else s.t0}""")
        s.vfree('_t'); s.sfree('stb spc')
        for nm, off, sz in s.SRDS:
            r = getattr(s, nm); A(f"s_mov_b32 {r[2]}, {sz}\n s_mov_b32 {r[3]}, 0x20000")
        s.sg('xo', 2)
        A(f"""s_lshl_b32 {s.t0}, {s.w}, 11
        s_add_u32 m0, {s.t0}, {L_XR}
        s_lshl_b32 {s.xo[0]}, {s.w}, 9
        s_add_u32 {s.xo[0]}, {s.xo[0]}, {s.p}
        s_lshl_b32 {s.xo[0]}, {s.xo[0]}, 10
        s_add_u32 {s.xo[1]}, {s.xo[0]}, {262144-1024}""")
        vx = s.v('g1vx', 4); t, u = s.vs('_t _u'); s.sg('sox', 8, 1); s.sg('sow', 8, 1); bx, bw, mw, rot = s.ss('_bx _bw _mw _rot')
        A(f"""v_lshrrev_b32 {u}, 3, {s.l}
        v_and_b32 {t}, 7, {s.l}
        v_xor_b32 {t}, {t}, {s.q}
        v_lshlrev_b32 {u}, 10, {u}
        v_lshl_add_u32 {vx[0]}, {t}, 4, {u}
        v_xor_b32 {vx[1]}, 64, {vx[0]}
        v_add_u32 {vx[1]}, {262144-1024}, {vx[1]}
        v_add_u32 {vx[2]}, {2*(262144-1024)}, {vx[0]}
        v_add_u32 {vx[3]}, {2*(262144-1024)}, {vx[1]}
        s_and_b32 {s.t1}, {s.w}, 1
        s_lshr_b32 {s.t0}, {s.w}, 1
        s_lshl1_add_u32 {bx}, {s.rb1}, {s.t0}
        s_lshl_b32 {s.t2}, {s.t1}, 7
        s_add_u32 {bx}, {bx}, {s.t2}
        s_lshl_b32 {bx}, {bx}, 13
        s_lshl3_add_u32 {bw}, {s.t0}, {s.t1}
        s_mul_i32 {bw}, {bw}, {4*2752}
        s_mul_i32 {s.t2}, {s.fs1}, 192
        s_add_u32 {bw}, {bw}, {s.t2}
        s_mul_i32 {s.t0}, {s.rb1}, {86*1024}
        s_mul_i32 {s.t1}, {s.w}, 3072
        s_add_u32 {s.t0}, {s.t0}, {s.t1}
        s_mov_b32 {mw}, {64*2752}
        s_mov_b32 {s.sx1[3]}, 0x20000
        s_cmp_eq_u32 {s.fs1}, 15
        s_cselect_b32 {bw}, {s.t0}, {bw}
        s_cselect_b32 {mw}, 12288, {mw}
        s_cselect_b32 {s.sx1[2]}, 0, {s.sx[2]}""")
        if opt('vwc', 0):
            vw = s.v('g1vc', 3); k = s.v('_k'); A("s_cselect_b64 vcc, -1, 0")
            for z in range(3):
                A(f"""v_add_u32 {t}, {64*z}, {s.l}
                v_mul_u32_u24 {u}, 5462, {t}
                v_lshrrev_b32 {u}, 16, {u}
                v_mad_i32_i24 {t}, {u}, -12, {t}
                v_lshrrev_b32 {k}, 1, {u}
                v_and_b32 {k}, 2, {k}
                v_xor_b32 {t}, {t}, {k}
                v_and_b32 {k}, 12, {u}
                v_add_u32 {u}, {u}, {k}
                v_mul_u32_u24 {u}, 2752, {u}
                v_lshl_add_u32 {t}, {t}, 4, {u}""")
                if z: A(f"v_subrev_u32 {t}, {1024*z}, {t}")
                A(f"v_cndmask_b32 {vw[z]}, {t}, {s.l16}, vcc")
            s.vfree('_k')
        r1 = opt('rot1', 'kf1')
        if r1 == 'x': A(f"s_mov_b32 {rot}, {s.xcd}")
        elif r1 == 'xh': A(f"s_and_b32 {s.t0}, {s.j}, 1\n s_lshl2_add_u32 {rot}, {s.t0}, {s.xcd}")
        elif r1 == 'x1': A(f"s_and_b32 {s.t0}, {s.j}, 1\n s_add_u32 {rot}, {s.t0}, {s.xcd}")
        elif r1 == 'x2': A(f"s_bfe_u32 {s.t0}, {s.j}, 0x10001\n s_add_u32 {rot}, {s.t0}, {s.xcd}")
        elif r1 == 'x4': A(f"s_bfe_u32 {s.t0}, {s.j}, 0x10001\n s_lshl2_add_u32 {rot}, {s.t0}, {s.xcd}")
        elif r1[0] == 'k': A(f"s_xor_b32 {rot}, {s.j}, {s.fs if 'f' in r1 else 0}\n s_and_b32 {rot}, {rot}, {r1[-1]}")
        s.vfree('_t _u')
    def so_calc(s, c0, c1):
        o = []
        for st in range(c0, c1):
            if opt('rot1', 'kf1')[0] == 'k':
                o += L(f"""s_xor_b32 {s.t0}, {s._rot}, {st}
                s_add_u32 {s.t0}, {s.t0}, {s.xcd}
                s_and_b32 {s.t0}, {s.t0}, 7
                s_lshl_b32 {s.t1}, {s.t0}, 7
                s_add_u32 {s.sox[st]}, {s._bx}, {s.t1}
                s_mul_i32 {s.t1}, {s.t0}, {s._mw}
                s_add_u32 {s.sow[st]}, {s._bw}, {s.t1}"""); continue
            o += L(f"""s_and_b32 {s._rot}, {s._rot}, 7
            s_lshl_b32 {s.t1}, {s._rot}, 7
            s_add_u32 {s.sox[st]}, {s._bx}, {s.t1}
            s_mul_i32 {s.t1}, {s._rot}, {s._mw}
            s_add_u32 {s.sow[st]}, {s._bw}, {s.t1}
            s_add_u32 {s._rot}, {s._rot}, 1""")
        if c1 == 8: s.sfree('_bx _bw _rot _mw')
        return o
    def g1_halves(s, st):
        base = (st % 4) * 32768; vw = s.g1vc if opt('vwc', 0) else s.g1vw
        hv = [[f"s_add_u32 m0, {s.m0b}, {base+4096}"] + [f"buffer_load_dwordx4 {s.g1vx[z]}, {s.sx1}, {s.sox[st]} offen offset:{1024*z} lds ;@st{st}" for z in range(4)],
                [f"s_add_u32 m0, {s.m0b}, {base}"] + [f"buffer_load_dwordx4 {vw[z]}, {s.sw1}, {s.sow[st]} offen offset:{1024*z} lds ;@st{st}" for z in range(3)]]
        return hv[::-1] if opt('vwc', 0) else hv
    def tables(s):
        l, n, q = TB.l, TB.n, TB.q
        b1 = TB.B1(); t5 = TB.T(512); f = TB.F16(); sa = TB.SA(); t2 = TB.T(256); c1 = TB.C1(); sc = TB.SC()
        u8, c8, i5, hh = l >> 3, l & 7, l & 31, l >> 5
        ast = lambda t: L_XO + XOS*(n >> 1) + 64*(4*t + q) + 16*((n & 1) ^ (2*t + (q >> 1)))
        def vw(z):
            Lz = 64*z + l; row = Lz // 12; ch = (Lz % 12) ^ (2*((row >> 2) & 1)); return (row + (row & 12)) * 2752 + 16*ch - 1024*z
        tl = [('g1vw', [vw(0), vw(1), vw(2), 514*u8 + 16*c8], ''),
              ('B1r', b1[0], ''), ('B1i', b1[1], ''),
              ('m', [0x3f80 + 0*l, L_XR + 8*l, TB.u32(np.where(n == 0, 1.0, 0.0)), TB.u32(np.where(n < 8, 1.0, -1.0))], 'sel0 a_trad mn0 sgn'),
              ('T512c', t5[0], ''), ('T512s', t5[1], ''), ('FWr', f['FWr'], ''), ('FWi', f['FWi'], ''), ('SAr', sa[0], ''), ('SAi', sa[1], ''),
              ('a_wr', [L_E + 16 * TB.sig_unit(k, n) for k in TB.kk], ''),
              ('m', [L_XO + XOS*u8 + 64*c8 + 16*(3 ^ (c8 >> 1)), L_XO + XOS*u8 + 64*c8 + 16*(2 ^ (c8 >> 1)), ast(0), ast(1)], 'wso2 wso a_st0 a_st1'),
              ('m', [L_E + 16 * (8*(n >> 2) + 4*(q >> 1) + (n & 3)) + EH * (q & 1), L_XO + XOS*hh + 16*i5, (16384*hh + 131072*(i5 >> 2) if XT else 2048*hh + 64*(i5 >> 2)) + 16*((i5 & 3) ^ (i5 >> 3)),
                     WS_R + np.where(l & 1, 32 + 16*hh, 16*hh)], 'a_rd xord xost rms'),
              ('m', [192*(l >> 2) + 8*(l & 3) + 32*(q & 1), 4096 + 128*n + 16*((n >> 1) ^ q), WS_R + (128 << EV)*(n & 7) + 32 + 16*(n >> 3), (64 if XT else 16384)*(l >> 2) + 16*((l ^ q) & 3) + SWZ*128*((l >> 2) & 7)], 'wa0 xa0 mla b_ga'),
              ('m', [L_U + 4096*q + 64*n + 16*(n >> 2), L_UO + 2048*q + 32*n + 16*(n >> 3), 32*(l >> 1) + 16*((l ^ q) & 1), 32*i5 + 16*hh], 'b_ua b_uo b_st s_st'),
              ('m', [1024*u8 + 16*(c8 ^ (4*(q & 1))), 128*(8*hh + ((l >> 2) & 3)) + 64*((l >> 3) & 1) + 32*(q & 1) + 8*(l & 3), 65536 + 272*i5 + 16*hh, 65536 + 272*u8 + 32*c8], 'vo2 ra2 g2rw g2rr'),
              ('m', [1024*u8 + 16*c8, 65536*(l >> 1) + 16*(l & 1) + SWZ*128*((l >> 1) & 7), L_U + 8*i5 + 4096*hh, L_E + EH*hh + 32*n + 33*16*(q & 1)], 'g2st c_ga c_ua c_ew'),
              ('c_er', [L_E + 16 * TB.sig_unit(n, k) for k in TB.kk], ''),
              ('T256c', t2[0], ''), ('T256s', t2[1], ''),
              ('C1x', c1[0], 'A'), ('C1y', c1[1], 'A'), ('SCr', sc[0], 'A'), ('SCi', sc[1], 'A')]
        assert len(tl) == 4 * s.NT
        ad = s.v('_tad'); s.A(f"v_add_u32 {ad}, {L_TB}, {s.l16}"); na = 0; out = []
        for nm, quad, sub in tl:
            i = s.tb.add(quad)
            if sub == 'A': r = R('a', 240 + 4*na, 4); na += 1; setattr(s, nm, r)
            else:
                r = s.v(nm, 4)
                if sub:
                    b, _ = s.V.names.pop(nm)
                    for k, x in enumerate(sub.split()): s.V.names[x] = (b + k, 1); setattr(s, x, r[k])
            out.append(f"ds_read_b128 {r}, {ad} offset:{1024*i}")
        return out
    def trig3(s, name, fwd, pre):
        co = s.v('_co', 4); si = s.v('_si', 4); m, t = s.vs('_m _t'); rr = s.v(name + 'r', 4); ii = s.v(name + 'i', 4)
        o = L(pre(co[0], t, m))
        o += [f"v_mul_f32 {si[0]}, {fl(1/2048)}, {co[0]}", f"v_mul_f32 {t}, {fl(1/2048)}, {t}"]
        o += [f"v_add_f32 {si[c]}, {si[c-1]}, {t}" for c in (1, 2, 3)]
        o += [f"v_cos_f32 {co[c]}, {si[c]}" for c in range(4)] + [f"v_sin_f32 {si[c]}, {si[c]}" for c in range(4)]
        for c in range(4): o += [f"v_cndmask_b32 {co[c]}, 0, {co[c]}, vcc", f"v_cndmask_b32 {si[c]}, 0, {si[c]}, vcc"]
        for c in range(4): o += [f"v_cvt_pk_bf16_f32 {rr[c]}, {co[c]}, {'' if fwd else '-'}{si[c]}", f"v_cvt_pk_bf16_f32 {ii[c]}, {'-' if fwd else ''}{si[c]}, {co[c]}"]
        s.vfree('_co _si _m _t'); return o
    def const_A3(s):
        return s.trig3('A3', True, lambda c0, t, m: f"""v_and_b32 {t}, 1, {s.q}
        v_lshl_add_u32 {t}, {t}, 10, {s.p}
        v_lshrrev_b32 {m}, 1, {s.n}
        v_mul_u32_u24 {c0}, {m}, {t}
        v_lshlrev_b32 {t}, 8, {m}
        v_lshrrev_b32 {m}, 5, {s.l}
        v_xor_b32 {m}, {m}, {s.l}
        v_and_b32 {m}, 1, {m}
        v_cmp_eq_u32 vcc, 0, {m}
        v_cvt_f32_u32 {c0}, {c0}
        v_cvt_f32_u32 {t}, {t}""")
    def const_C3(s):
        return s.trig3('C3', False, lambda c0, t, m: f"""v_lshrrev_b32 {t}, 3, {s.n}
        v_and_b32 {m}, 3, {s.n}
        v_lshl_add_u32 {t}, {t}, 2, {m}
        v_lshl_add_u32 {t}, {t}, 8, {s.p}
        v_lshrrev_b32 {m}, 5, {s.l}
        v_mul_u32_u24 {c0}, {m}, {t}
        v_lshlrev_b32 {c0}, 2, {c0}
        v_lshrrev_b32 {m}, 2, {s.l}
        v_xor_b32 {m}, {m}, {s.q}
        v_and_b32 {m}, 1, {m}
        v_cmp_eq_u32 vcc, 0, {m}
        v_cvt_f32_u32 {c0}, {c0}
        v_cvt_f32_u32 {t}, {t}""")
    def fwarm(s):
        t = s.v('_t')
        o = L(f"""v_lshlrev_b32 {t}, {15 + EV}, {s.l}
        s_lshl_b32 {s.t0}, s2, {7 + EV}
        s_add_u32 {s.t0}, {s.t0}, {F1}
        s_cmp_lt_u32 s2, 32
        s_cselect_b32 {s.t1}, 15, 7
        s_cmp_eq_u32 {s.w}, 1
        s_cselect_b32 {s.t0}, {s.t0}, {WS_SIZE}""")
        o.append(f"s_mov_b32 exec_hi, 0\n s_mov_b32 exec_lo, {s.t1}\n buffer_store_dword {t}, {t}, {s.sws}, {s.t0} offen offset:124 sc1 ;@fw\n s_mov_b64 exec, -1")
        s.vfree('_t'); return o
    def flags_setup(s):
        s.vs('pa pg2 pv fra'); s.ss('fo fo2 tag')
        return L(f"""s_lshl_b32 {s.t0}, {s.xcd}, {13 + EV}
        s_add_u32 {s.t0}, {s.t0}, {F1}
        v_and_b32 {s.pv}, {0xf8 * EV}, v0
        v_add_u32 {s.pv}, v0, {s.pv}
        v_lshl_add_u32 {s.pa}, {s.pv}, 4, {s.t0}
        v_lshlrev_b32 {s.fra}, {13 + EV}, {s.l}
        s_lshr_b32 {s.t0}, {s.rb}, 1
        s_lshl_b32 {s.t0}, {s.t0}, {8 + EV}
        s_add_u32 {s.t0}, {s.t0}, {F2}
        v_and_b32 {s.pv}, {23 if EV else 15}, {s.pv}
        v_lshl_add_u32 {s.pg2}, {s.pv}, 4, {s.t0}
        s_and_b32 {s.t0}, {s.p}, {0xf8 * EV}
        s_add_u32 {s.t0}, {s.t0}, {s.p}
        s_lshl4_add_u32 {s.fo}, {s.t0}, {F1}
        s_lshl4_add_u32 {s.fo2}, {s.rb1}, {s.fs1}
        s_and_b32 {s.t0}, {s.fo2}, {0xf8 * EV}
        s_add_u32 {s.fo2}, {s.fo2}, {s.t0}
        s_lshl4_add_u32 {s.fo2}, {s.fo2}, {F2}
        s_cmp_eq_u32 {s.w}, 0
        s_cselect_b32 {s.fo}, {s.fo}, {WS_SIZE}
        s_cselect_b32 {s.fo2}, {s.fo2}, {WS_SIZE}
        {f"s_mov_b32 {s.spin}, 0" if s.cnt else ""}
        s_mov_b32 {s.spin2}, 0""")
    def tag_fix(s): return ["@wait tag", f"v_readfirstlane_b32 {s.tag}, {s.vtag}", f"s_mul_i32 {s.tag}, {s.tag}, 1664525", f"s_add_u32 {s.tag}, {s.tag}, 1013904223", f"v_mov_b32 {s.vtag}, {s.tag}"]
    def flag(s, nm, so, add=0):
        pre = f"s_add_u32 {s.t0}, {so}, {add}\n " if add else ""; so = s.t0 if add else so
        if nm in ('f1', 'f3'): return [pre + f"s_mov_b64 exec, 255\n buffer_store_dword {s.vtag}, {s.fra}, {s.sws}, {so} offen sc1 ;@{nm}\n s_mov_b64 exec, -1"]
        return [pre + f"s_mov_b64 exec, 1\n buffer_store_dword {s.vtag}, off, {s.sws}, {so} sc1 ;@{nm}\n s_mov_b64 exec, -1"]
    def poll(s, nm, ad, so):
        ins = f"buffer_load_dword {s.pv}, {ad}, {s.sws}, {so} offen sc1"
        s.tail += L(f"""L_retry{nm}:
        {f"s_add_u32 {s.spin}, {s.spin}, {1 << (8*(int(nm[1])-1))}" if s.cnt else ""}
        s_add_u32 {s.spin2}, {s.spin2}, 1
        s_cmp_ge_u32 {s.spin2}, 400000
        s_cbranch_scc1 L_out{nm}
        s_mov_b64 exec, vcc
        s_sleep {opt('ps', 3)}
        {ins}
        s_waitcnt vmcnt(0)
        v_cmp_ne_u32 vcc, {s.tag}, {s.pv}
        s_cbranch_vccnz L_retry{nm}
        L_out{nm}:
        s_mov_b64 exec, -1
        s_branch L_back{nm}""")
        return [ins + f" ;@{nm}"], [f"@wait {nm}\n v_cmp_ne_u32 vcc, {s.tag}, {s.pv}\n s_cbranch_vccnz L_retry{nm}\n L_back{nm}:"]
    def reloc_prod(s, reg, key, lo, hi, cond=None):
        t = s.v('_r')
        o = L(f"s_and_b32 {s.t0}, {key}, 3\n s_lshl_b32 {s.t0}, {s.t0}, 7\n s_add_u32 {s.t0}, {s.t0}, {BIG + 128}")
        if cond: o += L(f"{cond}\n s_cselect_b32 {s.t0}, {s.t0}, 0")
        o += L(f"v_add_u32 {t}, {s.t0}, {reg}\n s_mov_b32 vcc_lo, {hex(lo)}\n s_mov_b32 vcc_hi, {hex(hi)}\n v_cndmask_b32 {reg}, {reg}, {t}, vcc")
        s.vfree('_r'); return o
    def reloc_cons(s, reg, key, sh, lanesh):
        t = s.v('_r')
        o = L(f"""v_bfe_u32 {t}, {s.l}, {lanesh}, 2
        v_lshl_add_u32 {t}, {t}, 7, {reg}
        v_add_u32 {t}, {BIG + 128}, {t}
        s_bfe_u32 {s.t0}, {key}, {hex(0x30000 + sh)}
        s_cmp_eq_u32 {s.t0}, 3
        s_cselect_b64 vcc, -1, 0
        v_cndmask_b32 {reg}, {reg}, {t}, vcc""")
        s.vfree('_r'); return o
    def cmul(s, dr, di, co, si, tmp, conj):
        o = []; neg = " neg_lo:[0,0,1] neg_hi:[0,0,1]"
        for h in (0, 2):
            P = lambda r: r[h:h+2]
            o += [f"v_pk_mul_f32 {tmp[0:2]}, {P(di)}, {P(si)}", f"v_pk_mul_f32 {tmp[2:4]}, {P(dr)}, {P(si)}",
                  f"v_pk_fma_f32 {P(dr)}, {P(dr)}, {P(co)}, {tmp[0:2]}" + (neg if conj else ""), f"v_pk_fma_f32 {P(di)}, {P(di)}, {P(co)}, {tmp[2:4]}" + ("" if conj else neg)]
        return o
    def pack(s, dst, dr, di): return [f"v_cvt_pk_bf16_f32 {dst(c)}, {dr[c]}, {di[c]}" for c in range(4)]
    def a_scalars(s):
        s.sg('mq0', 2); s.sg('ab', 4, 1); s.ss('wl x1o'); b = s.ab
        return L(f"""s_mov_b64 {s.mq0}, 0xffff
        s_lshr_b32 {s.t0}, {s.w}, 1
        s_mul_i32 {s.t0}, {s.t0}, {EH}
        s_and_b32 {s.t1}, {s.w}, 1
        s_lshl3_add_u32 {b[0]}, {s.t1}, {s.t0}
        s_mul_i32 {b[1]}, {s.w}, {66*16}
        s_mul_i32 {b[2]}, {s.w}, {8*XOS}
        s_lshl_b32 {b[3]}, {s.w}, 11
        s_mul_i32 {s.wl}, {s.p}, 4112
        s_lshl_b32 {s.t0}, {s.w}, 7
        s_add_u32 {s.wl}, {s.wl}, {s.t0}
        s_add_u32 {s.wl}, {s.wl}, 2
        s_lshl_b32 {s.x1o}, {s.p}, 14
        s_lshl2_add_u32 {s.x1o}, {s.t0}, {s.x1o}""") + (L(f"s_lshl_b32 {s.x1o}, {s.w}, 14\n s_add_u32 {s.x1o}, {s.x1o}, {s.p}\n s_lshl_b32 {s.x1o}, {s.x1o}, 6") if XT else [])
    def a_fix(s):
        b = s.ab
        return [f"v_add_u32 {s.a_wr[c]}, {b[0]}, {s.a_wr[c]}" for c in range(4)] + [f"v_add_u32 {s.a_rd}, {b[1]}, {s.a_rd}"] + \
               [f"v_add_u32 {r}, {b[2]}, {r}" for r in (s.a_st0, s.a_st1, s.wso, s.wso2, s.xord)]
    def a_part1(s, early):
        F = [s.v('aF0', 4), s.v('aF1', 4)]; s.aD = D = [[s.v(f'aD{i}{x}', 4) for x in 'ri'] for i in range(2)]
        Sp = [[s.v(f'aS{i}{x}', 4) for x in 'ri'] for i in range(2)]
        d = s.v('ad', 8); st = s.v('ast', 4); tmp = s.v('atmp', 4); P = s.v('aP', 8); sel1 = s.v('sel1')
        r01 = s.hso[0:4]; piv = s.sg('apiv', 2); pv2 = s.hso[4:6]; o = []
        for i in range(2): o += [f"ds_read_b64_tr_b16 {F[i][2*h:2*h+2]}, {s.a_trad} offset:{1024*i+512*h}" for h in range(2)]
        o += [f"v_mov_b32 {sel1}, 1.0"] + early
        for i in range(2):
            o += [f"s_waitcnt lgkmcnt({2-2*i})", f"{M16} {D[i][0]}, {F[i]}, {s.B1r}, 0", f"v_readfirstlane_b32 {piv[i]}, {F[i][0]}", f"{M16} {D[i][1]}, {F[i]}, {s.B1i}, 0",
                  f"s_lshl_b32 {piv[i]}, {piv[i]}, 16", f"s_xor_b32 {piv[i]}, {piv[i]}, 0x80000000"]
        for i in range(2):
            for c in range(4): o += [f"v_dot2_f32_bf16 {d[2*c]}, {F[i][c]}, {s.sel0}, {piv[i]}", f"v_dot2_f32_bf16 {d[2*c+1]}, {F[i][c]}, {sel1}, {piv[i]}"]
            o += L(f"""v_pk_mul_f32 {tmp[0:2]}, {d[0:2]}, {d[0:2]}
            v_pk_add_f32 {tmp[2:4]}, {d[0:2]}, {d[2:4]}
            v_pk_fma_f32 {tmp[0:2]}, {d[2:4]}, {d[2:4]}, {tmp[0:2]}
            v_pk_add_f32 {tmp[2:4]}, {tmp[2:4]}, {d[4:6]}
            v_pk_fma_f32 {tmp[0:2]}, {d[4:6]}, {d[4:6]}, {tmp[0:2]}
            v_pk_add_f32 {tmp[2:4]}, {tmp[2:4]}, {d[6:8]}
            v_pk_fma_f32 {tmp[0:2]}, {d[6:8]}, {d[6:8]}, {tmp[0:2]}
            v_add_f32 {st[i]}, {tmp[2]}, {tmp[3]}
            v_add_f32 {st[2+i]}, {tmp[0]}, {tmp[1]}""")
        o += [f"v_readfirstlane_b32 {pv2[i]}, {D[i][0][0]}" for i in range(2)]
        o += L(f"""v_permlane32_swap_b32 {st[0]}, {st[1]}
        v_permlane32_swap_b32 {st[2]}, {st[3]}
        v_add_f32 {st[0]}, {st[0]}, {st[1]}
        v_add_f32 {st[2]}, {st[2]}, {st[3]}""")
        o += [f"v_mul_f32 {d[2*i]}, {pv2[i]}, {s.mn0}" for i in range(2)]
        o += [f"v_permlane16_swap_b32 {st[0]}, {st[2]}", f"v_add_f32 {st[0]}, {st[0]}, {st[2]}"]
        red = [f"v_add_f32_dpp {st[0]}, {st[0]}, {st[0]} row_ror:{k} row_mask:0xf bank_mask:0xf" for k in (8, 4, 2, 1)]
        for i in range(2):
            o += [f"v_pk_add_f32 {D[i][0][h:h+2]}, {D[i][0][h:h+2]}, {d[2*i:2*i+2]} op_sel_hi:[1,0] neg_lo:[0,1] neg_hi:[0,1]" for h in (0, 2)]
            o += [red[2*i]] + s.cmul(D[i][0], D[i][1], s.T512c, s.T512s, tmp, False) + [red[2*i+1]] + s.pack(lambda c: F[i][c], D[i][0], D[i][1])
        o.append(f"v_mov_b32 {st[1]}, {st[0]}")
        fin = L(f"""v_permlane16_swap_b32 {st[0]}, {st[1]}
        v_mul_f32 {st[0]}, {fl(1/512)}, {st[0]}
        v_mul_f32 {st[1]}, {fl(1/512)}, {st[1]}
        v_fma_f32 {st[1]}, -{st[0]}, {st[0]}, {st[1]}
        v_max_f32 {st[1]}, 0, {st[1]}
        v_cvt_pk_bf16_f32 {st[1]}, {st[1]}, {st[1]}
        v_lshlrev_b32 {st[1]}, 16, {st[1]}
        v_add_f32 {st[1]}, {fl(1e-5)}, {st[1]}
        v_cvt_pk_bf16_f32 {st[1]}, {st[1]}, {st[1]}
        v_lshlrev_b32 {st[1]}, 16, {st[1]}
        v_sqrt_f32 {st[1]}, {st[1]}
        v_cvt_pk_bf16_f32 {st[1]}, {st[1]}, {st[1]}
        v_lshlrev_b32 {st[1]}, 16, {st[1]}
        v_rcp_f32 {st[1]}, {st[1]}
        v_readlane_b32 {r01[0]}, {st[1]}, 0
        v_readlane_b32 {r01[2]}, {st[1]}, 32""")
        mf = cat([f"{M16} {D[i][0]}, {F[i]}, {s.FWr}, 0", f"{M16} {D[i][1]}, {F[i]}, {s.FWi}, 0", f"{M16} {Sp[i][0]}, {F[i]}, {s.SAr}, 0", f"{M16} {Sp[i][1]}, {F[i]}, {s.SAi}, 0"] for i in range(2))
        for k in range(8): o += [mf[k], fin[2*k], fin[2*k+1]]
        o += [f"v_mul_f32 {d[2*i]}, {r01[2*i]}, {s.sgn}" for i in range(2)]
        for i in range(2):
            o += [f"v_cndmask_b32 {D[i][x][0]}, {D[i][x][0]}, {Sp[i][x][0]}, {s.mq0}" for x in range(2)]
            for h in (0, 2): o += [f"v_pk_mul_f32 {D[i][0][h:h+2]}, {D[i][0][h:h+2]}, {r01[2*i:2*i+2]} op_sel_hi:[1,0]", f"v_pk_mul_f32 {D[i][1][h:h+2]}, {D[i][1][h:h+2]}, {d[2*i:2*i+2]} op_sel_hi:[1,0]"]
            o += s.pack(lambda c: P[2*c+i], D[i][0], D[i][1])
        o += [f"ds_write_b64 {s.a_wr[c]}, {P[2*c:2*c+2]}" for c in range(4)]
        s.vfree('aS0r aS0i aS1r aS1i ad atmp aP sel1'); return o
    def a_part2(s):
        F = [s.aF0, s.aF1]; D = s.aD; st = s.ast; piv = s.apiv
        o = [f"ds_read_b128 {F[t]}, {s.a_rd} offset:{t*33*16}" for t in range(2)]
        o += L(f"""v_sub_f32 {st[2]}, {piv[0]}, {st[0]}
        v_sub_f32 {st[3]}, {piv[1]}, {st[0]}
        v_cvt_pk_bf16_f32 {st[2]}, {st[2]}, {st[3]}
        v_lshlrev_b32 {st[3]}, 16, {st[2]}
        v_and_b32 {st[2]}, 0xffff0000, {st[2]}
        s_lshl_b32 {s.t0}, {s.p}, {7 + EV}
        s_lshl2_add_u32 {s.xo2}, {s.w}, {s.t0}""")
        o.append(f"s_mov_b64 exec, 2\n v_mov_b32 {st[1]}, {st[3]}\n s_mov_b32 exec_lo, 0\n s_mov_b32 exec_hi, 2\n v_mov_b32 {st[1]}, {st[2]}\n s_mov_b64 exec, -1")
        for t in range(2): o += [f"s_waitcnt lgkmcnt({1-t})", f"{M16} {D[t][0]}, {F[t]}, {s.A3r}, 0", f"{M16} {D[t][1]}, {F[t]}, {s.A3i}, 0"]
        wst = ["@wait W", f"ds_write_b128 {s.wso}, {s.wraw[0:4]}", f"ds_write_b128 {s.wso2}, {s.wraw[4:8]}"]
        pk = cat(s.pack(lambda c: F[t][c], D[t][0], D[t][1]) + [f"ds_write_b128 {(s.a_st0, s.a_st1)[t]}, {F[t]}"] for t in range(2))
        Q = [D[0][0], D[0][1], D[1][0], D[1][1]]
        rd = [f"ds_read_b128 {Q[z]}, {s.xord} offset:{2*XOS*z}" for z in range(4)]
        sts = [f"s_mov_b32 exec_lo, 3\n s_mov_b32 exec_hi, 3\n buffer_store_dword {st[1]}, {s.rms}, {s.sws}, {s.xo2} offen sc1 ;@x1\n s_mov_b64 exec, -1"]
        sts += [(f"s_add_u32 {s.x1o}, {s.x1o}, {32768 if XT else 4096}\n " if z else "") + f"buffer_store_dwordx4 {Q[z]}, {s.xost}, {s.sws}, {s.x1o} offen sc1 ;@x1" for z in range(4)]
        return o, wst, pk, rd, sts
    def g1_rd_setup(s):
        wa = s.v('g1wa', 6); xa = s.v('g1xa', 4); s.ss('tau0 dtau'); s.a('ones', 4); s.a('xf', 32); s.a('wf', 24); s.vs('xw xr_')
        sc = L(f"""s_and_b32 {s.t0}, {s.w}, 1
        s_mul_i32 {s.tau0}, {s.t0}, 3
        s_and_b32 {s.t1}, {s.w}, 2
        s_add_u32 {s.tau0}, {s.tau0}, {s.t1}
        s_sub_u32 {s.dtau}, 1, {s.t1}
        v_mov_b32 {s.xw}, 0x3f803f80""") + [f"v_accvgpr_write_b32 {s.ones[c]}, {s.xw}" for c in range(4)] + L(f"""s_lshl_b32 {s.t0}, {s.w}, 10
        s_add_u32 {s.t0}, {s.t0}, {L_XCH}
        v_add_u32 {s.xw}, {s.t0}, {s.l16}
        s_xor_b32 {s.t0}, {s.w}, 2
        s_lshl_b32 {s.t0}, {s.t0}, 10
        s_add_u32 {s.t0}, {s.t0}, {L_XCH}
        v_add_u32 {s.xr_}, {s.t0}, {s.l16}""")
        fix = [f"s_mov_b32 {s.t0}, {s.tau0}"]
        for i in range(3):
            fix += L(f"""s_and_b32 {s.t1}, {s.t0}, 1
            s_lshl_b32 {s.t1}, {s.t1}, 5
            v_xor_b32 {wa[i]}, {s.t1}, {s.wa0}
            s_lshr_b32 {s.t1}, {s.t0}, 1
            v_lshl_add_u32 {wa[i]}, {s.t1}, 6, {wa[i]}
            v_add_u32 {wa[3+i]}, 65536, {wa[i]}
            s_add_u32 {s.t0}, {s.t0}, {s.dtau}""")
        fix += L(f"""s_and_b32 {s.t0}, {s.m0b}, 16384
        v_add_u32 {xa[0]}, {s.t0}, {s.xa0}
        v_xor_b32 {xa[1]}, 64, {xa[0]}
        v_add_u32 {xa[2]}, 65536, {xa[0]}
        v_add_u32 {xa[3]}, 65536, {xa[1]}""")
        return sc, fix
    def g1_reads(s, step):
        st = step // 2; ks = step % 2; sl = st % 4; hi = sl // 2; base = (sl % 2) * 32768; b = step % 2
        xr = [f"ds_read_b128 {s.xf[16*b+4*a:16*b+4*a+4]}, {s.g1xa[2*hi+ks]} offset:{base + (a//2)*8192 + (a%2)*2048}" for a in range(4)]
        wr = [[f"ds_read_b64_tr_b16 {s.wf[12*b+4*i+2*h:12*b+4*i+2*h+2]}, {s.g1wa[3*hi+i]} offset:{base + (2*ks+h)*8192}" for h in range(2)] for i in range(3)]
        return wr[0] + xr + wr[1] + wr[2]
    def g1_mfmas(s, step):
        b = step % 2; o = []; z = lambda acc: acc if step else 0
        for i in range(3):
            wf = s.wf[12*b+4*i:12*b+4*i+4]
            if i < 2 and (step < 2 or not opt('xc', 0)): acc = s.accc[4*i:4*i+4]; o.append(f"{M16} {acc}, {wf}, {s.ones}, {z(acc)}")
            for a in range(4): acc = s.acc1[16*i+4*a:16*i+4*a+4]; o.append(f"{M16} {acc}, {wf}, {s.xf[16*b+4*a:16*b+4*a+4]}, {z(acc)}")
        return o
    def g1_step(s, step, P):
        A = s.A; A(P['head'][step])
        nx = step // 2 + 1
        A("@wait lgkm=0 " + (f"st{nx} " if step % 2 and nx < 8 else "") + P['also'][step])
        if step % 2 or step in P['bar']: A("s_barrier")
        if step in (4, 8): s.stamp(f's{step}')
        s.stamp(f'.g{step}')
        r = s.g1_reads(step + 1) if step < 15 else []; e = glue(P['extra'][step]); fill = list(P['first'][step]); k = 0
        while r or e:
            fill.append(e.pop(0) if e and (k % 3 == 2 or not r) else r.pop(0)); k += 1
        fill += P['last'][step]
        mf = s.g1_mfmas(step)
        for i, m in enumerate(mf):
            A(m); left = len(mf) - i; k = -(-len(fill) // left) if len(fill) > left else 1
            A(fill[:k]); fill = fill[k:]
    def h_offsets(s):
        so = s.sg('hst', 3, 1)
        o = L(f"""s_lshr_b32 {s.t0}, {s.w}, 1
        s_lshl1_add_u32 {s.t0}, {s.rb1}, {s.t0}
        s_lshl_b32 {s.mlo}, {s.t0}, {10 + EV}
        s_mul_i32 {s.t0}, {s.t0}, {86*2048}
        s_add_u32 {s.t0}, {s.t0}, {WS_H}
        s_mul_i32 {s.t1}, {s.fs1}, 6
        s_add_u32 {s.t1}, {s.t1}, {s.tau0}""")
        for i in range(3):
            o += L(f"s_lshl_b32 {so[i]}, {s.t1}, 11\n s_add_u32 {so[i]}, {so[i]}, {s.t0}\n s_cmp_lt_u32 {s.t1}, 86\n s_cselect_b32 {so[i]}, {so[i]}, {WS_SIZE}")
            if i < 2: o.append(f"s_add_u32 {s.t1}, {s.t1}, {s.dtau}")
        return o
    def g1_epilogue(s):
        mm = s.g1m; P = s.v('g1P', 24); o = []
        for n, (i, M) in enumerate(((0, 0), (0, 1), (1, 0), (1, 1), (2, 0), (2, 1))):
            if n == 2: o += ["s_waitcnt lgkmcnt(0)", "s_barrier", f"ds_read_b128 {s.accc[8:12]}, {s.xr_}"]
            if n == 4: o.append("s_waitcnt lgkmcnt(0)")
            Q = P[4*n:4*n+4]; acc = [s.acc1[16*i+4*(2*M+e):16*i+4*(2*M+e)+4] for e in range(2)]
            for e in range(2):
                mo = 2*M + 4*e
                o += [f"v_pk_fma_f32 {acc[e][h:h+2]}, {s.accc[4*i+h:4*i+h+2]}, {mm[mo:mo+2]}, {acc[e][h:h+2]} op_sel_hi:[1,0,1]" for h in (0, 2)]
            o += [f"v_cvt_pk_bf16_f32 {Q[2*e+h]}, {acc[e][2*h]}, {acc[e][2*h+1]}" for e in range(2) for h in range(2)]
            o += [f"v_pk_max_i16 {Q[c]}, {Q[c]}, 0" for c in (0, 2, 1, 3)]
            o += [f"v_permlane16_swap_b32 {Q[0]}, {Q[2]}", f"v_permlane16_swap_b32 {Q[1]}, {Q[3]}", f"buffer_store_dwordx4 {Q}, {s.hla}, {s.sws}, {s.hst[i]} offen offset:{1024*M} sc1 ;@h"]
        return o
    def b_setup(s):
        s.v('b_lin'); s.v('b_wa', 2); s.v('IVr', 4); s.v('IVi', 4); s.ss('go y1o')
        g = L(f"""s_lshl_b32 {s.go}, {s.w}, 9
        s_add_u32 {s.go}, {s.go}, {s.xcd}
        s_lshl_b32 {s.go}, {s.go}, 11
        s_lshl_b32 {s.t0}, {s.j}, 6
        v_xor_b32 {s.b_ga}, {s.t0}, {s.b_ga}""")
        if XT: g = L(f"s_lshl2_add_u32 {s.go}, s2, {s.w}\n s_lshl_b32 {s.go}, {s.go}, 12")
        o = L(f"""s_add_u32 {s.t0}, {s.ab[3]}, {L_UO}
        v_add_u32 {s.b_lin}, {s.t0}, {s.l16}
        s_lshl_b32 {s.y1o}, s2, 13
        s_add_u32 {s.y1o}, {s.y1o}, {s.ab[3]}
        s_add_u32 {s.y1o}, {s.y1o}, {WS_Y1}
        s_lshl_b32 {s.t0}, {s.w}, 3
        s_lshl2_add_u32 {s.t1}, {s.w}, 32
        v_xor_b32 {s.b_wa[0]}, {s.t1}, {s.b_ua}
        v_xor_b32 {s.b_ua}, {s.t0}, {s.b_ua}
        v_xor_b32 {s.b_uo}, {s.t0}, {s.b_uo}
        v_xor_b32 {s.b_wa[1]}, 16, {s.b_wa[0]}""")
        o += cat([f"v_xor_b32 {s.IVr[c]}, 0x80000000, {s.FWr[c]}", f"v_xor_b32 {s.IVi[c]}, 0x8000, {s.FWi[c]}"] for c in range(4))
        return g, o
    def b_gather(s):
        return [f"s_lshl1_add_u32 m0, {s.ab[3]}, {L_U}"] + \
               [(f"s_add_u32 {s.go}, {s.go}, {16*16384-1024}\n " if z and not XT else "") + f"buffer_load_dwordx4 {s.b_ga}, {s.sws}, {s.go} offen offset:{1024*z} sc1 lds ;@gx" for z in range(4)]
    def b_parts(s):
        F = s.v('bF', 8); W = s.v('bW', 8); D = [[s.v(f'bD{i}{x}', 4) for x in 'ri'] for i in range(2)]; tmp = s.v('btmp', 4); X = s.v('bX', 16); O = W
        U = [F[0:4], F[4:8]]
        rd = [f"ds_read_b64 {F[2*pos:2*pos+2]}, {s.b_ua} offset:{1024*c}" for pos, c in enumerate((0, 2, 1, 3))]
        rd += [f"ds_read2st64_b32 {W[4*x+2*h:4*x+2*h+2]}, {s.b_wa[x]} offset0:{8*h} offset1:{8*h+4}" for x in range(2) for h in range(2)]
        sw = [f"v_swap_b32 {F[1]}, {F[4]}", f"v_swap_b32 {F[3]}, {F[6]}"]
        u0 = [f"v_lshlrev_b32 {X[k]}, 16, {W[k]}" for k in range(8)]; u1 = [f"v_and_b32 {X[8+k]}, 0xffff0000, {W[k]}" for k in range(8)]
        stages = [(True, s.FWr, s.FWi), (False, s.FWr, s.FWi), (True, s.IVr, s.IVi), (False, s.IVr, s.IVi)]
        def mm(k, i):
            dA, cr, ci = stages[k]; return [f"{M16} {D[i][x]}, {U[i]}, {cc}, 0" if dA else f"{M16} {D[i][x]}, {cc}, {U[i]}, 0" for x, cc in enumerate((cr, ci))]
        def vv(k, i):
            t = [(s.T256c, s.T256s, False), (X[8*i:8*i+4], X[8*i+4:8*i+8], True), (s.T256c, s.T256s, True)]
            return (s.cmul(D[i][0], D[i][1], t[k][0], t[k][1], tmp, t[k][2]) if k < 3 else []) + s.pack(lambda c: U[i][c] if k < 3 else O[2*c+i], D[i][0], D[i][1])
        o = u0[:2] + mm(0, 0) + mm(0, 1) + u0[2:8] + vv(0, 0) + u1[:2] + mm(1, 0) + u1[2:4] + vv(0, 1) + u1[4:6] + mm(1, 1) + u1[6:8] + vv(1, 0)
        for k in (2, 3): o += mm(k, 0) + vv(k-1, 1) + mm(k, 1) + vv(k, 0)
        o += vv(3, 1) + [f"ds_write_b64 {s.b_uo}, {O[2*c:2*c+2]} offset:{512*c}" for c in range(4)]
        rd2 = [f"ds_read_b128 {F[4*t:4*t+4]}, {s.b_lin} offset:{1024*t}" for t in range(2)]
        st = [f"buffer_store_dwordx4 {F[4*t:4*t+4]}, {s.b_st}, {s.sws}, {s.y1o} offen offset:{1024*t} sc1 ;@y1" for t in range(2)]
        return rd, sw, o, rd2, st
    def w2_setup(s):
        vo = s.v('g2vo', 3); so = s.hso; s.sg('sw2o'); s.vs('pfo pfd')
        o = [f"v_add_u32 {vo[z]}, {(z+1)*(8192-1024)}, {s.vo2}" for z in range(3)]
        o += L(f"s_mul_i32 {s.sw2o}, {s.w}, {352*1024}\n s_lshl_b32 {s.t0}, {s.fs}, 7\n s_add_u32 {s.sw2o}, {s.sw2o}, {s.t0}")
        if opt('rot2', 'x') == '0': o += [f"s_mov_b32 {so[i]}, {4096*i}" for i in range(11)]
        elif opt('rot2', 'x')[0] == 'k':
            r2 = opt('rot2', 'x'); mk = int(r2[-1])
            o += L(f"s_xor_b32 {s.t0}, {s.j if 'j' in r2 else 0}, {s.fs if 'f' in r2 else 0}\n s_and_b32 {s.t0}, {s.t0}, {mk}\n s_and_b32 {s.t1}, {s.t0}, 1")
            for i in range(11):
                o.append(f"s_xor_b32 {so[i]}, {s.t0 if i < 8 else s.t1}, {i}" if i < 10 else f"s_mov_b32 {so[i]}, 10")
                if 'x' in r2: o += L(f"s_add_u32 {so[i]}, {so[i]}, {s.xcd}\n s_sub_u32 {s.t2}, {so[i]}, 11\n s_min_u32 {so[i]}, {so[i]}, {s.t2}")
                o.append(f"s_lshl_b32 {so[i]}, {so[i]}, 12")
        else:
            o.append(f"s_lshl_b32 {so[0]}, {s.xcd}, 12")
            for i in range(1, 11):
                o.append(f"s_add_u32 {so[i]}, {so[i-1]}, 4096")
                if i >= 4: o += [f"s_cmp_eq_u32 {so[i]}, {11*4096}", f"s_cselect_b32 {so[i]}, 0, {so[i]}"]
        pf = L(f"""s_mul_i32 {s.t0}, {s.j}, 43
        s_mul_i32 {s.t1}, {s.w}, 11
        s_add_u32 {s.t0}, {s.t0}, {s.t1}
        v_min_u32 {s.pfo}, 10, {s.n}
        v_add_lshl_u32 {s.pfo}, {s.t0}, {s.pfo}, 10""")
        if opt('g2map', 0): pf += L(f"s_and_b32 {s.t0}, {s.xcd}, 1\n s_xor_b32 {s.t0}, {s.t0}, {opt('g2map', 0) - 1}\n s_lshl_b32 {s.t0}, {s.t0}, 24\n v_add_u32 {s.pfo}, {s.t0}, {s.pfo}")
        return o, pf
    def pf3(s): return [f"s_mov_b64 exec, 0xffff\n buffer_load_dword {s.pfd}, {s.pfo}, {s.sw2}, 0 offen offset:384 ;@pf\n s_mov_b64 exec, -1"]
    def pf1(s): return [f"s_mov_b64 exec, 0xffff\n buffer_load_dword {s.pfe}, {s.pf1o}, {s.sw1}, 0 offen offset:384 ;@pf1\n s_mov_b64 exec, -1"]
    def pfx(s): return [f"v_lshlrev_b32 {s.pfe2}, 18, {s.l}", f"s_xor_b32 {s.t2}, {s.xo[0]}, 32768\n s_mov_b64 exec, 3\n buffer_load_dword {s.pfe2}, {s.pfe2}, {s.sx}, {s.t2} offen offset:384 ;@pfx\n s_mov_b64 exec, -1"]
    def pos(s, hb): return 3 if (hb == 7 and opt('nlate', 1) == 4) else hb % 8
    def w2dma(s, hb):
        pos = s.pos(hb)
        return [f"s_add_u32 m0, {s.m0b}, {(pos//2)*32768 + (pos%2)*4096}", f"s_lshl3_add_u32 {s.t2}, {s.hso[hb]}, {s.sw2o}"] + \
               [f"buffer_load_dwordx4 {s.g2vo[z-1] if z else s.vo2}, {s.sw2}, {s.t2} offen offset:{1024*z} lds ;@wb{hb}" for z in range(4)]
    def w2read(s, hb):
        pos = s.pos(hb); slot = pos // 2; dst = s.w2f[16*hb:16*hb+16]
        return [f"ds_read_b64_tr_b16 {dst[8*ks+4*nt+2*i:8*ks+4*nt+2*i+2]}, {s.g2ra[2*(slot//2)+nt]} offset:{(slot%2)*32768 + (pos%2)*4096 + ks*2048 + i*512}"
                for ks in range(2) for nt in range(2) for i in range(2)]
    def g2_setup(s):
        ra = s.v('g2ra', 4); s.v('rv', 4); s.v('rn', 4); s.sg('rowo', 2); s.sg('so_', 2); r = s.sg('sh', 4, 4); m = s.v('_m'); s.v('CGr', 4); s.v('CGi', 4); s.sg('gyo', 2)
        first = L(f"v_add_u32 {ra[0]}, {s.m0b}, {s.ra2}\n v_xor_b32 {ra[1]}, 64, {ra[0]}\n v_add_u32 {ra[2]}, 65536, {ra[0]}\n v_add_u32 {ra[3]}, 65536, {ra[1]}")
        o = L(f"""s_lshl_b32 {s.t0}, {s.w}, 14
        s_lshl_b32 {s.t1}, {s.p}, 5
        v_xor_b32 {s.c_ga}, {s.t1}, {s.c_ga}
        s_add_u32 {s.gyo[0]}, {s.t0}, {WS_Y1}
        s_add_u32 {s.gyo[1]}, {s.gyo[0]}, {8192-1024}
        s_lshl_b32 {s.t0}, {s.w}, 8
        v_add_u32 {s.c_ua}, {s.t0}, {s.c_ua}
        v_add_u32 {s.c_ew}, {s.ab[1]}, {s.c_ew}""") + [f"v_add_u32 {s.c_er[c]}, {s.ab[0]}, {s.c_er[c]}" for c in range(4)]
        o += L(f"v_lshlrev_b32 {m}, 30, {s.q}\n v_and_b32 {m}, 0x80000000, {m}")
        o += cat([f"v_xor_b32 {s.CGr[c]}, {s.IVr[c]}, {m}", f"v_xor_b32 {s.CGi[c]}, {s.IVi[c]}, {m}"] for c in range(4))
        o += L(f"""s_mul_i32 {s.t0}, {s.w}, {RED_S}
        v_add_u32 {s.g2rw}, {s.t0}, {s.g2rw}
        s_mul_i32 {s.t0}, {s.w}, {8*272}
        v_add_u32 {s.g2rr}, {s.t0}, {s.g2rr}
        s_lshl_b32 {s.t0}, {s.rb}, {10 + EV}
        s_and_b32 {s.t1}, {s.w}, 1
        s_lshl4_add_u32 {s.t0}, {s.t1}, {s.t0}
        s_lshr_b32 {s.t1}, {s.w}, 1
        s_lshl2_add_u32 {s.t0}, {s.t1}, {s.t0}
        s_add_u32 {s.t0}, {s.t0}, {WS_R}
        v_lshrrev_b32 {m}, 3, {s.l}
        v_lshl_add_u32 {s.rn[0]}, {m}, {7 + EV}, {s.t0}
        s_lshl_b32 {s.t0}, {s.w}, 5
        s_add_u32 {s.t0}, {s.t0}, {s.rb}
        s_lshl_b32 {s.t0}, {s.t0}, 6
        s_add_u32 {s.t0}, {s.t0}, {s.fs}
        s_lshl_b32 {s.rowo[0]}, {s.t0}, 7
        s_add_u32 {s.rowo[1]}, {s.rowo[0]}, {4*262144}
        s_add_u32 {s.so_[0]}, {s.rowo[0]}, {WS_S}
        s_add_u32 {s.so_[1]}, {s.rowo[1]}, {WS_S}
        s_mul_i32 {s.t0}, {s.rb}, 86
        s_mul_i32 {s.t1}, {s.w}, 22
        s_add_u32 {s.t0}, {s.t0}, {s.t1}
        s_lshl_b32 {s.t0}, {s.t0}, 11
        s_add_u32 {s.t0}, {s.t0}, {WS_H}
        s_add_u32 {r[0]}, {s.sws[0]}, {s.t0}
        s_addc_u32 {r[1]}, {s.sws[1]}, 0
        s_cmp_eq_u32 {s.w}, 3
        s_cselect_b32 {r[2]}, 20, 22
        s_lshl_b32 {r[2]}, {r[2]}, 11
        s_mov_b32 {r[3]}, 0x20000""")
        s.vfree('_m'); return first, o
    def hload(s, idx):
        mt, i = ORDER[idx]; sl = idx % s.NH
        return f"buffer_load_dwordx4 {s.hf[4*sl:4*sl+4]}, {s.hla}, {s.sh}, {s.hso[i//2]} offen offset:{(i%2)*2048 + mt*1024} sc1 ;@h{idx}"
    def red_write(s, mt): return [f"ds_write_b128 {s.g2rw}, {s.acc2[32*mt+4*k:32*mt+4*k+4]} offset:{mt*4*RED_S + 32*k}" for k in range(8)]
    def red_read(s, mt): return [f"ds_read_b128 {s.acc2[32*mt+4*k:32*mt+4*k+4]}, {s.g2rr} offset:{mt*4*RED_S + (k//2)*RED_S + (k%2)*16}" for k in range(8)]
    def unpack(s, dst, src): return cat([f"v_lshlrev_b32 {dst[2*c]}, 16, {src[c]}", f"v_and_b32 {dst[2*c+1]}, 0xffff0000, {src[c]}"] for c in range(src.n))
    def finish(s, mt, pk, sr):
        a = s.acc2[32*mt:32*mt+32]; xf = s.fx[8*mt:8*mt+8]; sf = s.fs_[8*mt:8*mt+8]
        def op(name, d, x, y, z=None, bc=False):
            if pk: return [f"v_pk_{name}_f32 {d[h:h+2]}, {x[h:h+2]}, {y if bc else y[h:h+2]}" + (f", {z[h:h+2]}" if z else "") + (" op_sel_hi:[1,0]" if bc else "") for h in range(0, 8, 2)]
            yy = lambda c: (y if isinstance(y, str) else y[0]) if bc else y[c]
            return [f"v_{name}_f32 {d[c]}, {yy(c)}, {x[c]}" + (f", {z[c]}" if z else "") for c in range(8)]
        o, e = a[0:8], a[8:16]
        p1 = op('add', o, o, e) + op('add', a[16:24], a[16:24], a[24:32]) + op('add', o, o, a[16:24]) + op('mul', e, o, s.rn[2*mt:2*mt+2], bc=True)
        p1 += [f"v_exp_f32 {e[c]}, {e[c]}" for c in range(8)]
        p1 += op('mul', o, o, sf) if sr else op('mul', o, o, s.rv[2*mt:2*mt+2], bc=True)
        p1 += op('add', e, e, '1.0', bc=True) + [f"v_rcp_f32 {e[c]}, {e[c]}" for c in range(8)]
        if not sr: p1 += op('mul', o, o, e)
        p3 = op('fma', o, o, e if sr else sf, xf) + [f"v_cvt_pk_bf16_f32 {a[16+c]}, {o[2*c]}, {o[2*c+1]}" for c in range(4)]
        p3.append(f"buffer_store_dwordx4 {a[16:20]}, {s.g2st}, {s.sout}, {s.rowo[mt]} offen sc1 ;@out")
        return p1, p3
    def s_fetch(s, S):
        ld = [f"buffer_load_dwordx4 {S[4*m:4*m+4]}, {s.g2st}, {s.sws}, {s.so_[m]} offen sc1" for m in range(2)]
        ck = [f"v_max3_u32 {s.pv}, {S[0]}, {S[1]}, {S[2]}", f"v_max3_u32 {s.pv2}, {S[3]}, {S[4]}, {S[5]}", f"v_max3_u32 {s.pv}, {s.pv}, {S[6]}, {S[7]}", f"v_max_u32 {s.pv}, {s.pv}, {s.pv2}",
              f"v_cmp_eq_u32 vcc, -1, {s.pv}"]
        s.tail += L(f"""L_retryS:
        {f"s_add_u32 {s.spin}, {s.spin}, {1 << 24}" if s.cnt else ""}
        s_add_u32 {s.spin2}, {s.spin2}, 1
        s_cmp_ge_u32 {s.spin2}, 400000
        s_cbranch_scc1 L_outS
        s_mov_b64 exec, vcc
        s_sleep {opt('ps', 3)}""") + ld + ["s_waitcnt vmcnt(0)"] + ck + L("s_cbranch_vccnz L_retryS\n L_outS:\n s_mov_b64 exec, -1\n s_branch L_backS")
        return [x + " ;@sl" for x in ld], ["@wait sl"] + ck[:4] + [ck[4] + "\n s_cbranch_vccnz L_retryS\n L_backS:"]
    def c_gather(s):
        return [f"s_add_u32 m0, {s.ab[3]}, {L_U}"] + [f"buffer_load_dwordx4 {s.c_ga}, {s.sws}, {s.gyo[t]} offen offset:{1024*t} sc1 lds ;@gy" for t in range(2)]
    def c_parts(s):
        F = s.v('cF', 8); D = [[s.v(f'cD{i}{x}', 4) for x in 'ri'] for i in range(2)]; Sp = [[s.v(f'cS{i}{x}', 4) for x in 'ri'] for i in range(2)]; tmp = s.v('ctmp', 4)
        U = [F[0:4], F[4:8]]; sw = ["s_waitcnt lgkmcnt(0)", f"v_swap_b32 {F[1]}, {F[4]}", f"v_swap_b32 {F[3]}, {F[6]}"]
        o = [f"ds_read_b64 {F[2*pos:2*pos+2]}, {s.c_ua} offset:{1024*c}" for pos, c in enumerate((0, 2, 1, 3))] + ['@1'] + sw
        o += cat([f"{M16} {D[i][0]}, {s.C3r}, {U[i]}, 0", f"{M16} {D[i][1]}, {s.C3i}, {U[i]}, 0"] for i in range(2)) + ['@2']
        o += cat(s.pack(lambda c: U[i][c], D[i][0], D[i][1]) + [f"ds_write_b128 {s.c_ew}, {U[i]} offset:{16*i}"] for i in range(2))
        o += ['@3', "s_waitcnt lgkmcnt(0)", "s_barrier"]
        o += [f"ds_read_b64 {F[2*pos:2*pos+2]}, {s.c_er[c]}" for pos, c in enumerate((0, 2, 1, 3))] + ['@4'] + sw
        o += cat([f"{M16} {D[i][0]}, {U[i]}, {s.CGr}, 0", f"{M16} {D[i][1]}, {U[i]}, {s.CGi}, 0", f"{M16} {Sp[i][0]}, {U[i]}, {s.SCr}, 0", f"{M16} {Sp[i][1]}, {U[i]}, {s.SCi}, 0"] for i in range(2)) + ['@5']
        for i in range(2):
            o += [f"v_cndmask_b32 {D[i][x][0]}, {D[i][x][0]}, {Sp[i][x][0]}, {s.mq0}" for x in range(2)]
            if i: o += [f"{M16} {D[0][0]}, {U[0]}, {s.C1x}, 0", f"{M16} {D[0][1]}, {U[0]}, {s.C1y}, 0"]
            o += s.cmul(D[i][0], D[i][1], s.T512c, s.T512s, tmp, True) + s.pack(lambda c: U[i][c], D[i][0], D[i][1])
        Q = [Sp[0][0], Sp[1][0]]
        cv = lambda i: [f"v_cvt_pk_bf16_f32 {Q[i][2*y+h]}, {D[i][y][2*h]}, {D[i][y][2*h+1]}" for y in range(2) for h in range(2)]
        stt = lambda i: [f"v_min_u32 {Q[i][c]}, -2, {Q[i][c]}" for c in (0, 2, 1, 3)] + [f"v_permlane16_swap_b32 {Q[i][0]}, {Q[i][2]}", f"v_permlane16_swap_b32 {Q[i][1]}, {Q[i][3]}", f"buffer_store_dwordx4 {Q[i]}, {s.s_st}, {s.sws}, {s.xo[i]} offen sc1 ;@s"]
        c0 = cv(0)
        o += c0[:2] + [f"{M16} {D[1][0]}, {U[1]}, {s.C1x}, 0", f"{M16} {D[1][1]}, {U[1]}, {s.C1y}, 0"] + c0[2:] + ['@6'] + stt(0) + cv(1) + stt(1)
        return o
    def build(s):
        A = s.A
        s.entry(); nso = opt('nso', 3); A(s.so_calc(0, nso))
        A(f"""s_waitcnt lgkmcnt(0)
        buffer_load_dwordx4 {s.l16}, {s.sx}, {s.xo[0]} offen lds ;@xr
        buffer_load_dwordx4 {s.l16}, {s.sx}, {s.xo[1]} offen offset:1024 lds ;@xr
        s_mov_b64 {s.sx1[0:2]}, {s.sx[0:2]}
        s_cmp_eq_u32 {s.fs1}, 15
        s_cselect_b64 {s.sw1[0:2]}, {s.sw2[0:2]}, {s.sw1[0:2]} ;@K""")
        s.stamp('karg'); s.S.free = [0, 1] + s.S.free
        tr = s.tables(); W = s.v('wraw', 8); s.v('vtag'); s.ss('xo2 mlo')
        halves = cat(s.g1_halves(st) for st in range(8)); npre = opt('npre', 6)
        asc = s.a_scalars()
        wl = [f"buffer_load_dwordx4 {W[0:4]}, {s.g1vw[3]}, {s.swr}, {s.wl} offen ;@W", f"buffer_load_dwordx4 {W[4:8]}, {s.g1vw[3]}, {s.swi}, {s.wl} offen ;@W"]
        q = glue(cat(halves[:npre])); wpos = opt('wpos', 7); q = q[:wpos] + wl + q[wpos:]
        PFX = opt('p1q', -1) >= 0 or opt('pxq', 14) >= 0
        if PFX: s.vs('pfe pfe2 pf1o')
        if opt('p1q', -1) >= 0:
            asc += L(f"s_mul_i32 {s.t0}, {s.j}, 43\n s_mul_i32 {s.t1}, {s.w}, 11\n s_add_u32 {s.t0}, {s.t0}, {s.t1}\n v_min_u32 {s.pf1o}, 10, {s.n}\n v_add_lshl_u32 {s.pf1o}, {s.t0}, {s.pf1o}, 10")
            assert opt('p1q', -1) >= opt('n0', 4); q.insert(opt('p1q', -1), s.pf1()[0])
        if opt('pxq', 14) >= 0: q.insert(opt('pxq', 14), "\n".join(s.pfx()))
        if opt('scp', 1) == 2:
            assert opt('pxq', 14) < 0
            clr = R('a', 200, 4); A([f"v_accvgpr_write_b32 {clr[c]}, -1" for c in range(4)] + [f"s_add_u32 {s.xo[0]}, {s.xo[0]}, {WS_S}", f"s_add_u32 {s.xo[1]}, {s.xo[0]}, 262144"])
            k = opt('scq', 0); q[k:k] = [f"buffer_store_dwordx4 {clr}, {s.l16}, {s.sws}, {s.xo[i]} offen sc1 ;@sc" for i in range(2)]
        n0 = opt('n0', 4); assert not any(str(s.sw1) in x or ';@W' in x for x in q[:n0]) or opt('vwc', 0); assert True or n0 <= (wpos if opt('vwc', 0) else 4); A(q[:n0]); q = q[n0:]
        A(s.fwarm()); A(f"s_mov_b32 {s.t0}, {EP}\n buffer_load_dword {s.vtag}, off, {s.sws}, {s.t0} sc1 ;@tag")
        rsc, rfix = s.g1_rd_setup()
        su = asc + s.const_A3() + s.so_calc(nso, 8) + rsc + s.flags_setup(); k = min(opt('sb', 60), len(su)); assert k >= len(asc)
        while k < len(su) and su[k].startswith('s_cselect'): k += 1
        A(su[:k]); su = su[k:]
        A("@wait tb\n s_barrier"); s.stamp('tb')
        A(tr[:12])
        A(f"""s_waitcnt lgkmcnt(8)
        v_add_u32 {s.a_trad}, {s.ab[3]}, {s.a_trad}
""")
        if not opt('vwc', 0):
            A(f"s_cmp_eq_u32 {s.fs1}, 15\n s_cselect_b64 {s.mq0}, -1, 0"); A([f"v_cndmask_b32 {s.g1vw[z]}, {s.g1vw[z]}, {s.l16}, {s.mq0}" for z in range(3)]); A(f"s_mov_b64 {s.mq0}, 0xffff")
        n1 = opt('n1', 5)
        A(sprinkle(tr[12:] + su, q[:n1], 0, opt('e0', 8))); q = q[n1:]
        wdone = 'W' in A.vmlog and not any(';@W' in x for x in q)
        if wdone: s.sfree('swr swi wl')
        s.vfree('cpf _tad')
        RL = opt('rl', 0)
        A("@wait xr lgkm=0"); s.stamp('xin')
        na = opt('na', 6)
        A(sprinkle(s.a_part1(s.a_fix()), q[:na], opt('f1a', 80), opt('e1', 12))); q = q[na:]
        assert 'st3' not in A.vmlog
        A(rfix[:opt('rf', 12)]); A("s_waitcnt lgkmcnt(0)\n s_barrier"); s.stamp('a1')
        rf2 = rfix[opt('rf', 12):]
        p2, wst_, pk, xrd, xst = s.a_part2()
        if RL & 1: rf2 = rf2 + s.reloc_prod(s.xost, s.p, 0xff000000, 0xff000000, f"s_bitcmp0_b32 {s.w}, 0")
        A(p2[:2] + rf2); A(sprinkle(p2[2:], q[:opt('na2', 3)], 4, 3)); q = q[opt('na2', 3):]
        P = dict(head={t: [] for t in range(16)}, also={t: '' for t in range(16)}, extra={t: [] for t in range(16)}, first={t: [] for t in range(16)}, last={t: [] for t in range(16)}, bar=set())
        head, also, extra = P['head'], P['also'], P['extra']
        f1 = opt('f1', 3); p1 = opt('p1', 10); c1s = opt('c1', 12); pf3 = opt('pf3', 6)
        gsc, bsu = s.b_setup(); wsu, pfs = s.w2_setup()
        if RL & 1: gsc += s.reloc_cons(s.b_ga, s.j, 1, 2)
        if RL & 2: wsu += s.reloc_prod(s.b_st, s.j, 0xff000000, 0)
        if RL & 8:
            s.v('hla'); wsu += [f"v_mov_b32 {s.hla}, {s.l16}"] + L(f"s_lshr_b32 {s.t1}, {s.w}, 1\n s_lshl1_add_u32 {s.t1}, {s.rb1}, {s.t1}") + s.reloc_prod(s.hla, s.t1, 0xff000000, 0)
        else: s.hla = s.l16
        if RL: s.v('_keep')
        wst = [int(x) for x in opt('wst', '10,11,14').split(',') if x]
        hA, hB, hC = opt('hA', -2), opt('hB', -2), opt('hC', -2); head[-1] = []; head[-2] = []
        head[opt('hT', -2)] += s.tag_fix(); head[hA] += pfs + gsc + s.h_offsets(); head[hB] += wsu
        if hC != 15: head[hC] += bsu
        assert hA <= min(c1s, pf3 or 99, hB) and hB <= min(wst + [15])
        xin = opt('xin', 3)
        if xin == 0: A(pk + head[-2] + wst_ + xrd + q + xst[:1] + cat([f"s_waitcnt lgkmcnt({3-z})", xst[1+z]] for z in range(4)) + head[-1])
        elif xin == 3: A(pk + sprinkle(head[-2], q, 0, opt('e6', 12)) + wst_ + xrd + xst[:1] + cat([f"s_waitcnt lgkmcnt({3-z})", xst[1+z]] for z in range(4)) + head[-1])
        elif xin == 1: A(pk + head[-2] + wst_ + xrd + q + head[-1]); extra[0] += xst
        else:
            xs = opt('xs', 0); A(pk + sprinkle(head[-2] + head[-1], q, 0, opt('e6', 12)))
            also[xs] += ' W'; P['first'][xs] += wst_[1:]; P['last'][xs] += xrd; extra[xs+1] += xst; assert f1 > xs + 1
        if not wdone: s.sfree('swr swi wl')
        s.vfree('aF0 aF1 a_trad sel0 a_wr B1r B1i SAr SAi A3r A3i mn0 sgn a_rd a_st0 a_st1 wa0 xa0'); s.sfree('apiv')
        s.v('acc1', 48); s.v('accc', 12); mm = s.v('g1m', 8)
        s.stamp('a2')
        t = opt('o3', 0)
        for h in range(npre, 16):
            t = max(t, 2*(h//2 - 4) + 1)
            if t == c1s and opt('gfirst', 1): t += 1
            if xin == 2 and t == opt('xs', 0) + 1 and opt('xfirst', 1): t += 1
            assert t <= 2*(h//2) - 2, (h, t)
            extra[t] += halves[h]; t += 1
        also[f1] += ' x1'; extra[f1] = s.flag('f1', s.fo) + extra[f1]
        if pf3: extra[pf3] += s.pf3()
        i1, c1 = s.poll('p1', s.pa, 0); gat = s.b_gather(); gsp = opt('gsp', 2)
        for k in range(gsp, 4, gsp): extra[c1s + k//gsp] = gat[:1] + gat[1+k:1+k+gsp] + extra[c1s + k//gsp]
        head[c1s] += c1; extra[c1s] = [f"buffer_load_dwordx4 {mm[0:4]}, {s.mla}, {s.sws}, {s.mlo} offen sc1 ;@m"] + gat[:1+gsp] + extra[c1s]; P['bar'].add(c1s); P['bar'].add(f1)
        extra[p1] = i1 + extra[p1]
        for hb, st in enumerate(wst):
            assert st >= 9 + 2*(hb//2); d = s.w2dma(hb)
            if opt('wsp', 0) and st < 15: extra[st] += d[:4]; extra[st+1] = d[:2] + d[4:] + extra[st+1]
            else: extra[st] += d
        P['last'][15] += [''] * max(0, 9 - len(glue(extra[15]))) + [f"ds_write_b128 {s.xw}, {s.accc[0:4]}", "@wait m", f"v_mov_b32 {mm[4]}, {mm[1]}", f"v_mov_b32 {mm[6]}, {mm[3]}"]
        if hC == 15: P['first'][15] += bsu
        A("@wait st0\n s_barrier"); s.stamp('in0'); A(s.g1_reads(0))
        for step in range(16):
            s.g1_step(step, P)
            if step == opt('xs', 0) + 2: s.vfree('aD0r aD0i aD1r aD1i ast wraw wso wso2 xord xost rms'); s.sfree('x1o xo2')
        s.stamp('g1main')
        brd, bsw, bmain, brd2, bst = s.b_parts()
        nb = len(wst); e0 = opt('ne', 0); nbb = opt('nbb', 1); nd = opt('nd', 1); assert nb + e0 + nbb <= 8 and nb + e0 >= 3
        epi = s.g1_epilogue()
        if opt('gxe', 1):
            k = epi.index('s_barrier'); epi[k-1] = "@wait gx lgkm=0"; epi[k+2:k+2] = brd
        A(sprinkle(epi, glue(cat(s.w2dma(h) for h in range(nb, nb + e0))), opt('ef', 2), opt('ee', 15)))
        clr = s.g1m[0:4]
        sclr = [f"v_mov_b32 {clr[c]}, -1" for c in range(4)] + [f"s_add_u32 {s.xo[0]}, {s.xo[0]}, {WS_S}", f"s_add_u32 {s.xo[1]}, {s.xo[0]}, 262144"] + \
               [f"buffer_store_dwordx4 {clr}, {s.l16}, {s.sws}, {s.xo[i]} offen sc1 ;@sc" for i in range(2)]
        if opt('scp', 1) == 0: A(sclr)
        s.stamp('g1epi')
        if not opt('gxe', 1): A("@wait gx\n s_barrier"); A(brd); A("s_waitcnt lgkmcnt(0)")
        A(bsw); A(sprinkle(bmain, glue(cat(s.w2dma(h) for h in range(nb + e0, nb + e0 + nbb))), opt('bf', 40), opt('e2', 16)))
        if opt('scp', 1) == 1: A(sclr)
        s.vfree('g1m g1P acc1 accc g1wa g1xa g1vx g1vw xw xr_ pfo pfd mla' + (' pfe pfe2 pf1o' if PFX else '')); s.afree('ones xf wf'); s.sfree('sox sow tau0 dtau sx1 sw1 go mlo')
        hb_ = opt('hearly', 1)
        A(("@wait h lgkm=0" if hb_ == 1 else "s_waitcnt lgkmcnt(0)") + "\n s_barrier"); A(brd2)
        if hb_ == 1: A(s.flag('f2', s.fo2))
        ht = s.v('ht', 2)
        touch = [f"v_lshlrev_b32 {ht[0]}, 7, {s.l}", "s_mov_b64 exec, 0xffff\n" + "\n".join(f"buffer_load_dword {ht[1]}, {ht[0]}, {s.sws}, {s.hst[i]} offen sc1 ;@ht" for i in range(3)) + "\n s_mov_b64 exec, -1"]
        HT = opt('ht', 0); assert not HT or hb_ == 1
        if HT == 1: A(touch)
        s.v('acc2', 64); s.a('w2f', 176); NH = s.NH = opt('nh', 16); s.a('hf', 4*NH)
        X = s.v('fX', 8); S = s.v('fS', 8); pv2 = s.v('pv2')
        g0, g1 = s.g2_setup(); A(g0)
        if RL & 2: g1 += s.reloc_cons(s.c_ga, s.p, 2, 1)
        if RL & 8: g1 += [f"v_mov_b32 {s.hla}, {s.l16}"] + s.reloc_prod(s.hla, s.rb, 0xff000000, 0) + [f"s_mov_b32 {s.sh[2]}, {BIG + 65536}"]
        A("s_waitcnt lgkmcnt(0)"); A(bst); s.stamp('b')
        if HT == 2: A(touch)
        s.vfree('bD0r bD0i bD1r bD1i btmp bX bW b_ua b_wa b_uo T256c T256s b_lin b_ga FWr FWi IVr IVi ra2'); s.sfree('y1o')
        g1.append(f'v_add_u32 {s.pa}, {F3 - F1}, {s.pa}'); i3, c3 = s.poll('p3', s.pa, 0); pv = s.pv; s.pv = pv2; i2, c2 = s.poll('p2', s.pg2, 0); s.pv = pv
        n1_ = nb + e0 + nbb; rest = list(range(n1_, 11))
        cc = [f"@wait wb{nb-1}"] + sprinkle(g1 + s.const_C3(), cat(s.w2read(h) for h in range(nb)), 0, 2)
        k = min(opt('ca', 200), len(cc))
        while k < len(cc) and cc[k].startswith(('s_cselect', 's_addc')): k += 1
        assert n1_ + nd <= 8
        A(cat(s.w2dma(h) for h in rest[:nd])); A(cc[:k]); s.stamp('pre')
        t0 = s.t0; s.t0 = s.t2
        A("@wait y1\n s_barrier"); A(s.flag('f3', s.fo, F3 - F1)); s.t0 = t0
        if hb_ == 0: A(s.flag('f2', s.fo2))
        s.stamp('ack'); s.vfree('bF b_st')
        xl = [f"buffer_load_dwordx3 {s.rv[0:3]}, {s.rn[0]}, {s.sws}, 0 offen sc1 ;@r"] + \
             [f"buffer_load_dwordx4 {X[4*m:4*m+4]}, {s.g2st}, {s.sx}, {s.rowo[m]} offen ;@xt" for m in range(2)]
        cpos = opt('cpos', 18); nlate = opt('nlate', 1); ev = {i: [] for i in range(45)}; xi = opt('xi', -1)
        lateh = list(range(11 - nlate, 11)); assert nlate <= min(4, len(rest) - nd) and n1_ >= 4
        lo = [h for h in rest[nd:] if h < 8 and h not in lateh]; hi = [h for h in rest[nd:] if h >= 8 and h not in lateh]
        loq = glue(cat(s.w2dma(h) for h in lo)); nlo = len(loq) - min(len(loq), opt('nlo', 0))
        A(sprinkle(cc[k:] + cat(s.w2read(h) for h in range(nb, n1_)), loq[:nlo], 0, opt('e5', 8))); A("s_waitcnt lgkmcnt(0)")
        wq = loq[nlo:] + glue(cat(s.w2dma(h) for h in hi)) + (xl if xi == -1 else []); nw = opt('nw', 0)
        A(wq[:nw]); wq = wq[nw:]
        if opt('d2', 0): A(f"s_sleep {opt('d2', 0)}")
        nc2 = max(0, len(wq) - opt('aft', 0)); wq2 = wq[nc2:]
        s.stamp('pre3'); A(i2); A(wq[:nc2])
        if RL & 8:
            assert not nlate
            A(f"s_cmp_eq_u32 {s.w}, 3\n s_cselect_b32 {s.t0}, {9*4096}, -1"); A([f"s_min_u32 {s.hso[i]}, {s.hso[i]}, {s.t0}" for i in range(3 if opt('rot2', 'x') == 'x' else 10, 11)])
        A(c2); s.stamp('f2')
        now = [h for h in rest if h not in lateh]
        early = [h for h in now if A.vmlog.count(f'wb{h}') == 4 and A.vmlog.index('p2') > max(i for i, t in enumerate(A.vmlog) if t == f'wb{h}')]
        lead = min(NH, opt('lead', 10)); hq = [s.hload(i) for i in range(lead)]; p3 = opt('p3', -4); c3i = opt('c3', 6)
        assert not (wq2 and RL & 8); k = opt('afp', 4); hq[k:k] = wq2
        if p3 < 0: hq[len(hq)+p3:len(hq)+p3] = i3
        else: ev[p3] += i3
        A(sprinkle(cat(s.w2read(h) for h in early), hq, 0, 3))
        if len(early) < len(now): A(f"@wait wb{now[-1]}"); A(cat(s.w2read(h) for h in now if h not in early))
        ev[c3i] += [f"s_cmp_eq_u32 {s.p}, 0\n s_cselect_b32 {s.t1}, {s.fo}, {WS_SIZE}"] + c3 + ["s_barrier"] + glue(s.c_gather()) + s.flag('ep', s.t1, EP - F1)
        pre = {i: [] for i in range(45)}; inc = []
        for h in lateh:
            use = ORDER.index((0, 2*h)); st = use - opt('la', 14); d = glue(s.w2dma(h))
            if opt('lc', 1):
                inc.extend(d); assert use - 2 >= cpos + sum(int(x) for x in opt('gap', '1,0,1,1,0,0').split(','))
                ev[use-2] += [f"@wait wb{h}"] + s.w2read(h); pre[use] += ["s_waitcnt lgkmcnt(0)"]; continue
            if st == c3i - 1: st -= 1
            assert st >= 0
            ev[st] += d[:2]; ev[st+1] = d[2:] + ev[st+1]; ev[use-2] += [f"@wait wb{h}"] + s.w2read(h); pre[use] += ["s_waitcnt lgkmcnt(0)"]
        top = (inc + ['@T'] * (NH - lead) if opt('lc', 1) == 1 else ['@T'] * (NH - lead) + inc) + (xl if xi == -2 else [])
        per = [int(x) for x in opt('cq', '2,1,2,2,1,9').split(',')]; cblk = ["@wait gy", "s_barrier"]
        gap = [int(x) for x in opt('gap', '1,0,1,1,0,0').split(',')]; blk = {}; at = cpos; cend = cpos + sum(gap)
        for x in s.c_parts():
            if x[0] == '@' and len(x) == 2:
                k = int(x[1]); cblk += top[:per[k-1]]; top = top[per[k-1]:]
                if gap[k-1]: blk[at] = cblk; cblk = []; at += gap[k-1]
            else: cblk.append(x)
        cblk += top; blk[at] = cblk
        assert p3 < c3i < cpos <= 30
        s.vfree('cF cD0r cD0i cD1r cD1i cS0i cS1i ctmp C3r C3i CGr CGi c_er c_ua c_ew c_ga T512c T512s')
        s.v('fx', 16); s.v('fs_', 16)
        if xi >= 0:
            for k in range(3): ev[xi + k] += [xl[k]]
        sli = opt('sl', 34); sw = opt('sw', 50); assert cend < sli < sw
        sld, sck = s.s_fetch(S); ev[sli] += sld
        w0 = max(45 - LAG, cend); assert w0 + 1 + opt('rw', 5) <= 43 - opt('nl', 5) and LAG >= opt('nl', 5)
        for k in range(8): ev[w0 + k*opt('rw', 5)//8] += [s.red_write(0)[k]]
        r0 = w0 + 1 + opt('rw', 5); ev[r0] += ["s_waitcnt lgkmcnt(0)\n s_barrier"] + s.red_read(0)
        SR = sw < 100
        a1, a3 = s.finish(0, False, False)
        if sw > 44: _, a3 = s.finish(0, True, False)
        s1 = s.unpack(s.fs_[8:16], S[4:8])
        if SR: s1 += [f"v_pk_mul_f32 {s.fs_[c:c+2]}, {s.fs_[c:c+2]}, {s.rv[2:4]} op_sel_hi:[1,0]" for c in range(8, 16, 2)] if sw > 44 else [f"v_mul_f32 {s.fs_[c]}, {s.rv[2]}, {s.fs_[c]}" for c in range(8, 16)]
        streams = [(max(18, cend + (6 if xi == -2 else 0)), ["@wait xt"] + [f"v_mul_f32 {s.rn[2*m]}, {fl(-LOG2E)}, {s.rv[2*m]}" for m in range(2)] + s.unpack(s.fx, X)),
                   (r0 + 2, ["s_waitcnt lgkmcnt(0)"] + a1), (sw, sck + s.unpack(s.fs_[0:8], S[0:4]) + a3 + s1)]
        perm = opt('per', 8); nlast = opt('nl', 5); late = []; nxt = [lead]
        def take(idx, n):
            o = []
            while streams and n > 0 and streams[0][0] <= idx:
                x = streams[0][1][:n]; del streams[0][1][:n]; o += x; n -= len(x)
                if not streams[0][1]: streams.pop(0)
            return o
        def hnext():
            if nxt[0] >= 44: return []
            nxt[0] += 1; return [s.hload(nxt[0] - 1)]
        for idx in range(44):
            mt, i = ORDER[idx]; sl = idx % NH
            if idx == cpos: s.stamp('gy')
            for x in blk.get(idx, []): A(hnext() if x == '@T' else x)
            if idx == cend: s.stamp('c')
            A(f"@wait h{idx}" + (" lgkm=0" if idx == 0 or pre[idx] else ""))
            if idx == 0: s.stamp('h0')
            if idx and idx % 3 == 0: s.stamp(f'.h{idx}')
            mf = []
            for nt in range(2):
                acc = s.acc2[32*mt+16*nt:32*mt+16*nt+16]
                mf.append(f"{M32} {acc}, {s.w2f[8*i+4*nt:8*i+4*nt+4]}, {s.hf[4*sl:4*sl+4]}, {acc if i else 0}")
            if idx >= 44 - nlast:
                assert nxt[0] == 44
                late.append(mf[1]); A(mf[0]); A(ev[idx] + take(idx, perm // 2 - len(ev[idx]))); continue
            fill = list(ev[idx]); fill += take(idx, perm - len(fill)); h = (len(fill) + 1) // 2
            A(mf[0]); A(fill[:h]); A(mf[1]); A(hnext() + fill[h:]); assert nxt[0] <= idx + 1 + NH
        rw = s.red_write(1)
        for k, m in enumerate(late):
            A(m); A(take(50, perm // 2))
            if k >= 2 and len(rw) > 4: A(rw[:2]); rw = rw[2:]
        s.stamp('g2main'); A(ev[44])
        A(rw[:len(rw)-4]); A(take(60, 10)); A(rw[len(rw)-4:]); A(take(70, 20))
        A("s_waitcnt lgkmcnt(0)\n s_barrier"); A(s.red_read(1)); A(take(99, 999))
        a1, a3 = s.finish(1, True, SR)
        A("s_waitcnt lgkmcnt(4)"); A(a1[:4]); A("s_waitcnt lgkmcnt(0)"); A(a1[4:]); A(take(999, 999)); A(a3)
        s.stamp('fin')
        if STAMPS:
            A("s_waitcnt vmcnt(0)"); s.stamp('end'); n = len(s.tags)
            A(f"""s_waitcnt lgkmcnt(0)
            v_writelane_b32 {s._sv}, {s._sp[2*((n-1)%2)]}, {n-1}
            v_writelane_b32 {s._sv}, {s.spin if s.cnt else s.spin2}, 31
            s_lshl2_add_u32 {s.t0}, s2, {s.w}
            s_lshl_b32 {s.t0}, {s.t0}, 7
            s_add_u32 {s.t0}, {s.t0}, {32<<20}
            v_lshl_add_u32 v0, {s.l}, 2, {s.t0}
            s_mov_b64 exec, 0xffffffff
            global_store_dword v0, {s._sv}, {s.sws[0:2]}""")
        A("L_end:\n s_endpgm"); A(s.tail); A("L_codeend:")

HDR = '''; ---------------------------------------------------------------------------------------------------------------
;   X1, h, Y1: stores -> vmcnt wait -> barrier -> flag = tag; tag = LCG(epoch word found in d_ws), epoch := tag once all have read it.
;   Every wait loop is bounded. Workgroup id mod 8 is used for cache locality only.
; ---------------------------------------------------------------------------------------------------------------
'''
def main(cls):
    k = cls(); k.build(); b = k.A.finish()
    if opt('kill', ''):
        pats = opt('kill', '').split(','); Ls = b.split("\n")
        for i, l in enumerate(Ls):
            m = re.search(r';@(\w+)', l)
            if m and l.strip().startswith('buffer_') and m.group(1) != 'xr' and any(re.fullmatch(p, m.group(1)) for p in pats): Ls[i] = re.sub(r's\[\d+:\d+\], (s\d+|0) ', 's[4:7], 0 ', l)
            if ';@K' in l: Ls[i] = l + f"\n    s_mov_b32 s4, {k.sws[0]}\n    s_mov_b32 s5, {k.sws[1]}\n    s_mov_b32 s6, 0\n    s_mov_b32 s7, 0x20000"
        b = "\n".join(Ls)
    o = open("recurrent_scan__spectral_gfnet__dense_activation_relu__prompt.s.ref").read().split("; Override launch")[0]
    o += HDR
    o += f"; @launch grid=(256,1,1) block=(256,1,1) lds={LDS}\n" + '.amdgcn_target "amdgcn-amd-amdhsa--gfx950"\n.text\n'
    o += f".globl {KN}\n.p2align 8\n.type {KN},@function\n{KN}:\n" + b + '.section .rodata,"a"\n.p2align 6\n'
    o += f""".amdhsa_kernel {KN}
  .amdhsa_next_free_vgpr 512
  .amdhsa_next_free_sgpr 102
  .amdhsa_accum_offset 256
  .amdhsa_group_segment_fixed_size 0
  .amdhsa_kernarg_size 72
  .amdhsa_user_sgpr_count 2
  .amdhsa_user_sgpr_kernarg_segment_ptr 1
  .amdhsa_system_sgpr_workgroup_id_x 1
.end_amdhsa_kernel
""" + k.tb.text("tbl")
    open(sys.argv[1], "w").write(o)
    print("v", k.V.hw, "a", k.AC.hw, "s", k.S.hw, "instrs", len(k.A.lines), "nops", k.A.nops)
    if STAMPS: open(sys.argv[1] + ".tags", "w").write(" ".join(k.tags))
if __name__ == "__main__": main(Kern)
```
